```python
import torch

def _softmax(x, axis=-1):
    return torch.softmax(x, dim=axis)
def _gelu(x):
    return torch.nn.functional.gelu(x, approximate="tanh")
def _silu(x):
    return torch.nn.functional.silu(x)
def _sigmoid(x):
    return torch.sigmoid(x)
def _layernorm(x, axis=-1, eps=1e-5):
    m = x.mean(dim=axis, keepdim=True)
    v = x.var(dim=axis, keepdim=True, unbiased=False)
    return (x - m) / torch.sqrt(v + eps)
def _scatter_add(tgt, idx, src, axis=0):
    return tgt.clone().index_add_(axis, idx, src)
def _segment_sum(src, seg, n):
    out = torch.zeros((n,) + src.shape[1:], dtype=src.dtype)
    return out.index_add_(0, seg, src)
def _pad(x, pw):
    flat = tuple(v for pair in reversed(pw) for v in pair)
    return torch.nn.functional.pad(x, flat)

kernel_name = 'concat_heads__sliding_local_dilated__softmax_full_mha__prompt'

def setup_inputs():

    _w = (lambda a: (lambda t: t.to(torch.bfloat16) if t.is_floating_point() else t)(torch.as_tensor(a)))
    def _A_setup():
        B, S, D = 1, 2048, 512
        return {
            "x": _w((lambda *s: torch.randn(*s, dtype=torch.bfloat16) * 0.4)(B, S, D)),
            "wqkv": _w((lambda *s: torch.randn(*s, dtype=torch.bfloat16) * 0.4)(D, 3 * D)),
            "wo": _w((lambda *s: torch.randn(*s, dtype=torch.bfloat16) * 0.05)(D, D)),
        }
    _A_in = _A_setup()

    def _B_setup():
        B, S, D = 1, 2048, 512
        return {
            "x": _w((lambda *s: torch.randn(*s, dtype=torch.bfloat16) * 0.2)(B, S, D)),
            "wqkv": _w((lambda *s: torch.randn(*s, dtype=torch.bfloat16) * 0.4)(D, 3 * D)),
            "wo": _w((lambda *s: torch.randn(*s, dtype=torch.bfloat16) * 0.1)(D, D)),
        }
    _B_in = _B_setup()

    return {
        "A_x": _A_in["x"],
        "A_wqkv": _A_in["wqkv"],
        "A_wo": _A_in["wo"],
        "B_x": _B_in["x"],
        "B_wqkv": _B_in["wqkv"],
        "B_wo": _B_in["wo"],
    }

def reference(A_x, A_wqkv, A_wo, B_x, B_wqkv, B_wo):
    def _A_ref(x, wqkv, wo):
        B, S, D = x.shape
        H = 32; Dh = D // H
        W, dil = 8, 2
        qkv = (lambda x, *d: x.permute(*d))((x @ wqkv).reshape(B, S, 3, H, Dh), 2, 0, 3, 1, 4)
        q, k, v = qkv[0], qkv[1], qkv[2]
        scale = Dh ** -0.5
        pos = torch.arange(S)
        off = torch.arange(W) * dil
        idx = pos[:, None] - off[None, :]
        mask = idx >= 0
        idx_c = torch.where(mask, idx, 0).reshape(-1)
        kg = k[:, :, idx_c, :].reshape(B, H, S, W, Dh)
        vg = v[:, :, idx_c, :].reshape(B, H, S, W, Dh)
        logits = torch.einsum("bhsd,bhswd->bhsw", q, kg) * scale
        logits = torch.where(mask[None, None, :, :], logits, -1e9)
        attn = _softmax(logits, axis=-1)
        o = torch.einsum("bhsw,bhswd->bhsd", attn, vg)
        return (lambda x, *d: x.permute(*d))(o, 0, 2, 1, 3).reshape(B, S, D) @ wo

    def _B_ref(x, wqkv, wo):
        B, S, D = x.shape
        H = 32; Dh = D // H
        qkv = (lambda x, *d: x.permute(*d))((x @ wqkv).reshape(B, S, 3, H, Dh), 2, 0, 3, 1, 4)
        q, k, v = qkv[0], qkv[1], qkv[2]
        scale = Dh ** -0.5
        scores = torch.einsum("bhqd,bhkd->bhqk", q, k) * scale
        p = _softmax(scores, axis=-1)
        o = torch.einsum("bhqk,bhkd->bhqd", p, v)
        return (lambda x, *d: x.permute(*d))(o, 0, 2, 1, 3).reshape(B, S, D) @ wo

    a = _A_ref(A_x, A_wqkv, A_wo)
    b = _B_ref(B_x, B_wqkv, B_wo)
    return torch.concatenate([a, b], axis=-1)
```

```python
import re

class Asm:
    def __init__(self):
        self.lines = []
        self.uid = 0
    def __call__(self, s):
        for l in s.split("\n"):
            l = l.strip()
            if l:
                self.lines.append(l)
    def label(self, name):
        self.lines.append(name + ":")
    def newlabel(self, base):
        self.uid += 1
        return f"L_{base}_{self.uid}"
    def nop(self, n):
        while n > 0:
            k = min(n, 16)
            self.lines.append(f"s_nop {k-1}")
            n -= k
    def text(self):
        out = []
        for l in self.lines:
            if l.endswith(":") or l.startswith("."):
                out.append(l)
            else:
                out.append("    " + l)
        return "\n".join(out) + "\n"

def vr(a, n=1):
    return f"v{a}" if n == 1 else f"v[{a}:{a+n-1}]"
def sr(a, n=1):
    return f"s{a}" if n == 1 else f"s[{a}:{a+n-1}]"

REG = re.compile(r"\b([vsa])(\d+)\b|\b([vsa])\[(\d+):(\d+)\]|\b(vcc|exec|m0|scc)\b")
def regs(op):
    out = set()
    for m in REG.finditer(op):
        if m.group(1):
            out.add((m.group(1), int(m.group(2))))
        elif m.group(3):
            for i in range(int(m.group(4)), int(m.group(5)) + 1):
                out.add((m.group(3), i))
        else:
            out.add((m.group(6), 0))
    return out

TRANS = ("v_exp_f32", "v_log_f32", "v_rcp_f32", "v_rsq_f32", "v_sqrt_f32", "v_sin_f32", "v_cos_f32", "v_exp_f16", "v_rcp_iflag_f32")

class Ins:
    def __init__(self, text):
        self.text = text
        t = text.split(";")[0].strip()
        parts = t.split(None, 1)
        self.op = parts[0]
        rest = parts[1] if len(parts) > 1 else ""
        ops = [o.strip() for o in re.split(r",(?![^\[]*\])", rest)] if rest else []
        self.ops = ops
        op = self.op
        self.kind = "other"
        self.w = set(); self.r = set()
        self.states = 1
        self.srcc = set(); self.srcab = set(); self.passes = 0
        if op == "s_nop":
            self.states = int(ops[0], 0) + 1
            self.kind = "nop"
        elif op.startswith("v_mfma"):
            self.kind = "mfma"
            self.w = regs(ops[0]); self.srcab = regs(ops[1]) | regs(ops[2]); self.srcc = regs(ops[3].split()[0])
            self.r = self.srcab | self.srcc
            self.passes = 8 if "32x32" in op else 4
        elif op.startswith("v_"):
            self.kind = "valu"
            if op.startswith("v_cmp"):
                self.w = regs(ops[0]); self.r = set().union(*[regs(o) for o in ops[1:]])
                if op.startswith("v_cmpx"): self.w |= {("exec", 0)}
            elif op.startswith("v_permlane") and "swap" in op:
                self.w = regs(ops[0]) | regs(ops[1]); self.r = set(self.w)
            elif op in ("v_readfirstlane_b32", "v_readlane_b32"):
                self.w = regs(ops[0]); self.r = set().union(*[regs(o) for o in ops[1:]])
            elif "_co_" in op:
                self.w = regs(ops[0]) | regs(ops[1]); self.r = set().union(*[regs(o) for o in ops[2:]])
            else:
                self.w = regs(ops[0]); self.r = set().union(*[regs(o.split()[0]) if o else set() for o in ops[1:]]) if len(ops) > 1 else set()
                if op.startswith("v_fmac") or op.startswith("v_dot2c") or "sdwa" in op or "dpp" in op: self.r |= self.w
                if op.startswith("v_cndmask") and len(ops) == 3: self.r |= {("vcc", 0)}
        elif op.startswith("ds_"):
            self.kind = "ds"
            if "read" in op or "rtn" in op or "permute" in op:
                self.w = regs(ops[0]); self.r = set().union(*[regs(o.split()[0]) for o in ops[1:]])
            else:
                self.r = set().union(*[regs(o.split()[0]) for o in ops])
        elif op.startswith("buffer_") or op.startswith("global_"):
            self.kind = "vmem"
            self.lds = bool(re.search(r"\blds\b", t)) or "load_lds" in op
            if op in ("buffer_inv", "buffer_wbl2"):
                pass
            elif "load" in op and not self.lds:
                self.w = regs(ops[0]); self.r = set().union(*[regs(o.split()[0]) for o in ops[1:]])
            else:
                self.r = set().union(*[regs(o.split()[0]) for o in ops])
                if self.lds: self.r |= {("m0", 0)}
            self.wide_store = ("store" in op and ("x4" in op or "x3" in op))
            if self.wide_store:
                self.sdata = regs(ops[0]) if op.startswith("buffer_") else regs(ops[1])
        elif op.startswith("s_"):
            self.kind = "salu"
            if ops and not op.startswith("s_cmp") and not op.startswith("s_cbranch") and op not in ("s_branch","s_waitcnt","s_barrier","s_sleep","s_setprio","s_endpgm"):
                self.w = regs(ops[0]); self.r = set().union(*[regs(o) for o in ops[1:]]) if len(ops) > 1 else set()
            elif op.startswith("s_cmp"):
                self.r = set().union(*[regs(o) for o in ops])

def check_seq(seq, where=""):
    probs = []
    n = len(seq)
    for j in range(n):
        c = seq[j]
        if c.kind in ("nop",): continue
        dist = 0
        for i in range(j - 1, max(-1, j - 25), -1):
            p = seq[i]
            need = 0; why = ""
            vw = {x for x in p.w if x[0] in "va"}
            sw = {x for x in p.w if x[0] in ("s", "vcc")}
            if p.kind == "valu":
                if c.kind == "mfma" and vw & c.r: need, why = 2, "valu->mfma"
                if c.kind == "valu" and c.op.startswith("v_permlane") and vw & c.r: need, why = max(need, 2), "valu->permlane"
                if c.kind == "valu" and c.op in ("v_readfirstlane_b32", "v_readlane_b32") and vw & c.r: need, why = max(need, 1), "valu->readlane"
                if c.kind == "valu" and "dpp" in c.op and vw & c.r: need, why = max(need, 2), "valu->dpp"
                if p.op in TRANS and c.kind == "valu" and c.op not in TRANS and vw & c.r: need, why = max(need, 1), "trans->valu"
                if p.op in TRANS and c.kind in ("vmem","ds","mfma") and vw & c.r: need, why = max(need, 2 if c.kind=="mfma" else 1), "trans->use"
                if c.kind == "vmem" and sw & c.r: need, why = max(need, 5), "valu sgpr->vmem"
                if c.kind == "valu" and sw & c.r: need, why = max(need, 2), "valu sgpr->valu"
                if c.kind == "salu" and sw & c.r: need, why = max(need, 1), "valu sgpr->salu(pad)"
                if ("exec", 0) in p.w and c.kind in ("mfma",): need, why = max(need, 4), "valu exec->mfma"
                if p.op.startswith("v_dot") and vw & (c.r | c.w) and c.kind in ("valu","mfma","ds","vmem"):
                    same = (c.op == p.op)
                    if same and len(c.ops) >= 4 and vw & regs(c.ops[3].split()[0]) and not (vw & (regs(c.ops[1]) | regs(c.ops[2]))):
                        pass
                    else:
                        need, why = max(need, 3), "dot->use"
                if "sdwa" in p.op and c.kind == "valu" and vw & (c.r | c.w): need, why = max(need, 1), "sdwa->valu"
            if p.kind == "mfma":
                big = {8: 12, 4: 8}[p.passes]
                if c.kind == "mfma":
                    if p.w & c.srcab: need, why = big, "mfma->mfma AB"
                    if p.w & c.srcc and not (p.w == c.srcc and p.passes == c.passes): need, why = max(need, big - 2), "mfma->mfma C overlap"
                    if p.w & c.w and not (p.w == c.srcc): need, why = max(need, big - 2), "mfma WAW(conservative)"
                elif c.kind in ("valu", "ds", "vmem"):
                    if p.w & (c.r | c.w): need, why = big, "mfma->use"
                    if c.kind == "valu" and p.srcc & c.w and not (p.w & c.w): need, why = max(need, {8: 7, 4: 3}[p.passes]), "mfma srcC WAR"
            if p.kind == "salu" and ("m0", 0) in p.w and c.kind == "vmem" and getattr(c, "lds", False): need, why = 1, "m0->dma"
            if p.kind == "vmem" and getattr(p, "wide_store", False) and c.kind in ("valu", "mfma") and p.sdata & c.w: need, why = 2, "store WAR"
            if p.kind == "vmem" and getattr(p, "wide_store", False) and c.kind in ("ds", "vmem") and p.sdata & c.w: need, why = 1, "store WAR1"
            if need > dist:
                probs.append(f"{where} HAZARD {why}: need {need} have {dist}: [{p.text}] -> [{c.text}]")
            dist += p.states
            if dist >= 20: break
    return probs

def check(lines):
    ins = []; labels = {}
    for l in lines:
        t = l.split(";")[0].strip()
        if not t or t.startswith("."): continue
        if t.endswith(":"):
            labels[t[:-1]] = len(ins); continue
        ins.append(Ins(t))
    probs = []
    seg = []
    for k, i in enumerate(ins):
        seg.append(i)
        if i.op in ("s_branch", "s_endpgm"):
            probs += check_seq(seg, "lin"); seg = []
    probs += check_seq(seg, "lin")
    for k, i in enumerate(ins):
        if i.op.startswith("s_cbranch") or i.op == "s_branch":
            tgt = labels.get(i.ops[0])
            if tgt is None: continue
            pre = ins[max(0, k - 24):k + 1]
            for q in range(len(pre) - 2, -1, -1):
                if pre[q].op in ("s_branch", "s_endpgm"):
                    pre = pre[q + 1:]; break
            post = []
            for q in ins[tgt:tgt + 24]:
                post.append(q)
                if q.op in ("s_branch", "s_endpgm"): break
            pr = check_seq(pre + post, f"edge->{i.ops[0]}")
            probs += pr
    seen = set(); out = []
    for p in probs:
        key = p.split("HAZARD")[1]
        if key not in seen:
            seen.add(key); out.append(p)
    return out
```

```python
import sys, math
from asmlib import *

NAME = "concat_heads__sliding_local_dilated__softmax_full_mha__prompt"
MODE = sys.argv[1] if len(sys.argv) > 1 else "3k"
OUT = sys.argv[2] if len(sys.argv) > 2 else f"cdna_kernels/{NAME}.s"

WS_Q = 0
WS_KV = 2 << 20
WS_OB = 6 << 20
WS_OA = 8 << 20
WS_HALO = 10 << 20
WS_FLAG = 12 << 20
FB1 = WS_FLAG
FB2 = WS_FLAG + 4096
FA = WS_FLAG + 16384
HF = WS_FLAG + 32768
WS_SIZE = 16 << 20

RING = 65536
CH = 24576
AREG = 131072
AW = 7680
SYNC = AREG + 4 * AW
LDS_BYTES = 163840

S_AX, S_AW, S_AWO, S_BX, S_BW, S_BWO, S_OUT, S_DBG, S_WS = 8, 12, 16, 20, 24, 28, 32, 36, 40
def srd(b): return f"s[{b}:{b+3}]"
TAG = 44
ROT = 45
MLO = 46
MHI = 48
QSCALE = 0.25 * math.log2(math.e)
import struct
def f2u(x): return struct.unpack("<I", struct.pack("<f", x))[0]
MF = "v_mfma_f32_32x32x16_bf16"
POLL_LIMIT = 30000

a = Asm()

def prologue(kname):
    a(f".globl {kname}\n.p2align 8\n.type {kname},@function")
    a.label(kname)
    a(f"""
    s_cmp_ge_u32 s2, 256
    s_cbranch_scc1 L_exit_{kname}
    s_load_dwordx16 s[64:79], s[0:1], 0
    s_load_dwordx2 s[80:81], s[0:1], 64
    v_lshrrev_b32 v2, 6, v0
    v_and_b32 v1, 63, v0
    s_and_b32 s4, s2, 7
    v_readfirstlane_b32 s3, v2
    s_lshr_b32 s5, s2, 3
    s_and_b32 s6, s4, 3
    s_lshl_b32 s6, s6, 3
    s_and_b32 s50, s5, 7
    s_add_u32 s6, s6, s50
    s_lshr_b32 s7, s4, 2
    s_lshl_b32 s7, s7, 2
    s_lshr_b32 s50, s5, 3
    s_add_u32 s7, s7, s50
    s_and_b32 s{ROT}, s6, 7
    s_mov_b32 s{MLO}, 0xffff
    s_mov_b32 s{MLO+1}, 0xffff
    s_mov_b32 s{MHI}, 0xffff0000
    s_mov_b32 s{MHI+1}, 0xffff0000
    """)
    sizes = [2 << 20, 512 * 1536 * 2, 512 * 512 * 2, 2 << 20, 512 * 1536 * 2, 512 * 512 * 2, 4 << 20, 256, WS_SIZE]
    for i, b in enumerate([S_AX, S_AW, S_AWO, S_BX, S_BW, S_BWO, S_OUT, S_DBG, S_WS]):
        a(f"s_mov_b32 s{b+2}, {sizes[i]}\ns_mov_b32 s{b+3}, 0x20000")
    a("s_waitcnt lgkmcnt(0)")
    for i, b in enumerate([S_AX, S_AW, S_AWO, S_BX, S_BW, S_BWO, S_OUT, S_DBG, S_WS]):
        a(f"s_mov_b32 s{b}, s{64+2*i}\ns_mov_b32 s{b+1}, s{65+2*i}")

def publish_tag():
    L = a.newlabel("notag")
    a(f"""
    s_or_b32 s50, s2, s3
    s_cmp_lg_u32 s50, 0
    s_cbranch_scc1 {L}
    s_memrealtime s[52:53]
    v_mov_b32 v3, 0
    s_waitcnt lgkmcnt(0)
    s_or_b32 s52, s52, 1
    v_mov_b32 v2, s52
    s_mov_b64 exec, 1
    buffer_store_dword v2, v3, {srd(S_DBG)}, 0 offen sc1
    s_mov_b64 exec, -1
    """)
    a.label(L)

def get_tag(vt=2, vz=3):
    L = a.newlabel("gt"); D = a.newlabel("gtd")
    a(f"v_mov_b32 v{vz}, 0\ns_mov_b32 s50, {POLL_LIMIT}")
    a.label(L)
    a(f"""
    buffer_load_dword v{vt}, v{vz}, {srd(S_DBG)}, 0 offen sc1
    s_waitcnt vmcnt(0)
    v_readfirstlane_b32 s{TAG}, v{vt}
    s_nop 1
    s_cmp_lg_u32 s{TAG}, 0
    s_cbranch_scc1 {D}
    s_sleep 1
    s_sub_u32 s50, s50, 1
    s_cmp_lg_u32 s50, 0
    s_cbranch_scc1 {L}
    """)
    a.label(D)

def poll(voff, soff, vt):
    L = a.newlabel("pl"); D = a.newlabel("pld")
    a(f"s_mov_b32 s50, {POLL_LIMIT}")
    a.label(L)
    a(f"""
    buffer_load_dword v{vt}, v{voff}, {srd(S_WS)}, s{soff} offen sc1
    s_waitcnt vmcnt(0)
    v_cmp_ne_u32 vcc, s{TAG}, v{vt}
    s_nop 1
    s_cmp_eq_u64 vcc, 0
    s_cbranch_scc1 {D}
    s_sleep 1
    s_sub_u32 s50, s50, 1
    s_cmp_lg_u32 s50, 0
    s_cbranch_scc1 {L}
    """)
    a.label(D)

def set_flag(soff, vt, vz):
    a(f"""
    v_mov_b32 v{vt}, s{TAG}
    v_mov_b32 v{vz}, 0
    s_mov_b64 exec, 1
    buffer_store_dword v{vt}, v{vz}, {srd(S_WS)}, s{soff} offen sc1
    s_mov_b64 exec, -1
    """)

def loader():
    a("s_sub_u32 s51, s3, 4")
    for t in range(4):
        a(f"s_add_u32 s50, s51, {4*t}\nv_xor_b32 v{10+t}, s50, v1\nv_lshlrev_b32 v{10+t}, 4, v{10+t}")
    a(f"""
    v_lshrrev_b32 v14, 3, v1
    v_and_b32 v15, 7, v1
    v_lshlrev_b32 v16, 1, v14
    v_and_b32 v16, 4, v16
    v_xor_b32 v15, v15, v16
    v_lshlrev_b32 v15, 4, v15
    v_mul_u32_u24 v14, 3072, v14
    v_add_u32 v14, v14, v15
    s_lshl_b32 s52, s51, 10
    s_lshl_b32 s53, s6, 16
    s_add_u32 s53, s53, s52
    s_mul_i32 s54, s51, 24576
    s_lshl_b32 s55, s7, 7
    s_add_u32 s54, s54, s55
    s_mul_i32 s55, s51, 3072
    s_add_u32 s55, s55, {RING}
    """)
    def xload(sx):
        for i in range(16):
            a(f"s_add_u32 m0, s52, {i*4096}\ns_add_u32 s56, s53, {i*4096}")
            a(f"buffer_load_dwordx4 v{10+(i&3)}, {srd(sx)}, s56 offen lds")
    def wload(q):
        sw = S_BW if q < 8 else S_AW
        c = q & 7
        a(f"""
        s_add_u32 s56, s{ROT}, {c}
        s_and_b32 s56, s56, 7
        s_mul_i32 s56, s56, {64*3072}
        s_add_u32 s56, s56, s54
        s_add_u32 m0, s55, {(q&3)*CH}
        s_add_u32 s57, s56, {32*3072}
        """)
        for p in range(3):
            a(f"buffer_load_dwordx4 v14, {srd(sw)}, s56 offen offset:{p*1024} lds")
        a(f"s_add_u32 m0, s55, {(q&3)*CH + 4*3072}\ns_nop 0")
        for p in range(3):
            a(f"buffer_load_dwordx4 v14, {srd(sw)}, s57 offen offset:{p*1024} lds")
    xload(S_BX)
    for q in range(4): wload(q)
    a("s_waitcnt vmcnt(18)\ns_barrier")
    for q in range(1, 8):
        a("s_waitcnt vmcnt(12)\ns_barrier")
        wload(q + 3)
    a("s_barrier")
    xload(S_AX)
    wload(11)
    a("s_waitcnt vmcnt(6)\ns_barrier")
    a("s_barrier")
    wload(12)
    a("s_barrier")
    wload(13)
    a("s_waitcnt vmcnt(12)\ns_barrier")
    wload(14)
    a("s_waitcnt vmcnt(12)\ns_barrier")
    wload(15)
    a("s_waitcnt vmcnt(12)\ns_barrier")
    a("s_waitcnt vmcnt(6)\ns_barrier")
    a("s_waitcnt vmcnt(0)\ns_barrier")
    a("s_barrier")

ACCQ, ACCK, ACCV = 16, 32, 48
FR = [64, 80]
XA, XC, WA = 96, 100, 104

def gemm_setup():
    a(f"""
    s_and_b32 s52, s51, 1
    s_lshr_b32 s53, s51, 1
    v_and_b32 v2, 31, v1
    v_lshrrev_b32 v3, 5, v1
    v_and_b32 v4, 15, v1
    s_lshl_b32 s50, s52, 15
    v_lshlrev_b32 v5, 10, v2
    v_add_u32 v5, s50, v5
    """)
    for ss in range(4):
        a(f"""
        v_add_u32 v6, {2*ss}, v3
        v_xor_b32 v6, v6, v4
        v_lshlrev_b32 v6, 4, v6
        v_add_u32 v{XA+ss}, v5, v6
        """)
    a(f"""
    v_mul_u32_u24 v6, 3072, v3
    v_lshrrev_b32 v7, 2, v4
    v_lshlrev_b32 v8, 7, v7
    v_add_u32 v6, v6, v8
    v_lshrrev_b32 v7, 1, v7
    v_xor_b32 v7, s53, v7
    v_lshlrev_b32 v7, 6, v7
    v_add_u32 v6, v6, v7
    v_and_b32 v7, 16, v1
    v_lshlrev_b32 v7, 1, v7
    v_add_u32 v6, v6, v7
    v_and_b32 v7, 3, v1
    v_lshlrev_b32 v7, 3, v7
    v_add_u32 v6, v6, v7
    v_add_u32 v{WA}, {RING}, v6
    v_add_u32 v{WA+1}, {RING+2*CH}, v6
    """)

def gemm_main(q0, vtrans):
    def setx(c):
        a(f"s_add_u32 s50, s{ROT}, {c}\ns_and_b32 s50, s50, 7\ns_lshl_b32 s50, s50, 7")
        for ss in range(4):
            a(f"v_xor_b32 v{XC+ss}, s50, v{XA+ss}")
    def reads(q, ss, f):
        slot = q & 3
        base = WA + (slot >> 1)
        off = (slot & 1) * CH + ss * 6144
        a(f"ds_read_b128 {vr(f,4)}, v{XC+ss}")
        for p in range(3):
            a(f"ds_read_b64_tr_b16 {vr(f+4+4*p,2)}, v{base} offset:{off+p*1024}")
            a(f"ds_read_b64_tr_b16 {vr(f+6+4*p,2)}, v{base} offset:{off+p*1024+512}")
    def mfmas(f, first):
        c = lambda r: "0" if first else vr(r, 16)
        a(f"{MF} {vr(ACCQ,16)}, {vr(f+4,4)}, {vr(f,4)}, {c(ACCQ)}")
        a(f"{MF} {vr(ACCK,16)}, {vr(f+8,4)}, {vr(f,4)}, {c(ACCK)}")
        if vtrans:
            a(f"{MF} {vr(ACCV,16)}, {vr(f,4)}, {vr(f+12,4)}, {c(ACCV)}")
        else:
            a(f"{MF} {vr(ACCV,16)}, {vr(f+12,4)}, {vr(f,4)}, {c(ACCV)}")
    setx(0)
    a("s_barrier")
    reads(q0, 0, FR[0])
    n = 0
    for c in range(8):
        q = q0 + c
        for ss in range(4):
            f = FR[n & 1]; fn = FR[(n + 1) & 1]
            if ss < 3:
                reads(q, ss + 1, fn)
                a("s_waitcnt lgkmcnt(7)")
            else:
                a("s_waitcnt lgkmcnt(0)")
                if c < 7: setx(c + 1)
                a("s_barrier")
                if c < 7: reads(q + 1, 0, fn)
            mfmas(f, n == 0)
            n += 1

def b_epilogue():
    a(f"""
    s_lshl_b32 s54, s6, 1
    s_add_u32 s54, s54, s52
    s_lshl_b32 s55, s7, 2
    s_lshl_b32 s56, s53, 1
    s_add_u32 s55, s55, s56
    s_lshl_b32 s56, s55, 16
    s_lshl_b32 s57, s54, 10
    s_add_u32 s56, s56, s57
    s_add_u32 s57, s56, 65536
    s_lshl_b32 s58, s55, 17
    s_lshl_b32 s59, s54, 11
    s_add_u32 s58, s58, s59
    s_add_u32 s58, s58, {WS_KV}
    s_add_u32 s59, s58, 131072
    v_lshlrev_b32 v2, 4, v1
    v_and_b32 v3, 16, v1
    v_lshlrev_b32 v3, 13, v3
    v_lshrrev_b32 v4, 5, v1
    v_lshlrev_b32 v4, 8, v4
    v_add_u32 v3, v3, v4
    v_and_b32 v4, 15, v1
    v_lshlrev_b32 v4, 4, v4
    v_add_u32 v3, v3, v4
    s_mov_b32 s60, {f2u(QSCALE)}
    s_nop 3
    """)
    for i in range(8): a(f"v_cvt_pk_bf16_f32 v{64+i}, v{ACCK+2*i}, v{ACCK+2*i+1}")
    a(f"buffer_store_dwordx4 v[64:67], v2, {srd(S_WS)}, s58 offen sc1")
    a(f"buffer_store_dwordx4 v[68:71], v2, {srd(S_WS)}, s59 offen sc1")
    for i in range(8): a(f"v_cvt_pk_bf16_f32 v{72+i}, v{ACCV+2*i}, v{ACCV+2*i+1}")
    a(f"buffer_store_dwordx4 v[72:75], v3, {srd(S_WS)}, s58 offen offset:1024 sc1")
    a(f"buffer_store_dwordx4 v[76:79], v3, {srd(S_WS)}, s58 offen offset:1536 sc1")
    for i in range(8): a(f"v_cvt_pk_bf16_f32 v{80+i}, v{ACCQ+2*i}, v{ACCQ+2*i+1}")
    for i in range(8):
        a(f"v_lshlrev_b32 v{ACCQ+2*i}, 16, v{80+i}\nv_and_b32 v{ACCQ+2*i+1}, 0xffff0000, v{80+i}")
    for i in range(16): a(f"v_mul_f32 v{ACCQ+i}, s60, v{ACCQ+i}")
    for i in range(8): a(f"v_cvt_pk_bf16_f32 v{80+i}, v{ACCQ+2*i}, v{ACCQ+2*i+1}")
    a(f"buffer_store_dwordx4 v[80:83], v2, {srd(S_WS)}, s56 offen sc1")
    a(f"buffer_store_dwordx4 v[84:87], v2, {srd(S_WS)}, s57 offen sc1")

def b_flag():
    a(f"""
    s_lshl_b32 s56, s7, 1
    s_add_u32 s56, s56, s53
    s_lshl_b32 s56, s56, 8
    s_lshl_b32 s57, s54, 2
    s_add_u32 s56, s56, s57
    s_add_u32 s56, s56, {FB1}
    s_waitcnt vmcnt(0)
    """)
    set_flag(56, 2, 3)

def a_local():
    Q8, K8, V8 = 64, 72, 80
    KB = 88
    LG = 144
    PLO, PHI, OACC = 16, 24, 32
    a(f"""
    s_lshl_b32 s54, s6, 1
    s_add_u32 s54, s54, s52
    s_lshl_b32 s55, s7, 1
    s_add_u32 s55, s55, s53
    s_lshl_b32 s56, s54, 4
    s_add_u32 s56, s56, s55
    s_mul_i32 s57, s51, {AW}
    s_add_u32 s57, s57, {AREG}
    v_and_b32 v2, 31, v1
    v_lshrrev_b32 v3, 5, v1
    v_mul_u32_u24 v4, 80, v2
    v_mul_u32_u24 v5, 3840, v3
    v_add_u32 v4, v4, v5
    v_add_u32 v4, s57, v4
    v_and_b32 v5, 15, v1
    v_lshlrev_b32 v5, 6, v5
    v_lshlrev_b32 v6, 10, v3
    v_add_u32 v5, v5, v6
    s_lshl_b32 s58, s56, 11
    s_add_u32 s58, s58, {WS_HALO}
    """)
    for dst, acc in ((K8, ACCK), (V8, ACCV), (Q8, ACCQ)):
        for i in range(8): a(f"v_cvt_pk_bf16_f32 v{dst+i}, v{acc+2*i}, v{acc+2*i+1}")
    for dst in (K8, V8, Q8):
        a("s_nop 0")
        for t in range(4): a(f"v_permlane32_swap_b32 v{dst+t}, v{dst+4+t}")
    a(f"s_mov_b64 exec, s[{MHI}:{MHI+1}]")
    for i in range(4): a(f"buffer_store_dwordx4 {vr(K8+4*i,4)}, v5, {srd(S_WS)}, s58 offen offset:{16*i} sc1")
    a("s_mov_b64 exec, -1")
    for i in range(4): a(f"ds_write_b128 v4, {vr(K8+4*i,4)} offset:{1280+16*i}")
    a(f"s_lshl_b32 s59, s56, 2\ns_add_u32 s59, s59, {HF}\ns_waitcnt vmcnt(0)")
    set_flag(59, 6, 7)
    LZ = a.newlabel("hz"); LD = a.newlabel("hd")
    a(f"s_cmp_eq_u32 s54, 0\ns_cbranch_scc1 {LZ}")
    a(f"s_sub_u32 s59, s59, 64\ns_sub_u32 s58, s58, {16*2048}\nv_mov_b32 v7, 0")
    poll(7, 59, 6)
    a(f"s_mov_b64 exec, s[{MLO}:{MLO+1}]")
    for i in range(4): a(f"buffer_load_dwordx4 {vr(KB+4*i,4)}, v5, {srd(S_WS)}, s58 offen offset:{16*i} sc1")
    a(f"s_waitcnt vmcnt(0)\ns_branch {LD}")
    a.label(LZ)
    a(f"s_mov_b64 exec, s[{MLO}:{MLO+1}]")
    for i in range(16): a(f"v_mov_b32 v{KB+i}, 0")
    a.label(LD)
    for i in range(4): a(f"ds_write_b128 v4, {vr(KB+4*i,4)} offset:{16*i}")
    a("s_mov_b64 exec, -1\ns_waitcnt lgkmcnt(0)")
    for w in range(1, 8):
        a(f"ds_read_b128 {vr(KB+8*(w-1),4)}, v4 offset:{1280-160*w}")
        a(f"ds_read_b128 {vr(KB+8*(w-1)+4,4)}, v4 offset:{1280-160*w+16}")
    kreg = lambda w, i: (K8 + i) if w == 0 else (KB + 8 * (w - 1) + i)
    for i in range(8): a(f"v_dot2_f32_bf16 v{LG}, v{Q8+i}, v{kreg(0,i)}, {'0' if i==0 else f'v{LG}'}")
    for w in range(1, 8):
        a(f"s_waitcnt lgkmcnt({2*(7-w)})")
        for i in range(8): a(f"v_dot2_f32_bf16 v{LG+w}, v{Q8+i}, v{kreg(w,i)}, {'0' if i==0 else f'v{LG+w}'}")
    for w in range(1, 8):
        a(f"ds_read_b128 {vr(KB+8*(w-1),4)}, v4 offset:{1280-160*w+32}")
        a(f"ds_read_b128 {vr(KB+8*(w-1)+4,4)}, v4 offset:{1280-160*w+48}")
    for i in range(4): a(f"v_cvt_pk_bf16_f32 v{152+i}, v{LG+2*i}, v{LG+2*i+1}")
    for i in range(4): a(f"v_lshlrev_b32 v{LG+2*i}, 16, v{152+i}\nv_and_b32 v{LG+2*i+1}, 0xffff0000, v{152+i}")
    LM = a.newlabel("nomask")
    a(f"s_cmp_lg_u32 s54, 0\ns_cbranch_scc1 {LM}\nv_mov_b32 v6, 0xf149f2ca")
    for w in range(1, 8):
        a(f"v_cmp_gt_u32 vcc, {2*w}, v2\ns_nop 1\nv_cndmask_b32 v{LG+w}, v{LG+w}, v6, vcc")
    a.label(LM)
    a(f"""
    v_max3_f32 v6, v{LG}, v{LG+1}, v{LG+2}
    v_max3_f32 v7, v{LG+3}, v{LG+4}, v{LG+5}
    v_max3_f32 v6, v6, v{LG+6}, v{LG+7}
    v_max_f32 v6, v6, v7
    s_mov_b32 s60, {f2u(QSCALE)}
    """)
    for w in range(8): a(f"v_sub_f32 v{LG+w}, v{LG+w}, v6")
    for w in range(8): a(f"v_mul_f32 v{LG+w}, s60, v{LG+w}")
    for w in range(8): a(f"v_exp_f32 v{LG+w}, v{LG+w}")
    a(f"""
    v_add_f32 v6, v{LG}, v{LG+1}
    v_add_f32 v7, v{LG+2}, v{LG+3}
    v_add_f32 v8, v{LG+4}, v{LG+5}
    v_add_f32 v9, v{LG+6}, v{LG+7}
    v_add_f32 v6, v6, v7
    v_add_f32 v8, v8, v9
    v_add_f32 v6, v6, v8
    v_rcp_f32 v6, v6
    s_nop 0
    """)
    for w in range(8): a(f"v_mul_f32 v{LG+w}, v{LG+w}, v6")
    for w in range(8): a(f"v_cvt_pk_bf16_f32 v{PLO+w}, v{LG+w}, 0\nv_cvt_pk_bf16_f32 v{PHI+w}, 0, v{LG+w}")
    vreg = lambda w, i: (V8 + i) if w == 0 else (KB + 8 * (w - 1) + i)
    for w in range(8):
        if w >= 1: a(f"s_waitcnt lgkmcnt({2*(7-w)})")
        for i in range(8):
            c0 = "0" if w == 0 else f"v{OACC+2*i}"
            c1 = "0" if w == 0 else f"v{OACC+2*i+1}"
            a(f"v_dot2_f32_bf16 v{OACC+2*i}, v{vreg(w,i)}, v{PLO+w}, {c0}")
            a(f"v_dot2_f32_bf16 v{OACC+2*i+1}, v{vreg(w,i)}, v{PHI+w}, {c1}")
    a(f"""
    s_lshl_b32 s58, s54, 15
    s_lshl_b32 s59, s55, 11
    s_add_u32 s58, s58, s59
    s_add_u32 s58, s58, {WS_OA}
    v_lshlrev_b32 v5, 4, v2
    v_lshlrev_b32 v6, 10, v3
    v_add_u32 v5, v5, v6
    """)
    for i in range(8): a(f"v_cvt_pk_bf16_f32 v{64+i}, v{OACC+2*i}, v{OACC+2*i+1}")
    a(f"buffer_store_dwordx4 v[64:67], v5, {srd(S_WS)}, s58 offen sc1")
    a(f"buffer_store_dwordx4 v[68:71], v5, {srd(S_WS)}, s58 offen offset:512 sc1")
    a(f"""
    s_lshl_b32 s59, s54, 7
    s_lshl_b32 s60, s55, 2
    s_add_u32 s59, s59, s60
    s_add_u32 s59, s59, {FA}
    s_waitcnt vmcnt(0)
    """)
    set_flag(59, 6, 7)

WO = 40
OACC2 = 16
def op_setup():
    a(f"""
    s_lshl_b32 s61, s4, 3
    s_and_b32 s50, s5, 7
    s_add_u32 s61, s61, s50
    s_lshr_b32 s62, s5, 3
    s_lshl_b32 s62, s62, 8
    s_lshl_b32 s50, s51, 6
    s_add_u32 s62, s62, s50
    s_mul_i32 s63, s51, {AW}
    s_add_u32 s63, s63, {AREG}
    v_lshrrev_b32 v14, 2, v1
    v_lshlrev_b32 v14, 10, v14
    v_and_b32 v15, 3, v1
    v_lshlrev_b32 v15, 4, v15
    v_add_u32 v14, v14, v15
    v_lshrrev_b32 v15, 5, v1
    v_lshlrev_b32 v15, 8, v15
    v_and_b32 v2, 12, v1
    v_lshlrev_b32 v2, 4, v2
    v_add_u32 v15, v15, v2
    v_and_b32 v2, 16, v1
    v_lshlrev_b32 v2, 1, v2
    v_add_u32 v15, v15, v2
    v_and_b32 v2, 3, v1
    v_lshlrev_b32 v2, 3, v2
    v_add_u32 v15, v15, v2
    v_add_u32 v15, s63, v15
    """)

def wo_preload(swo):
    NS = 7
    def dma(s):
        a(f"s_add_u32 m0, s63, {(s%NS)*1024}\ns_add_u32 s50, s62, {s*16384}")
        a(f"buffer_load_dwordx4 v14, {srd(swo)}, s50 offen lds")
    for s in range(NS): dma(s)
    for s in range(32):
        a(f"s_waitcnt vmcnt({min(NS-1, 31-s)})")
        a(f"ds_read_b64_tr_b16 {vr(WO+4*s,2)}, v15 offset:{(s%NS)*1024}")
        a(f"ds_read_b64_tr_b16 {vr(WO+4*s+2,2)}, v15 offset:{(s%NS)*1024+512}")
        if s + NS < 32:
            a("s_waitcnt lgkmcnt(0)")
            dma(s + NS)
    a("s_waitcnt lgkmcnt(0)")

def op_store(colbase):
    a(f"""
    v_and_b32 v2, 31, v1
    v_lshlrev_b32 v2, 11, v2
    v_lshrrev_b32 v3, 5, v1
    v_lshlrev_b32 v3, 4, v3
    v_add_u32 v2, v2, v3
    s_lshl_b32 s50, s61, 16
    s_add_u32 s50, s50, s62
    s_add_u32 s50, s50, {colbase*2}
    s_nop 7
    """)
    for i in range(8): a(f"v_cvt_pk_bf16_f32 v{32+i}, v{OACC2+2*i}, v{OACC2+2*i+1}")
    a("s_nop 1")
    a("v_permlane32_swap_b32 v32, v34\nv_permlane32_swap_b32 v33, v35\nv_permlane32_swap_b32 v36, v38\nv_permlane32_swap_b32 v37, v39")
    a(f"buffer_store_dwordx4 v[32:35], v2, {srd(S_OUT)}, s50 offen")
    a(f"buffer_store_dwordx4 v[36:39], v2, {srd(S_OUT)}, s50 offen offset:32")

def outproj_direct(wsoff, flagoff, nfl, colbase, do_poll):
    if do_poll:
        a(f"v_and_b32 v2, {nfl-1}, v1\nv_lshlrev_b32 v2, 2, v2\ns_lshl_b32 s56, s61, 7\ns_add_u32 s56, s56, {flagoff}")
        poll(2, 56, 3)
    bufs = [2, 6, 10, 32, 36]
    a(f"v_lshlrev_b32 v0, 4, v1\ns_lshl_b32 s56, s61, 15\ns_add_u32 s56, s56, {wsoff}")
    def ld(s):
        a(f"s_add_u32 s57, s56, {(s>>2)*4096}")
        a(f"buffer_load_dwordx4 {vr(bufs[s%5],4)}, v0, {srd(S_WS)}, s57 offen offset:{(s&3)*1024} sc1")
    for s in range(5): ld(s)
    for s in range(32):
        a(f"s_waitcnt vmcnt({min(4, 31-s)})")
        a(f"{MF} {vr(OACC2,16)}, {vr(WO+4*s,4)}, {vr(bufs[s%5],4)}, {'0' if s==0 else vr(OACC2,16)}")
        if s + 5 < 32: ld(s + 5)
    op_store(colbase)

def outproj_lds(wsoff, flagoff, nfl, colbase, do_poll):
    a("s_barrier")
    if do_poll:
        a(f"v_and_b32 v2, {nfl-1}, v1\nv_lshlrev_b32 v2, 2, v2\ns_lshl_b32 s56, s61, 7\ns_add_u32 s56, s56, {flagoff}")
        poll(2, 56, 3)
    a(f"""
    v_lshlrev_b32 v0, 4, v1
    s_lshl_b32 s56, s61, 15
    s_add_u32 s56, s56, {wsoff}
    s_lshl_b32 s57, s51, 13
    s_add_u32 s56, s56, s57
    s_add_u32 s58, s56, 4096
    s_mov_b32 m0, s57
    s_nop 0
    """)
    for i in range(4): a(f"buffer_load_dwordx4 v0, {srd(S_WS)}, s56 offen offset:{i*1024} sc1 lds")
    a("s_add_u32 m0, s57, 4096\ns_nop 0")
    for i in range(4): a(f"buffer_load_dwordx4 v0, {srd(S_WS)}, s58 offen offset:{i*1024} sc1 lds")
    a("s_waitcnt vmcnt(0)\ns_barrier")
    bufs = [2, 6, 10, 32, 36]
    for s in range(5): a(f"ds_read_b128 {vr(bufs[s],4)}, v0 offset:{s*1024}")
    for s in range(32):
        a(f"s_waitcnt lgkmcnt({min(4, 31-s)})")
        a(f"{MF} {vr(OACC2,16)}, {vr(WO+4*s,4)}, {vr(bufs[s%5],4)}, {'0' if s==0 else vr(OACC2,16)}")
        if s + 5 < 32: a(f"ds_read_b128 {vr(bufs[s%5],4)}, v0 offset:{(s+5)*1024}")
    op_store(colbase)

QF, NEGM, OA_, SB = 2, 16, 32, [48, 64]
PA, PB = 80, 84
KF = [96, 100]
VF = [[104, 108], [112, 116]]
VKA, VVA, VSY = 6, 7, 8

def lds_sync(idx, vmc):
    L = a.newlabel("sy"); D = a.newlabel("syd")
    a(f"""
    s_waitcnt vmcnt({vmc})
    s_mov_b64 exec, 1
    ds_add_u32 v{VSY}, v9 offset:{4*idx}
    s_mov_b64 exec, -1
    s_mov_b32 s50, 0x40000
    """)
    a.label(L)
    a(f"""
    ds_read_b32 v10, v{VSY} offset:{4*idx}
    s_waitcnt lgkmcnt(0)
    v_readfirstlane_b32 s57, v10
    s_nop 1
    s_cmp_ge_u32 s57, 8
    s_cbranch_scc1 {D}
    s_sub_u32 s50, s50, 1
    s_cmp_lg_u32 s50, 0
    s_cbranch_scc1 {L}
    """)
    a.label(D)

def rowmax_to_negm(S, run=None):
    a(f"v_max3_f32 v11, v{S}, v{S+1}, v{S+2}")
    for i in range(3, 15, 2): a(f"v_max3_f32 v11, v11, v{S+i}, v{S+i+1}")
    a(f"v_max_f32 v11, v11, v{S+15}")

def finish_negm():
    a(f"""
    v_mov_b32 v12, v11
    s_nop 1
    v_permlane32_swap_b32 v11, v12
    s_nop 1
    v_max_f32 v11, v11, v12
    v_sub_f32 v11, 0, v11
    """)
    for i in range(16): a(f"v_mov_b32 v{NEGM+i}, v11")

def attention(fused):
    a(f"""
    s_lshl_b32 s58, s4, 2
    s_and_b32 s50, s5, 3
    s_add_u32 s58, s58, s50
    s_lshr_b32 s59, s5, 2
    s_lshl_b32 s59, s59, 3
    s_add_u32 s59, s59, s3
    v_lshlrev_b32 v{VKA}, 4, v1
    v_lshrrev_b32 v{VVA}, 5, v1
    v_lshlrev_b32 v{VVA}, 8, v{VVA}
    v_and_b32 v9, 15, v1
    v_lshlrev_b32 v9, 4, v9
    v_add_u32 v{VVA}, v{VVA}, v9
    v_add_u32 v{VVA}, 1024, v{VVA}
    v_mov_b32 v{VSY}, {SYNC}
    v_mov_b32 v9, 1
    """)
    if fused:
        a(f"v_lshlrev_b32 v10, 2, v1\ns_lshr_b32 s56, s58, 1\ns_lshl_b32 s56, s56, 8\ns_add_u32 s56, s56, {FB1}")
        poll(10, 56, 11)
    a(f"""
    s_lshl_b32 s56, s58, 16
    s_lshl_b32 s57, s59, 10
    s_add_u32 s56, s56, s57
    buffer_load_dwordx4 {vr(QF,4)}, v{VKA}, {srd(S_WS)}, s56 offen sc1
    s_lshl_b32 s56, s58, 17
    s_lshl_b32 s57, s3, 10
    s_add_u32 s56, s56, s57
    s_add_u32 s56, s56, {WS_KV}
    """)
    for i in range(16):
        a(f"s_add_u32 m0, s57, {i*8192}\ns_add_u32 s60, s56, {i*8192}")
        a(f"buffer_load_dwordx4 v{VKA}, {srd(S_WS)}, s60 offen sc1 lds")
    for s in range(2):
        for u in range(2):
            for i in range(4): a(f"v_mov_b32 v{VF[s][u]+i}, 0x3f803f80")
    lds_sync(0, 14)
    a(f"ds_read_b128 {vr(KF[0],4)}, v{VKA}\ns_waitcnt lgkmcnt(0)")
    a(f"{MF} {vr(SB[0],16)}, {vr(KF[0],4)}, {vr(QF,4)}, 0")
    a.nop(12)
    rowmax_to_negm(SB[0])
    finish_negm()
    a("s_mov_b32 s61, 0")
    LRE = a.newlabel("att_restart")
    a.label(LRE)
    a(f"""
    v_mov_b32 v13, v{VKA}
    v_mov_b32 v14, v{VVA}
    ds_read_b128 {vr(KF[0],4)}, v13
    ds_read_b128 {vr(KF[1],4)}, v13 offset:2048
    s_mov_b64 exec, s[{MLO}:{MLO+1}]
    ds_read_b128 {vr(VF[0][0],4)}, v14
    ds_read_b128 {vr(VF[0][1],4)}, v14 offset:512
    s_mov_b64 exec, -1
    """)
    for i in range(16): a(f"v_mov_b32 v{OA_+i}, 0")
    for i in range(4): a(f"v_mov_b32 v{PB+i}, 0")
    a(f"s_waitcnt lgkmcnt(3)\n{MF} {vr(SB[0],16)}, {vr(KF[0],4)}, {vr(QF,4)}, {vr(NEGM,16)}")
    a("s_mov_b32 s62, 0")
    a.nop(6)
    LOOP = a.newlabel("att_loop"); LS1 = a.newlabel("att_s1"); LS2 = a.newlabel("att_s2"); LB = a.newlabel("att_body")
    a(".p2align 6")
    a.label(LOOP)
    a(f"s_cmp_eq_u32 s62, 1\ns_cbranch_scc1 {LS1}\ns_cmp_eq_u32 s62, 7\ns_cbranch_scc1 {LS2}")
    a.label(LB)
    for tl in range(4):
        b = tl & 1
        S = SB[b]; Sn = SB[b ^ 1]
        e = lambda i: f"v_exp_f32 v{S+i}, v{S+i}"
        c = lambda i: f"v_cvt_pk_bf16_f32 v{PA+i}, v{S+2*i}, v{S+2*i+1}"
        a("s_waitcnt lgkmcnt(2)")
        a(f"{MF} {vr(Sn,16)}, {vr(KF[b^1],4)}, {vr(QF,4)}, {vr(NEGM,16)}")
        a(f"ds_read_b128 {vr(KF[b],4)}, v13 offset:{(tl+2)*2048}")
        for i in range(4): a(e(i))
        a(f"{MF} {vr(OA_,16)}, {vr(VF[b^1][1],4)}, {vr(PB,4)}, {vr(OA_,16)}")
        a(f"s_mov_b64 exec, s[{MLO}:{MLO+1}]")
        a(f"ds_read_b128 {vr(VF[b^1][0],4)}, v14 offset:{(tl+1)*2048}")
        a(f"ds_read_b128 {vr(VF[b^1][1],4)}, v14 offset:{(tl+1)*2048+512}")
        a("s_mov_b64 exec, -1")
        for x in [c(0), e(4), e(5), c(1), e(6), e(7), c(2), e(8), c(3), e(9), e(10)]: a(x)
        a("s_waitcnt lgkmcnt(3)")
        a(f"{MF} {vr(OA_,16)}, {vr(VF[b][0],4)}, {vr(PA,4)}, {vr(OA_,16)}")
        for x in [e(11), c(4), e(12), e(13), c(5), e(14), e(15), c(6), c(7)]: a(x)
    a(f"""
    v_add_u32 v13, 8192, v13
    v_add_u32 v14, 8192, v14
    s_add_u32 s62, s62, 1
    s_cmp_lt_u32 s62, 16
    s_cbranch_scc1 {LOOP}
    {MF} {vr(OA_,16)}, {vr(VF[1][1],4)}, {vr(PB,4)}, {vr(OA_,16)}
    s_waitcnt lgkmcnt(0)
    """)
    a.nop(12)
    LOK = a.newlabel("att_ok"); LFB = a.newlabel("att_fb")
    a(f"s_cmp_lg_u32 s61, 0\ns_cbranch_scc1 {LOK}")
    a(f"v_mov_b32 v10, {f2u(2.0**60)}")
    a(f"v_fma_f32 v11, v{OA_}, 0, v{OA_+8}")
    for i in range(1, 8): a(f"v_fma_f32 v11, v{OA_+i}, 0, v11")
    a(f"v_cmp_nlt_f32 vcc, v11, v10")
    a(f"s_nop 1\ns_cmp_eq_u64 vcc, 0\ns_cbranch_scc0 {LFB}")
    a.label(LOK)
    a(f"v_rcp_f32 v10, v{OA_+8}\ns_lshl_b32 s56, s59, 15\ns_lshl_b32 s57, s58, 10\ns_add_u32 s56, s56, s57\ns_add_u32 s56, s56, {WS_OB}")
    for i in range(8): a(f"v_mul_f32 v{OA_+i}, v{OA_+i}, v10")
    for i in range(4): a(f"v_cvt_pk_bf16_f32 v{PA+i}, v{OA_+2*i}, v{OA_+2*i+1}")
    a(f"buffer_store_dwordx4 {vr(PA,4)}, v{VKA}, {srd(S_WS)}, s56 offen sc1")
    if fused:
        a(f"s_lshl_b32 s56, s59, 7\ns_lshl_b32 s57, s58, 2\ns_add_u32 s56, s56, s57\ns_add_u32 s56, s56, {FB2}\ns_waitcnt vmcnt(0)")
        set_flag(56, 10, 11)
    a("s_endpgm")
    a.label(LS1)
    lds_sync(1, 8)
    a(f"s_branch {LB}")
    a.label(LS2)
    lds_sync(2, 0)
    a(f"s_branch {LB}")
    a.label(LFB)
    LM = a.newlabel("att_mx")
    a(f"v_mov_b32 v13, v{VKA}\nv_mov_b32 v15, 0xff800000\ns_mov_b32 s62, 0")
    a.label(LM)
    a(f"ds_read_b128 {vr(KF[0],4)}, v13\ns_waitcnt lgkmcnt(0)")
    a(f"{MF} {vr(SB[0],16)}, {vr(KF[0],4)}, {vr(QF,4)}, 0")
    a.nop(12)
    rowmax_to_negm(SB[0])
    a(f"""
    v_max_f32 v15, v15, v11
    v_add_u32 v13, 2048, v13
    s_add_u32 s62, s62, 1
    s_cmp_lt_u32 s62, 64
    s_cbranch_scc1 {LM}
    v_mov_b32 v11, v15
    """)
    finish_negm()
    a(f"s_mov_b32 s61, 1\ns_branch {LRE}")

def zero_sync():
    L = a.newlabel("zs")
    a(f"""
    s_cmp_lg_u32 s3, 4
    s_cbranch_scc1 {L}
    v_mov_b32 v2, {SYNC}
    v_mov_b32 v3, 0
    v_mov_b32 v4, 0
    ds_write_b64 v2, v[3:4]
    ds_write_b64 v2, v[3:4] offset:8
    s_waitcnt lgkmcnt(0)
    """.replace("v[3:4]", "v[4:5]").replace("v_mov_b32 v3, 0", "v_mov_b32 v5, 0"))
    a.label(L)
    a("s_barrier")

def phase1(kname, fused):
    LG1 = a.newlabel("g1"); LG2 = a.newlabel("g2")
    publish_tag()
    a(f"s_cmp_ge_u32 s3, 8\ns_cbranch_scc1 {LG2}\ns_cmp_ge_u32 s3, 4\ns_cbranch_scc1 {LG1}")
    a("s_mov_b32 s51, s3")
    gemm_setup()
    get_tag()
    gemm_main(0, True)
    b_epilogue()
    a("s_barrier")
    if fused: b_flag()
    for _ in range(9, 17): a("s_barrier")
    return LG1, LG2

kernels = []
def exit_label(k):
    a.label(f"L_exit_{k}")
    a("s_endpgm")

a('.amdgcn_target "amdgcn-amd-amdhsa--gfx950"\n.text')
if MODE == "3k":
    k1, k2, k3 = "qkv_kernel", "att_kernel", "outp_kernel"
    kernels = [k1, k2, k3]
    prologue(k1)
    LG1, LG2 = phase1(k1, False)
    a("s_endpgm")
    a.label(LG1)
    loader()
    a("s_endpgm")
    a.label(LG2)
    a("s_sub_u32 s51, s3, 8")
    gemm_setup()
    get_tag()
    for _ in range(9): a("s_barrier")
    gemm_main(8, False)
    a.nop(12)
    a_local()
    a("s_endpgm")
    exit_label(k1)
    prologue(k2)
    zero_sync()
    LA = a.newlabel("aw")
    a(f"s_cmp_ge_u32 s3, 8\ns_cbranch_scc1 {LA}")
    attention(False)
    a.label(LA)
    a("s_sub_u32 s51, s3, 8")
    op_setup()
    wo_preload(S_AWO)
    outproj_direct(WS_OA, FA, 16, 0, False)
    a("s_endpgm")
    exit_label(k2)
    prologue(k3)
    a(f"s_cmp_lt_u32 s3, 8\ns_cbranch_scc1 L_exit_{k3}\ns_sub_u32 s51, s3, 8")
    op_setup()
    wo_preload(S_BWO)
    outproj_lds(WS_OB, FB2, 32, 512, False)
    a("s_endpgm")
    exit_label(k3)
else:
    k = NAME + "_kernel"
    kernels = [k]
    prologue(k)
    LG1, LG2 = phase1(k, True)
    LATT = a.newlabel("att")
    zero_sync()
    a(f"s_branch {LATT}")
    a.label(LG1)
    loader()
    zero_sync()
    get_tag()
    a.label(LATT)
    attention(True)
    a.label(LG2)
    a("s_sub_u32 s51, s3, 8")
    gemm_setup()
    get_tag()
    for _ in range(9): a("s_barrier")
    gemm_main(8, False)
    zero_sync()
    a.nop(8)
    a_local()
    op_setup()
    wo_preload(S_AWO)
    outproj_direct(WS_OA, FA, 16, 0, True)
    wo_preload(S_BWO)
    outproj_lds(WS_OB, FB2, 32, 512, True)
    a("s_endpgm")
    exit_label(k)

hdr = open(f"cdna_kernels/{NAME}.s.ref").read().split("; Override")[0]
if MODE == "3k":
    hdr += "".join(f"; @launch kernel={k} grid=(256,1,1) block=(768,1,1) lds={LDS_BYTES}\n" for k in kernels)
else:
    hdr += f"; @launch grid=(256,1,1) block=(768,1,1) lds={LDS_BYTES}\n"
tail = '.section .rodata,"a"\n'
for k in kernels:
    tail += f""".p2align 6
.amdhsa_kernel {k}
  .amdhsa_next_free_vgpr 168
  .amdhsa_next_free_sgpr 96
  .amdhsa_accum_offset 168
  .amdhsa_group_segment_fixed_size 0
  .amdhsa_kernarg_size 72
  .amdhsa_user_sgpr_count 2
  .amdhsa_user_sgpr_kernarg_segment_ptr 1
  .amdhsa_system_sgpr_workgroup_id_x 1
.end_amdhsa_kernel
"""
probs = check(a.lines)
for p in probs: print(p)
open(OUT, "w").write(hdr + a.text() + tail)
print("wrote", OUT, len(a.lines), "lines;", len(probs), "hazards")
```

```python
kernels = {}
def K(name, body, vgpr=128, agpr=0):
    kernels[name] = dict(body=body, vgpr=vgpr, agpr=agpr)
PRO = """
s_load_dwordx4 s[4:7], s[0:1], 0
s_load_dwordx2 s[8:9], s[0:1], 16
s_load_dword s10, s[0:1], 24
s_memrealtime s[94:95]
s_memtime s[90:91]
v_lshrrev_b32 v2, 6, v0
v_and_b32 v1, 63, v0
s_nop 1
v_readfirstlane_b32 s3, v2
s_waitcnt lgkmcnt(0)
; s[4:5]=out s[6:7]=in s[8:9]=ws s10=wpb s3=wave s2=wg v1=lane
s_mov_b32 s12, s6
s_mov_b32 s13, s7
s_mov_b32 s14, 0x4000000
s_mov_b32 s15, 0x20000
s_mov_b32 s16, s8
s_mov_b32 s17, s9
s_mov_b32 s18, 0x10000000
s_mov_b32 s19, 0x20000
""".strip().split("\n")
EPI = """
s_memtime s[92:93]
s_memrealtime s[96:97]
s_waitcnt lgkmcnt(0) vmcnt(0)
s_sub_u32 s92, s92, s90
s_mul_i32 s11, s2, s10
s_add_u32 s11, s11, s3
s_lshl_b32 s11, s11, 4
v_mov_b32 v4, s92
v_mov_b32 v5, s94
v_mov_b32 v6, s96
v_mov_b32 v7, 0
v_mov_b32 v8, s11
s_mov_b64 exec, 1
global_store_dwordx4 v8, v[4:7], s[4:5]
s_waitcnt vmcnt(0)
s_endpgm
""".strip().split("\n")
def emit(fn, runs):
    o=['.amdgcn_target "amdgcn-amd-amdhsa--gfx950"','.text']
    for name,k in kernels.items():
        o+= [f".globl {name}", ".p2align 8", f".type {name},@function", f"{name}:"]
        o+= PRO + k['body'] + EPI
    o.append('.section .rodata,"a"')
    for name,k in kernels.items():
        vgpr=k['vgpr']
        o+= [".p2align 6", f".amdhsa_kernel {name}", f".amdhsa_next_free_vgpr {vgpr+k['agpr']}", ".amdhsa_next_free_sgpr 100",
             f".amdhsa_accum_offset {vgpr}", ".amdhsa_group_segment_fixed_size 0", ".amdhsa_kernarg_size 32",
             ".amdhsa_user_sgpr_count 2", ".amdhsa_user_sgpr_kernarg_segment_ptr 1", ".amdhsa_system_sgpr_workgroup_id_x 1",
             ".end_amdhsa_kernel"]
    o+= [".amdgpu_metadata","---","amdhsa.version: [1, 2]","amdhsa.kernels:"]
    for name,k in kernels.items():
        o+= [f"  - .name: {name}", f"    .symbol: {name}.kd", "    .kernarg_segment_size: 32", "    .kernarg_segment_align: 8",
             "    .group_segment_fixed_size: 0","    .private_segment_fixed_size: 0","    .wavefront_size: 64","    .sgpr_count: 100",
             f"    .vgpr_count: {k['vgpr']+k['agpr']}", "    .max_flat_workgroup_size: 1024", "    .args:",
             "      - {.name: kernargs, .size: 32, .offset: 0, .value_kind: by_value}"]
    o+= ["...",".end_amdgpu_metadata"]
    open(fn+".s","w").write("\n".join(o)+"\n")
    sh=""
    for mode in ("warm","cold"):
        cmd=f"echo == {mode}; timeout 100 ./mb_host2 {fn}.co {mode}"
        for (n,g,b,l) in runs: cmd+=f" {n} {g} {b} {l}"
        sh+=cmd+"\n"
    open(fn+".sh","w").write(sh)
    args="".join(f" {n} {g} {b} {l}" for (n,g,b,l) in runs)
    open(fn+"_3.sh","w").write(f"timeout 200 ./mb_host3 {fn}.co $1 $2 {args}\n")
```

```python
import sys
sys.path.insert(0,'gen')
from mblib2 import *
from asmlib import vr, check
MF="v_mfma_f32_32x32x16_bf16"
runs=[]
def att(name, nq=1, ntiles=64, nw=8, prio=None, zero=False, sched=0, noexec=False, unroll=4, drop=()):
    b=[]
    A=b.append
    A("v_lshlrev_b32 v6, 4, v1")
    per=128//nw
    A(f"s_mul_i32 s20, s3, {per*1024}")
    for i in range(per):
        A(f"s_add_u32 m0, s20, {i*1024}"); A(f"s_add_u32 s21, s20, {i*1024}")
        A("buffer_load_dwordx4 v6, s[12:15], s21 offen lds")
    A("s_lshl_b32 s21, s3, 11"); A("s_add_u32 s21, s21, 0x100000")
    QF=[2,120]; NEG=[16,124]; OA=[32,140]; SB=[48,64]; PA,PB=80,84; KF=[96,100]; VF=[[104,108],[112,116]]
    A(f"buffer_load_dwordx4 {vr(QF[0],4)}, v6, s[12:15], s21 offen")
    A(f"buffer_load_dwordx4 {vr(QF[1],4)}, v6, s[12:15], s21 offen offset:1024")
    A("v_lshrrev_b32 v7, 5, v1"); A("v_lshlrev_b32 v7, 8, v7"); A("v_and_b32 v9, 15, v1"); A("v_lshlrev_b32 v9, 4, v9"); A("v_add_u32 v7, v7, v9"); A("v_add_u32 v7, 1024, v7")
    A("s_mov_b32 s46, 0xffff"); A("s_mov_b32 s47, 0xffff")
    for s in range(2):
        for u in range(2):
            for i in range(4): A(f"v_mov_b32 v{VF[s][u]+i}, {'0' if zero else '0x3f803f80'}")
    if zero:
        A("s_mov_b32 exec_lo, 0x110000"); A("s_mov_b32 exec_hi, 0x110000")
        for s in range(2):
            for u in range(2):
                for i in range(4): A(f"v_mov_b32 v{VF[s][u]+i}, 0x3f803f80")
        A("s_mov_b64 exec, -1")
    for q in range(2):
        for i in range(16): A(f"v_mov_b32 v{NEG[q]+i}, -8.0" if False else f"v_mov_b32 v{NEG[q]+i}, 0xc1000000")
        for i in range(16): A(f"v_mov_b32 v{OA[q]+i}, 0")
    for i in range(8): A(f"v_mov_b32 v{PA+i}, 0")
    if ntiles==32:
        A("s_and_b32 s22, s3, 4"); A("s_lshl_b32 s22, s22, 14"); A("v_add_u32 v13, s22, v6"); A("v_add_u32 v14, s22, v7")
    else:
        A("v_mov_b32 v13, v6"); A("v_mov_b32 v14, v7")
    A("s_waitcnt vmcnt(0)"); A("s_barrier")
    if prio=="young": A("s_cmp_lt_u32 s3, 4"); A(f"s_cbranch_scc1 Lp_{name}"); A("s_setprio 1"); A(f"Lp_{name}:")
    A("s_memrealtime s[94:95]"); A("s_memtime s[90:91]"); A("s_waitcnt lgkmcnt(0)")
    def mask(on):
        if noexec: return
        A("s_mov_b64 exec, s[46:47]" if on else "s_mov_b64 exec, -1")
    A(f"ds_read_b128 {vr(KF[0],4)}, v13"); A(f"ds_read_b128 {vr(KF[1],4)}, v13 offset:2048")
    mask(1); A(f"ds_read_b128 {vr(VF[0][0],4)}, v14"); A(f"ds_read_b128 {vr(VF[0][1],4)}, v14 offset:512"); mask(0)
    A("s_waitcnt lgkmcnt(3)"); A(f"{MF} {vr(SB[0],16)}, {vr(KF[0],4)}, {vr(QF[0],4)}, {vr(NEG[0],16)}")
    A("s_mov_b32 s62, 0"); A("s_nop 7"); A("s_nop 3"); A(".p2align 6"); A(f"L_{name}:")
    step=0
    for tl in range(unroll):
        kb=tl&1
        for q in range(nq):
            bb=step&1; S=SB[bb]; Sn=SB[bb^1]
            e=lambda i: f"v_exp_f32 v{S+i}, v{S+i}"
            c=lambda i: f"v_cvt_pk_bf16_f32 v{PA+i}, v{S+2*i}, v{S+2*i+1}"
            last=(q==nq-1); first=(q==0)
            nqi = 0 if last else q+1
            nk = KF[kb^1] if last else KF[kb]
            pq = (nq-1) if first else q-1
            pv = VF[kb^1] if first else VF[kb]
            if sched==0:
                if last: A("s_waitcnt lgkmcnt(2)" if nq==1 else "s_waitcnt lgkmcnt(2)")
                A(f"{MF} {vr(Sn,16)}, {vr(nk,4)}, {vr(QF[nqi],4)}, {vr(NEG[nqi],16)}")
                if last: A(f"ds_read_b128 {vr(KF[kb],4)}, v13 offset:{(tl+2)*2048}")
                for i in range(4): A(e(i))
                A(f"{MF} {vr(OA[pq],16)}, {vr(pv[1],4)}, {vr(PB,4)}, {vr(OA[pq],16)}")
                if first:
                    mask(1)
                    A(f"ds_read_b128 {vr(VF[kb^1][0],4)}, v14 offset:{(tl+1)*2048}")
                    A(f"ds_read_b128 {vr(VF[kb^1][1],4)}, v14 offset:{(tl+1)*2048+512}")
                    mask(0)
                for x in [c(0),e(4),e(5),c(1),e(6),e(7),c(2),e(8),c(3),e(9),e(10)]: A(x)
                if first: A("s_waitcnt lgkmcnt(3)" if nq==1 else "s_waitcnt lgkmcnt(3)")
                A(f"{MF} {vr(OA[q],16)}, {vr(VF[kb][0],4)}, {vr(PA,4)}, {vr(OA[q],16)}")
                for x in [e(11),c(4),e(12),e(13),c(5),e(14),e(15),c(6),c(7)]: A(x)
            elif sched==1:
                A(f"{MF} {vr(Sn,16)}, {vr(nk,4)}, {vr(QF[nqi],4)}, {vr(NEG[nqi],16)}")
                A(e(0))
                if last: A(f"ds_read_b128 {vr(KF[kb],4)}, v13 offset:{(tl+2)*2048}")
                for i in range(1,4): A(e(i))
                A(f"{MF} {vr(OA[pq],16)}, {vr(pv[1],4)}, {vr(PB,4)}, {vr(OA[pq],16)}")
                A(c(0)); A(e(4))
                if first:
                    mask(1)
                    A(f"ds_read_b128 {vr(VF[kb^1][0],4)}, v14 offset:{(tl+1)*2048}")
                    A(f"ds_read_b128 {vr(VF[kb^1][1],4)}, v14 offset:{(tl+1)*2048+512}")
                    mask(0)
                for x in [e(5),c(1),e(6),e(7),c(2),e(8),c(3),e(9),e(10)]: A(x)
                if first: A("s_waitcnt lgkmcnt(3)")
                A(f"{MF} {vr(OA[q],16)}, {vr(VF[kb][0],4)}, {vr(PA,4)}, {vr(OA[q],16)}")
                for x in [e(11),c(4),e(12),e(13),c(5),e(14),e(15)]: A(x)
                nlast = (nq==1) or (q==nq-2)
                if nlast: A("s_waitcnt lgkmcnt(2)")
                A(c(6)); A(c(7))
            step+=1
    A(f"v_add_u32 v13, {unroll*2048}, v13"); A(f"v_add_u32 v14, {unroll*2048}, v14")
    A("s_add_u32 s62, s62, 1"); A(f"s_cmp_lt_u32 s62, {ntiles//unroll}"); A(f"s_cbranch_scc1 L_{name}")
    A("s_nop 7")
    def keep(l):
        if "S" in drop and l.startswith(MF) and ("v[48:63], v[" in l[:50] or "v[64:79], v[" in l[:50]): return False
        if "PV" in drop and l.startswith(MF) and not ("v[48:63], v[" in l[:50] or "v[64:79], v[" in l[:50]): return False
        if "exp" in drop and l.startswith("v_exp"): return False
        if "cvt" in drop and l.startswith("v_cvt"): return False
        if "ds" in drop and l.startswith("ds_read"): return False
        return True
    b=[l for l in b if keep(l)]
    if "C0" in drop:
        b=[(l.rsplit(",",1)[0]+", 0" if (l.startswith(MF) and ("v[48:63], v[" in l[:50] or "v[64:79], v[" in l[:50])) else l) for l in b]
    if "expnop" in drop:
        b=[("v_exp_f32 v10, v11" if l.startswith("v_exp") else l) for l in b]
    import re
    def remap(l, ranges):
        def f(m):
            a,bb=int(m.group(1)),int(m.group(2))
            for lo,hi,nb in ranges:
                if lo<=a and bb<=hi: return f"a[{a-lo+nb}:{bb-lo+nb}]"
            return m.group(0)
        def g(m):
            a=int(m.group(1))
            for lo,hi,nb in ranges:
                if lo<=a<=hi: return f"v_accvgpr_write_b32 a{a-lo+nb},"
            return m.group(0)
        l=re.sub(r"v\[(\d+):(\d+)\]",f,l)
        l=re.sub(r"v_mov_b32 v(\d+),",g,l)
        return l
    rg=[]
    if "aO" in drop: rg+=[(32,47,0),(140,155,16)]
    if "aN" in drop: rg+=[(16,31,32),(124,139,48)]
    if "aKV" in drop: rg+=[(96,119,64),(2,5,88),(120,123,92)]
    if rg:
        b2=[]
        for l in b:
            l2=remap(l,rg)
            if l2.startswith("v_accvgpr_write") and "0x" in l2:
                lit=l2.split(",")[1].strip()
                b2.append(f"v_mov_b32 v10, {lit}"); l2=l2.split(",")[0]+", v10"
            b2.append(l2)
        b=b2
        K(name,b,vgpr=160,agpr=96); runs.append((name,256,nw*64,160000)); return
    K(name,b,vgpr=168); runs.append((name,256,nw*64,160000))


kw=dict(nq=2,ntiles=32,zero=True)
att("base",**kw)
att("aO",drop=("aO",),**kw)

att("aall",drop=("aO","aKV"),**kw)
att("aKV",drop=("aKV",),**kw)
att("u8",unroll=8,**kw)
att("u2",unroll=2,**kw)
emit("mb10",runs)
```

```python
import sys, math
from asmlib import *

NAME = "concat_heads__sliding_local_dilated__softmax_full_mha__prompt"
MODE = sys.argv[1] if len(sys.argv) > 1 else "3k"
OUT = sys.argv[2] if len(sys.argv) > 2 else f"cdna_kernels/{NAME}.s"

WS_Q = 0
WS_KV = 2 << 20
WS_OB = 6 << 20
WS_OA = 8 << 20
WS_HALO = 10 << 20
WS_FLAG = 12 << 20
FB1 = WS_FLAG
FB2 = WS_FLAG + 4096
FA = WS_FLAG + 16384
HF = WS_FLAG + 32768
WS_SIZE = 16 << 20

SLOT = 40960
ALB = 98304
AREG = 131072
AW = 7680
SYNC = AREG + 4 * AW
LDS_BYTES = 163840

S_X, S_W, S_AWO, S_BWO, S_OUT, S_DBG, S_WS = 8, 12, 16, 20, 24, 28, 32
def srd(b): return f"s[{b}:{b+3}]"
TYPE = 36
TAG = 37
ROT = 38
MLO = 40
MHI = 42
QSCALE = 0.25 * math.log2(math.e)
import struct
def f2u(x): return struct.unpack("<I", struct.pack("<f", x))[0]
MF = "v_mfma_f32_32x32x16_bf16"
POLL_LIMIT = 30000

a = Asm()
STAMP = "stamp" in sys.argv
WS_STAMP = 14 << 20
def stamp(i):
    if STAMP:
        a(f"s_memrealtime s[82:83]\ns_waitcnt lgkmcnt(0)\ns_mov_b32 s{84+i}, s82")
def cstamp(i, first):
    if STAMP:
        a("s_memtime s[82:83]\ns_waitcnt lgkmcnt(0)")
        if first: a(f"s_mov_b32 s{84+i}, s82")
        else: a(f"s_sub_u32 s{84+i}, s82, s{84+i}")
def dump_stamps():
    if STAMP:
        stamp(11)
        a(f"s_mul_i32 s82, s2, 12\ns_add_u32 s82, s82, s3\ns_lshl_b32 s82, s82, 6\ns_add_u32 s82, s82, {WS_STAMP}\nv_mov_b32 v1, 0\ns_mov_b64 exec, 1")
        for i in range(12): a(f"v_mov_b32 v{2+i}, s{84+i}")
        for i in range(3): a(f"buffer_store_dwordx4 v[{2+4*i}:{5+4*i}], v1, {srd(S_WS)}, s82 offen offset:{16*i}")

def prologue(kname):
    a(f".globl {kname}\n.p2align 8\n.type {kname},@function")
    a.label(kname)
    a(f"""
    s_cmp_ge_u32 s2, 256
    s_cbranch_scc1 L_exit_{kname}
    s_load_dwordx16 s[64:79], s[0:1], 0
    s_load_dwordx2 s[80:81], s[0:1], 64
    v_lshrrev_b32 v2, 6, v0
    v_and_b32 v1, 63, v0
    s_and_b32 s4, s2, 7
    v_readfirstlane_b32 s3, v2
    s_lshr_b32 s5, s2, 3
    s_and_b32 s6, s4, 3
    s_lshl_b32 s6, s6, 2
    s_and_b32 s50, s5, 3
    s_add_u32 s6, s6, s50
    s_and_b32 s7, s4, 4
    s_lshr_b32 s50, s5, 2
    s_and_b32 s50, s50, 3
    s_add_u32 s7, s7, s50
    s_lshl_b32 s50, s7, 1
    s_add_u32 s{ROT}, s6, s50
    s_and_b32 s{ROT}, s{ROT}, 7
    s_lshr_b32 s{TYPE}, s5, 4
    s_mov_b32 s{MLO}, 0xffff
    s_mov_b32 s{MLO+1}, 0xffff
    s_mov_b32 s{MHI}, 0xffff0000
    s_mov_b32 s{MHI+1}, 0xffff0000
    """)
    sizes = {S_X: 2 << 20, S_W: 512 * 1536 * 2, S_AWO: 512 * 512 * 2, S_BWO: 512 * 512 * 2, S_OUT: 4 << 20, S_DBG: 256, S_WS: WS_SIZE}
    for b, sz in sizes.items():
        a(f"s_mov_b32 s{b+2}, {sz}\ns_mov_b32 s{b+3}, 0x20000")
    a(f"s_cmp_eq_u32 s{TYPE}, 0\ns_waitcnt lgkmcnt(0)")
    a(f"s_cselect_b64 s[{S_X}:{S_X+1}], s[70:71], s[64:65]\ns_cselect_b64 s[{S_W}:{S_W+1}], s[72:73], s[66:67]")
    for b, i in ((S_AWO, 2), (S_BWO, 5), (S_OUT, 6), (S_DBG, 7), (S_WS, 8)):
        a(f"s_mov_b64 s[{b}:{b+1}], s[{64+2*i}:{65+2*i}]")
    if STAMP:
        for i in range(12): a(f"s_mov_b32 s{84+i}, 0")
    stamp(0)

def publish_tag():
    L = a.newlabel("notag")
    a(f"""
    s_or_b32 s50, s2, s3
    s_cmp_lg_u32 s50, 0
    s_cbranch_scc1 {L}
    s_memrealtime s[52:53]
    v_mov_b32 v3, 0
    s_waitcnt lgkmcnt(0)
    s_or_b32 s52, s52, 1
    v_mov_b32 v2, s52
    s_mov_b64 exec, 1
    buffer_store_dword v2, v3, {srd(S_DBG)}, 0 offen sc1
    s_mov_b64 exec, -1
    """)
    a.label(L)

def get_tag(vt=2, vz=3):
    L = a.newlabel("gt"); D = a.newlabel("gtd")
    a(f"v_mov_b32 v{vz}, 0\ns_mov_b32 s50, {POLL_LIMIT}")
    a.label(L)
    a(f"""
    buffer_load_dword v{vt}, v{vz}, {srd(S_DBG)}, 0 offen sc1
    s_waitcnt vmcnt(0)
    v_readfirstlane_b32 s{TAG}, v{vt}
    s_nop 1
    s_cmp_lg_u32 s{TAG}, 0
    s_cbranch_scc1 {D}
    s_sleep 1
    s_sub_u32 s50, s50, 1
    s_cmp_lg_u32 s50, 0
    s_cbranch_scc1 {L}
    """)
    a.label(D)

def poll(voff, soff, vt, slp=1):
    L = a.newlabel("pl"); D = a.newlabel("pld")
    a(f"s_mov_b32 s50, {POLL_LIMIT}")
    a.label(L)
    a(f"""
    buffer_load_dword v{vt}, v{voff}, {srd(S_WS)}, s{soff} offen sc1
    s_waitcnt vmcnt(0)
    v_cmp_ne_u32 vcc, s{TAG}, v{vt}
    s_nop 1
    s_cmp_eq_u64 vcc, 0
    s_cbranch_scc1 {D}
    s_sleep {slp}
    s_sub_u32 s50, s50, 1
    s_cmp_lg_u32 s50, 0
    s_cbranch_scc1 {L}
    """)
    a.label(D)

def lds_wait(vaddr, off, vt):
    L = a.newlabel("lw"); D = a.newlabel("lwd")
    a(f"s_mov_b32 s50, 0x80000")
    a.label(L)
    a(f"""
    ds_read_b32 v{vt}, v{vaddr} offset:{off}
    s_waitcnt lgkmcnt(0)
    v_cmp_ne_u32 vcc, s{TAG}, v{vt}
    s_nop 1
    s_cmp_eq_u64 vcc, 0
    s_cbranch_scc1 {D}
    s_sleep 1
    s_sub_u32 s50, s50, 1
    s_cmp_lg_u32 s50, 0
    s_cbranch_scc1 {L}
    """)
    a.label(D)

def lds_set(saddr, off, vt, va):
    a(f"""
    v_mov_b32 v{vt}, s{TAG}
    v_mov_b32 v{va}, s{saddr}
    s_mov_b64 exec, 1
    ds_write_b32 v{va}, v{vt} offset:{off}
    s_mov_b64 exec, -1
    """)

def set_flag(soff, vt, vz):
    a(f"""
    v_mov_b32 v{vt}, s{TAG}
    v_mov_b32 v{vz}, 0
    s_mov_b64 exec, 1
    buffer_store_dword v{vt}, v{vz}, {srd(S_WS)}, s{soff} offen sc1
    s_mov_b64 exec, -1
    """)

def loader():
    a(f"""
    v_lshrrev_b32 v14, 3, v1
    v_and_b32 v15, 7, v1
    v_lshlrev_b32 v16, 1, v14
    v_and_b32 v16, 4, v16
    v_xor_b32 v16, v15, v16
    v_lshlrev_b32 v16, 4, v16
    v_mul_u32_u24 v13, 3072, v14
    v_add_u32 v13, v13, v16
    s_and_b32 s50, s51, 1
    s_lshl_b32 s50, s50, 2
    v_lshrrev_b32 v16, 4, v1
    v_add_u32 v16, s50, v16
    v_xor_b32 v15, v15, v16
    v_lshlrev_b32 v15, 4, v15
    v_lshlrev_b32 v14, 10, v14
    v_add_u32 v12, v14, v15
    s_lshl_b32 s52, s51, 10
    s_lshl_b32 s53, s6, 17
    s_lshl_b32 s50, s51, 13
    s_add_u32 s53, s53, s50
    s_mul_i32 s54, s51, 24576
    s_lshl_b32 s55, s7, 7
    s_add_u32 s54, s54, s55
    s_mul_i32 s55, s51, 3072
    s_add_u32 s55, s55, 16384
    v_mov_b32 v17, 0
    """)
    def cload(c):
        sl = (c & 3) * SLOT
        a(f"""
        s_add_u32 s56, s{ROT}, {c}
        s_and_b32 s56, s56, 7
        s_lshl_b32 s57, s56, 7
        s_add_u32 s57, s57, s53
        s_mul_i32 s56, s56, {64*3072}
        s_add_u32 s56, s56, s54
        """)
        for i in range(4):
            a(f"s_add_u32 m0, s52, {sl + i*4096}\ns_add_u32 s58, s57, {i*32768}")
            a(f"buffer_load_dwordx4 v12, {srd(S_X)}, s58 offen lds")
        for hh in range(2):
            a(f"s_add_u32 m0, s55, {sl + hh*4*3072}\ns_add_u32 s58, s56, {hh*32*3072}")
            for p in range(3):
                a(f"buffer_load_dwordx4 v13, {srd(S_W)}, s58 offen offset:{p*1024} lds")
    dl = [x for x in sys.argv if x.startswith("delay=")]
    if dl:
        LD = a.newlabel("nodelay")
        a(f"s_cmp_eq_u32 s{TYPE}, 0\ns_cbranch_scc1 {LD}")
        n = int(dl[0][6:])
        while n > 0:
            a(f"s_sleep {min(n,127)}"); n -= 127
        a.label(LD)
    cload(0); cload(1)
    stamp(1)
    for c in range(8):
        extra = 1 if c in (4,) else 0
        if "nobar" in sys.argv and c > 0: continue
        a(f"s_waitcnt vmcnt({10 + extra if c < 7 else 0})\ns_barrier")
        if c + 2 < 8 and "x3" not in sys.argv: cload(c + 2)
        if c == 3: a(f"buffer_load_dword v16, v17, {srd(S_DBG)}, 0 offen sc1")
    LT = a.newlabel("tagok")
    a(f"v_readfirstlane_b32 s{TAG}, v16\ns_nop 1\ns_cmp_lg_u32 s{TAG}, 0\ns_cbranch_scc1 {LT}")
    get_tag()
    a.label(LT)

ACCQ, ACCK, ACCV = 16, 32, 48
FR = [64, 80, 96]
XA, WA = 112, 120

def gemm_setup():
    a(f"""
    s_lshr_b32 s52, s3, 1
    s_and_b32 s53, s3, 1
    v_and_b32 v2, 31, v1
    v_lshrrev_b32 v3, 5, v1
    v_and_b32 v4, 15, v1
    s_lshl_b32 s50, s52, 12
    v_lshlrev_b32 v5, 7, v2
    v_add_u32 v5, s50, v5
    v_lshrrev_b32 v7, 1, v4
    """)
    for ss in range(4):
        a(f"""
        v_add_u32 v6, {2*ss}, v3
        v_xor_b32 v6, v6, v7
        v_lshlrev_b32 v6, 4, v6
        v_add_u32 v{XA+ss}, v5, v6
        v_add_u32 v{XA+4+ss}, {2*SLOT}, v{XA+ss}
        """)
    a(f"""
    v_mul_u32_u24 v6, 3072, v3
    v_lshrrev_b32 v7, 2, v4
    v_lshlrev_b32 v8, 7, v7
    v_add_u32 v6, v6, v8
    v_lshrrev_b32 v7, 1, v7
    v_xor_b32 v7, s53, v7
    v_lshlrev_b32 v7, 6, v7
    v_add_u32 v6, v6, v7
    v_and_b32 v7, 16, v1
    v_lshlrev_b32 v7, 1, v7
    v_add_u32 v6, v6, v7
    v_and_b32 v7, 3, v1
    v_lshlrev_b32 v7, 3, v7
    v_add_u32 v6, v6, v7
    v_add_u32 v{WA}, 16384, v6
    v_add_u32 v{WA+1}, {16384+2*SLOT}, v6
    v_mov_b32 v10, 0
    """)

def gemm_main(vtrans):
    def reads(n, f):
        c = n >> 2; ss = n & 3
        slot = c & 3
        hi = slot >> 1
        off = (slot & 1) * SLOT
        r = [f"ds_read_b128 {vr(f,4)}, v{XA+4*hi+ss} offset:{off}"]
        for p in range(3):
            r.append(f"ds_read_b64_tr_b16 {vr(f+4+4*p,2)}, v{WA+hi} offset:{off+ss*6144+p*1024}")
            r.append(f"ds_read_b64_tr_b16 {vr(f+6+4*p,2)}, v{WA+hi} offset:{off+ss*6144+p*1024+512}")
        return r
    def mfmas(f, first):
        c = lambda r: "0" if first else vr(r, 16)
        m = [f"{MF} {vr(ACCQ,16)}, {vr(f+4,4)}, {vr(f,4)}, {c(ACCQ)}",
             f"{MF} {vr(ACCK,16)}, {vr(f+8,4)}, {vr(f,4)}, {c(ACCK)}"]
        if vtrans:
            m.append(f"{MF} {vr(ACCV,16)}, {vr(f,4)}, {vr(f+12,4)}, {c(ACCV)}")
        else:
            m.append(f"{MF} {vr(ACCV,16)}, {vr(f+12,4)}, {vr(f,4)}, {c(ACCV)}")
        return m
    a("s_barrier")
    stamp(1)
    cstamp(9, True)
    for x in reads(0, FR[0]) + reads(1, FR[1]): a(x)
    for n in range(32):
        n2 = n + 2
        m = mfmas(FR[n % 3], n == 0)
        a(f"s_waitcnt lgkmcnt({7 if n < 31 else 0})")
        if n == 31: a("s_barrier")
        r = reads(n2, FR[n2 % 3]) if n2 < 32 else []
        if "x1" in sys.argv or "x2" in sys.argv: m = ["s_nop 0"] * 3
        if "x2" in sys.argv: r = []
        a(m[0])
        if n == 12: a(f"buffer_load_dword v9, v10, {srd(S_DBG)}, 0 offen sc1")
        if n2 < 32 and (n2 & 3) == 0 and "nobar" not in sys.argv: a("s_barrier")
        for x in r[0:3]: a(x)
        a(m[1])
        pc = [x for x in sys.argv if x.startswith("pace=")]
        if pc: a(f"s_nop {int(pc[0][5:])}")
        for x in r[3:5]: a(x)
        a(m[2])
        for x in r[5:7]: a(x)

def tag_from(v):
    LT = a.newlabel("tagok")
    a(f"s_waitcnt vmcnt(0)\nv_readfirstlane_b32 s{TAG}, v{v}\ns_nop 1\ns_cmp_lg_u32 s{TAG}, 0\ns_cbranch_scc1 {LT}")
    get_tag(9, 10)
    a.label(LT)

def b_epilogue():
    a(f"""
    s_lshl_b32 s54, s6, 2
    s_add_u32 s54, s54, s52
    s_lshl_b32 s55, s7, 2
    s_lshl_b32 s56, s53, 1
    s_add_u32 s55, s55, s56
    s_lshl_b32 s56, s55, 16
    s_lshl_b32 s57, s54, 10
    s_add_u32 s56, s56, s57
    s_add_u32 s57, s56, 65536
    s_lshl_b32 s58, s55, 17
    s_lshl_b32 s59, s54, 11
    s_add_u32 s58, s58, s59
    s_add_u32 s58, s58, {WS_KV}
    s_add_u32 s59, s58, 131072
    v_lshlrev_b32 v2, 4, v1
    v_and_b32 v3, 16, v1
    v_lshlrev_b32 v3, 13, v3
    v_lshrrev_b32 v4, 5, v1
    v_lshlrev_b32 v4, 8, v4
    v_add_u32 v3, v3, v4
    v_and_b32 v4, 15, v1
    v_lshlrev_b32 v4, 4, v4
    v_add_u32 v3, v3, v4
    s_mov_b32 s60, {f2u(QSCALE)}
    s_nop 3
    """)
    for i in range(8): a(f"v_cvt_pk_bf16_f32 v{64+i}, v{ACCK+2*i}, v{ACCK+2*i+1}")
    a(f"buffer_store_dwordx4 v[64:67], v2, {srd(S_WS)}, s58 offen sc1")
    a(f"buffer_store_dwordx4 v[68:71], v2, {srd(S_WS)}, s59 offen sc1")
    for i in range(8): a(f"v_cvt_pk_bf16_f32 v{72+i}, v{ACCV+2*i}, v{ACCV+2*i+1}")
    a(f"buffer_store_dwordx4 v[72:75], v3, {srd(S_WS)}, s58 offen offset:1024 sc1")
    a(f"buffer_store_dwordx4 v[76:79], v3, {srd(S_WS)}, s58 offen offset:1536 sc1")
    for i in range(8): a(f"v_cvt_pk_bf16_f32 v{80+i}, v{ACCQ+2*i}, v{ACCQ+2*i+1}")
    for i in range(8):
        a(f"v_lshlrev_b32 v{ACCQ+2*i}, 16, v{80+i}\nv_and_b32 v{ACCQ+2*i+1}, 0xffff0000, v{80+i}")
    for i in range(16): a(f"v_mul_f32 v{ACCQ+i}, s60, v{ACCQ+i}")
    for i in range(8): a(f"v_cvt_pk_bf16_f32 v{80+i}, v{ACCQ+2*i}, v{ACCQ+2*i+1}")
    a(f"buffer_store_dwordx4 v[80:83], v2, {srd(S_WS)}, s56 offen sc1")
    a(f"buffer_store_dwordx4 v[84:87], v2, {srd(S_WS)}, s57 offen sc1")

def b_flag():
    a(f"""
    s_lshl_b32 s56, s7, 1
    s_add_u32 s56, s56, s53
    s_lshl_b32 s56, s56, 8
    s_lshl_b32 s57, s54, 2
    s_add_u32 s56, s56, s57
    s_add_u32 s56, s56, {FB1}
    s_waitcnt vmcnt(0)
    """)
    set_flag(56, 2, 3)

def a_local():
    Q8, K8, V8 = 64, 72, 80
    KB = 88
    LG = 144
    PLO, PHI, OACC = 16, 24, 32
    a(f"""
    s_lshl_b32 s54, s6, 2
    s_add_u32 s54, s54, s52
    s_lshl_b32 s55, s7, 1
    s_add_u32 s55, s55, s53
    s_lshl_b32 s56, s6, 4
    s_add_u32 s56, s56, s55
    s_mul_i32 s57, s53, 23040
    s_mul_i32 s58, s52, 2560
    s_add_u32 s57, s57, s58
    s_add_u32 s57, s57, {ALB}
    v_and_b32 v2, 31, v1
    v_lshrrev_b32 v3, 5, v1
    v_mul_u32_u24 v4, 80, v2
    v_mul_u32_u24 v5, 11520, v3
    v_add_u32 v4, v4, v5
    v_add_u32 v4, s57, v4
    v_and_b32 v5, 15, v1
    v_lshlrev_b32 v5, 4, v5
    v_lshlrev_b32 v6, 8, v3
    v_add_u32 v5, v5, v6
    s_lshl_b32 s58, s56, 11
    s_add_u32 s58, s58, {WS_HALO}
    s_lshl_b32 s59, s56, 2
    s_add_u32 s59, s59, {HF}
    """)
    for dst, acc in ((K8, ACCK), (V8, ACCV)):
        for i in range(8): a(f"v_cvt_pk_bf16_f32 v{dst+i}, v{acc+2*i}, v{acc+2*i+1}")
    for dst in (K8, V8):
        a("s_nop 0")
        for t in range(4): a(f"v_permlane32_swap_b32 v{dst+t}, v{dst+4+t}")
    for i in range(4): a(f"ds_write_b128 v4, {vr(K8+4*i,4)} offset:{1280+16*i}")
    LNH = a.newlabel("nohs")
    a(f"s_cmp_lg_u32 s52, 3\ns_cbranch_scc1 {LNH}")
    a(f"s_mov_b64 exec, s[{MHI}:{MHI+1}]")
    for i in range(4): a(f"buffer_store_dwordx4 {vr(K8+4*i,4)}, v5, {srd(S_WS)}, s58 offen offset:{512*i} sc1")
    a("s_mov_b64 exec, -1")
    a.label(LNH)
    for i in range(8): a(f"v_cvt_pk_bf16_f32 v{Q8+i}, v{ACCQ+2*i}, v{ACCQ+2*i+1}")
    a("s_nop 0")
    for t in range(4): a(f"v_permlane32_swap_b32 v{Q8+t}, v{Q8+4+t}")
    a("s_waitcnt lgkmcnt(0)\ns_barrier")
    LZ = a.newlabel("hz"); LD = a.newlabel("hd"); LN0 = a.newlabel("nohl")
    a(f"s_cmp_lg_u32 s52, 0\ns_cbranch_scc1 {LN0}")
    a(f"s_cmp_eq_u32 s54, 0\ns_cbranch_scc1 {LZ}")
    a(f"s_sub_u32 s60, s59, 64\ns_sub_u32 s58, s58, {16*2048}\nv_mov_b32 v7, 0")
    poll(7, 60, 6, 8)
    a(f"s_mov_b64 exec, s[{MLO}:{MLO+1}]")
    for i in range(4): a(f"buffer_load_dwordx4 {vr(KB+4*i,4)}, v5, {srd(S_WS)}, s58 offen offset:{512*i} sc1")
    a(f"s_waitcnt vmcnt(0)\ns_branch {LD}")
    a.label(LZ)
    a(f"s_mov_b64 exec, s[{MLO}:{MLO+1}]")
    for i in range(16): a(f"v_mov_b32 v{KB+i}, 0")
    a.label(LD)
    for i in range(4): a(f"ds_write_b128 v4, {vr(KB+4*i,4)} offset:{16*i}")
    a("s_mov_b64 exec, -1\ns_waitcnt lgkmcnt(0)")
    a.label(LN0)
    for w in range(1, 8):
        a(f"ds_read_b128 {vr(KB+8*(w-1),4)}, v4 offset:{1280-160*w}")
        a(f"ds_read_b128 {vr(KB+8*(w-1)+4,4)}, v4 offset:{1280-160*w+16}")
    kreg = lambda w, i: (K8 + i) if w == 0 else (KB + 8 * (w - 1) + i)
    for i in range(8): a(f"v_dot2_f32_bf16 v{LG}, v{Q8+i}, v{kreg(0,i)}, {'0' if i==0 else f'v{LG}'}")
    for w in range(1, 8):
        a(f"s_waitcnt lgkmcnt({2*(7-w)})")
        for i in range(8): a(f"v_dot2_f32_bf16 v{LG+w}, v{Q8+i}, v{kreg(w,i)}, {'0' if i==0 else f'v{LG+w}'}")
    for w in range(1, 8):
        a(f"ds_read_b128 {vr(KB+8*(w-1),4)}, v4 offset:{1280-160*w+32}")
        a(f"ds_read_b128 {vr(KB+8*(w-1)+4,4)}, v4 offset:{1280-160*w+48}")
    LNF = a.newlabel("nohf")
    a(f"s_cmp_lg_u32 s52, 3\ns_cbranch_scc1 {LNF}\ns_waitcnt vmcnt(0)")
    set_flag(59, 6, 7)
    a.label(LNF)
    for i in range(4): a(f"v_cvt_pk_bf16_f32 v{152+i}, v{LG+2*i}, v{LG+2*i+1}")
    for i in range(4): a(f"v_lshlrev_b32 v{LG+2*i}, 16, v{152+i}\nv_and_b32 v{LG+2*i+1}, 0xffff0000, v{152+i}")
    LM = a.newlabel("nomask")
    a(f"s_cmp_lg_u32 s54, 0\ns_cbranch_scc1 {LM}\nv_mov_b32 v6, 0xf149f2ca")
    for w in range(1, 8):
        a(f"v_cmp_gt_u32 vcc, {2*w}, v2\ns_nop 1\nv_cndmask_b32 v{LG+w}, v{LG+w}, v6, vcc")
    a.label(LM)
    a(f"""
    v_max3_f32 v6, v{LG}, v{LG+1}, v{LG+2}
    v_max3_f32 v7, v{LG+3}, v{LG+4}, v{LG+5}
    v_max3_f32 v6, v6, v{LG+6}, v{LG+7}
    v_max_f32 v6, v6, v7
    s_mov_b32 s60, {f2u(QSCALE)}
    """)
    for w in range(8): a(f"v_sub_f32 v{LG+w}, v{LG+w}, v6")
    for w in range(8): a(f"v_mul_f32 v{LG+w}, s60, v{LG+w}")
    for w in range(8): a(f"v_exp_f32 v{LG+w}, v{LG+w}")
    a(f"""
    v_add_f32 v6, v{LG}, v{LG+1}
    v_add_f32 v7, v{LG+2}, v{LG+3}
    v_add_f32 v8, v{LG+4}, v{LG+5}
    v_add_f32 v9, v{LG+6}, v{LG+7}
    v_add_f32 v6, v6, v7
    v_add_f32 v8, v8, v9
    v_add_f32 v6, v6, v8
    v_rcp_f32 v6, v6
    s_nop 0
    """)
    for w in range(8): a(f"v_mul_f32 v{LG+w}, v{LG+w}, v6")
    for w in range(8): a(f"v_cvt_pk_bf16_f32 v{PLO+w}, v{LG+w}, 0\nv_cvt_pk_bf16_f32 v{PHI+w}, 0, v{LG+w}")
    vreg = lambda w, i: (V8 + i) if w == 0 else (KB + 8 * (w - 1) + i)
    for w in range(8):
        if w >= 1: a(f"s_waitcnt lgkmcnt({2*(7-w)})")
        for i in range(8):
            c0 = "0" if w == 0 else f"v{OACC+2*i}"
            c1 = "0" if w == 0 else f"v{OACC+2*i+1}"
            a(f"v_dot2_f32_bf16 v{OACC+2*i}, v{vreg(w,i)}, v{PLO+w}, {c0}")
            a(f"v_dot2_f32_bf16 v{OACC+2*i+1}, v{vreg(w,i)}, v{PHI+w}, {c1}")
    a(f"s_lshl_b32 s58, s3, 2\ns_add_u32 s58, s58, {SYNC+96}")
    lds_set(58, 0, 6, 7)
    a(f"""
    s_lshl_b32 s58, s54, 15
    s_lshl_b32 s59, s55, 11
    s_add_u32 s58, s58, s59
    s_add_u32 s58, s58, {WS_OA}
    v_lshlrev_b32 v5, 4, v2
    v_lshlrev_b32 v6, 10, v3
    v_add_u32 v5, v5, v6
    """)
    for i in range(8): a(f"v_cvt_pk_bf16_f32 v{64+i}, v{OACC+2*i}, v{OACC+2*i+1}")
    a(f"buffer_store_dwordx4 v[64:67], v5, {srd(S_WS)}, s58 offen sc1")
    a(f"buffer_store_dwordx4 v[68:71], v5, {srd(S_WS)}, s58 offen offset:512 sc1")
    a(f"""
    s_lshl_b32 s59, s54, 7
    s_lshl_b32 s60, s55, 2
    s_add_u32 s59, s59, s60
    s_add_u32 s44, s59, {FA}
    """)

WO = 40
OACC2 = 16
def op_setup():
    a(f"""
    s_lshl_b32 s61, s4, 3
    s_and_b32 s50, s5, 7
    s_add_u32 s61, s61, s50
    s_lshr_b32 s62, s5, 3
    s_lshl_b32 s62, s62, 8
    s_lshl_b32 s50, s51, 6
    s_add_u32 s62, s62, s50
    s_mul_i32 s63, s51, {AW}
    s_add_u32 s63, s63, {AREG}
    v_lshrrev_b32 v14, 2, v1
    v_lshlrev_b32 v14, 10, v14
    v_and_b32 v15, 3, v1
    v_lshlrev_b32 v15, 4, v15
    v_add_u32 v14, v14, v15
    v_lshrrev_b32 v15, 5, v1
    v_lshlrev_b32 v15, 8, v15
    v_and_b32 v2, 12, v1
    v_lshlrev_b32 v2, 4, v2
    v_add_u32 v15, v15, v2
    v_and_b32 v2, 16, v1
    v_lshlrev_b32 v2, 1, v2
    v_add_u32 v15, v15, v2
    v_and_b32 v2, 3, v1
    v_lshlrev_b32 v2, 3, v2
    v_add_u32 v15, v15, v2
    v_add_u32 v15, s63, v15
    """)

def wo_preload(swo):
    NS = 7
    def dma(s):
        a(f"s_add_u32 m0, s63, {(s%NS)*1024}\ns_add_u32 s50, s62, {s*16384}")
        a(f"buffer_load_dwordx4 v14, {srd(swo)}, s50 offen lds")
    for s in range(NS): dma(s)
    for s in range(32):
        a(f"s_waitcnt vmcnt({min(NS-1, 31-s)})")
        a(f"ds_read_b64_tr_b16 {vr(WO+4*s,2)}, v15 offset:{(s%NS)*1024}")
        a(f"ds_read_b64_tr_b16 {vr(WO+4*s+2,2)}, v15 offset:{(s%NS)*1024+512}")
        if s + NS < 32:
            a("s_waitcnt lgkmcnt(0)")
            dma(s + NS)
    a("s_waitcnt lgkmcnt(0)")

def op_store(colbase):
    a(f"""
    v_and_b32 v2, 31, v1
    v_lshlrev_b32 v2, 11, v2
    v_lshrrev_b32 v3, 5, v1
    v_lshlrev_b32 v3, 4, v3
    v_add_u32 v2, v2, v3
    s_lshl_b32 s50, s61, 16
    s_add_u32 s50, s50, s62
    s_add_u32 s50, s50, {colbase*2}
    s_nop 7
    """)
    for i in range(8): a(f"v_cvt_pk_bf16_f32 v{32+i}, v{OACC2+2*i}, v{OACC2+2*i+1}")
    a("s_nop 1")
    a("v_permlane32_swap_b32 v32, v34\nv_permlane32_swap_b32 v33, v35\nv_permlane32_swap_b32 v36, v38\nv_permlane32_swap_b32 v37, v39")
    a(f"buffer_store_dwordx4 v[32:35], v2, {srd(S_OUT)}, s50 offen")
    a(f"buffer_store_dwordx4 v[36:39], v2, {srd(S_OUT)}, s50 offen offset:32")

def outproj_direct(wsoff, flagoff, nfl, colbase, do_poll):
    if do_poll:
        a(f"v_and_b32 v2, {nfl-1}, v1\nv_lshlrev_b32 v2, 2, v2\ns_lshl_b32 s56, s61, 7\ns_add_u32 s56, s56, {flagoff}")
        poll(2, 56, 3, 16)
    stamp(5)
    bufs = [2, 6, 10, 32, 36]
    a(f"v_lshlrev_b32 v0, 4, v1\ns_lshl_b32 s56, s61, 15\ns_add_u32 s56, s56, {wsoff}")
    def ld(s):
        a(f"s_add_u32 s57, s56, {(s>>2)*4096}")
        a(f"buffer_load_dwordx4 {vr(bufs[s%5],4)}, v0, {srd(S_WS)}, s57 offen offset:{(s&3)*1024} sc1")
    for s in range(5): ld(s)
    for s in range(32):
        a(f"s_waitcnt vmcnt({min(4, 31-s)})")
        a(f"{MF} {vr(OACC2,16)}, {vr(WO+4*s,4)}, {vr(bufs[s%5],4)}, {'0' if s==0 else vr(OACC2,16)}")
        if s + 5 < 32: ld(s + 5)
    op_store(colbase)

def outproj_lds(wsoff, flagoff, nfl, colbase, do_poll):
    a("s_barrier")
    stamp(8)
    LNP = a.newlabel("nopoll")
    a(f"s_cmp_lg_u32 s51, 0\ns_cbranch_scc1 {LNP}")
    a(f"v_and_b32 v2, 31, v1\nv_lshlrev_b32 v2, 2, v2\ns_lshl_b32 s56, s61, 7\ns_add_u32 s56, s56, {flagoff}")
    poll(2, 56, 3, 3)
    a.label(LNP)
    a("s_barrier")
    stamp(9)
    a(f"""
    v_lshlrev_b32 v0, 4, v1
    s_lshl_b32 s56, s61, 15
    s_add_u32 s56, s56, {wsoff}
    s_lshl_b32 s57, s51, 13
    s_add_u32 s56, s56, s57
    s_add_u32 s58, s56, 4096
    s_mov_b32 m0, s57
    s_nop 0
    """)
    for i in range(4): a(f"buffer_load_dwordx4 v0, {srd(S_WS)}, s56 offen offset:{i*1024} sc1 lds")
    a("s_add_u32 m0, s57, 4096\ns_nop 0")
    for i in range(4): a(f"buffer_load_dwordx4 v0, {srd(S_WS)}, s58 offen offset:{i*1024} sc1 lds")
    a("s_waitcnt vmcnt(0)\ns_barrier")
    bufs = [2, 6, 10, 32, 36]
    for s in range(5): a(f"ds_read_b128 {vr(bufs[s],4)}, v0 offset:{s*1024}")
    for s in range(32):
        a(f"s_waitcnt lgkmcnt({min(4, 31-s)})")
        a(f"{MF} {vr(OACC2,16)}, {vr(WO+4*s,4)}, {vr(bufs[s%5],4)}, {'0' if s==0 else vr(OACC2,16)}")
        if s + 5 < 32: a(f"ds_read_b128 {vr(bufs[s%5],4)}, v0 offset:{(s+5)*1024}")
    op_store(colbase)

QF, NEG, OA_, SB = [2, 120], [16, 124], [32, 140], [48, 64]
PA, PB = 80, 84
KF = [96, 100]
VF = [[104, 108], [112, 116]]
VKA, VVA, VSY = 6, 7, 8

def att_ids():
    a(f"""
    s_lshl_b32 s58, s4, 2
    s_and_b32 s50, s5, 3
    s_add_u32 s58, s58, s50
    s_lshr_b32 s59, s5, 2
    s_lshl_b32 s59, s59, 3
    s_and_b32 s50, s3, 3
    s_lshl_b32 s50, s50, 1
    s_add_u32 s59, s59, s50
    s_lshr_b32 s60, s3, 2
    v_lshlrev_b32 v{VKA}, 4, v1
    """)

def q_load():
    a(f"""
    s_lshl_b32 s56, s58, 16
    s_lshl_b32 s57, s59, 10
    s_add_u32 s56, s56, s57
    buffer_load_dwordx4 {vr(QF[0],4)}, v{VKA}, {srd(S_WS)}, s56 offen sc1
    buffer_load_dwordx4 {vr(QF[1],4)}, v{VKA}, {srd(S_WS)}, s56 offen offset:1024 sc1
    """)

def kv_dma(vlane16, shead, swave, first_kb, n_per_wave):
    a(f"""
    s_lshl_b32 s56, s{shead}, 17
    s_mul_i32 s57, s{swave}, {n_per_wave*1024}
    s_add_u32 s57, s57, {first_kb*1024}
    s_add_u32 s56, s56, s57
    s_add_u32 s56, s56, {WS_KV}
    """)
    for i in range(n_per_wave):
        if i % 4 == 0:
            a(f"s_add_u32 m0, s57, {i*1024}\ns_add_u32 s55, s56, {i*1024}")
        a(f"buffer_load_dwordx4 v{vlane16}, {srd(S_WS)}, s55 offen offset:{(i%4)*1024} sc1 lds")

def rowmax(S):
    a(f"v_max3_f32 v11, v{S}, v{S+1}, v{S+2}")
    for i in range(3, 15, 2): a(f"v_max3_f32 v11, v11, v{S+i}, v{S+i+1}")
    a(f"v_max_f32 v11, v11, v{S+15}")

def finish_negm(N):
    a(f"""
    v_mov_b32 v12, v11
    s_nop 1
    v_permlane32_swap_b32 v11, v12
    s_nop 1
    v_max_f32 v11, v11, v12
    v_sub_f32 v11, 0, v11
    """)
    for i in range(16): a(f"v_mov_b32 v{N+i}, v11")

def toff(u): return u * 2048 if u < 4 else 16384 + (u - 4) * 2048

def att_pre(early=False):
    a(f"""
    v_lshrrev_b32 v{VVA}, 5, v1
    v_lshlrev_b32 v{VVA}, 8, v{VVA}
    v_and_b32 v9, 15, v1
    v_lshlrev_b32 v9, 4, v9
    v_add_u32 v{VVA}, v{VVA}, v9
    v_add_u32 v{VVA}, 1024, v{VVA}
    v_and_b32 v{VSY}, 3, v1
    v_lshlrev_b32 v{VSY}, 2, v{VSY}
    v_add_u32 v{VSY}, {SYNC}, v{VSY}
    s_lshl_b32 s50, s60, 13
    v_add_u32 v13, s50, v{VKA}
    v_add_u32 v14, s50, v{VVA}
    """)
    for sx in range(2):
        for u in range(2):
            for i in range(4): a(f"v_mov_b32 v{VF[sx][u]+i}, 0")
    a("s_mov_b32 exec_lo, 0x110000\ns_mov_b32 exec_hi, 0x110000")
    for sx in range(2):
        for u in range(2):
            for i in range(4): a(f"v_mov_b32 v{VF[sx][u]+i}, 0x3f803f80")
    a("s_mov_b64 exec, -1")
    for q in range(2):
        for i in range(16): a(f"v_mov_b32 v{OA_[q]+i}, 0")

def attention():
    a(f"v_mov_b32 v15, {SYNC+128}")
    lds_wait(15, 0, 10)
    stamp(5)
    q_load()
    lds_wait(VSY, 48, 10)
    stamp(6)
    a(f"""
    ds_read_b128 {vr(88,4)}, v{VKA}
    ds_read_b128 {vr(KF[0],4)}, v13
    ds_read_b128 {vr(KF[1],4)}, v13 offset:2048
    s_mov_b64 exec, s[{MLO}:{MLO+1}]
    ds_read_b128 {vr(VF[0][0],4)}, v14
    ds_read_b128 {vr(VF[0][1],4)}, v14 offset:512
    s_mov_b64 exec, -1
    s_waitcnt vmcnt(0) lgkmcnt(4)
    {MF} {vr(SB[0],16)}, {vr(88,4)}, {vr(QF[0],4)}, 0
    {MF} {vr(SB[1],16)}, {vr(88,4)}, {vr(QF[1],4)}, 0
    """)
    LNFA = a.newlabel("nofa")
    a(f"s_cmp_eq_u32 s{TYPE}, 0\ns_cbranch_scc1 {LNFA}")
    set_flag(44, 10, 11)
    a.label(LNFA)
    a.nop(10)
    for q in range(2):
        rowmax(SB[q]); finish_negm(NEG[q])
    a(f"s_mov_b32 s62, 0\ns_waitcnt lgkmcnt(3)\n{MF} {vr(SB[0],16)}, {vr(KF[0],4)}, {vr(QF[0],4)}, {vr(NEG[0],16)}")
    stamp(7)
    cstamp(9, True)
    a.nop(8)
    LOOP = a.newlabel("att_loop"); LS1 = a.newlabel("att_s1"); LS2 = a.newlabel("att_s2"); LB = a.newlabel("att_body")
    a(".p2align 6")
    a.label(LOOP)
    a(f"s_cmp_eq_u32 s62, 1\ns_cbranch_scc1 {LS1}\ns_cmp_eq_u32 s62, 4\ns_cbranch_scc1 {LS2}")
    a.label(LB)
    step = 0
    for tl in range(4):
        kb = tl & 1
        for q in range(2):
            S = SB[q]; Sn = SB[q ^ 1]
            e = lambda i: f"v_exp_f32 v{S+i}, v{S+i}"
            c = lambda i: f"v_cvt_pk_bf16_f32 v{PA+i}, v{S+2*i}, v{S+2*i+1}"
            last = q == 1; first = q == 0
            nk = KF[kb ^ 1] if last else KF[kb]
            pv = VF[kb ^ 1] if first else VF[kb]
            if last: a("s_waitcnt lgkmcnt(2)")
            a(f"{MF} {vr(Sn,16)}, {vr(nk,4)}, {vr(QF[q^1],4)}, {vr(NEG[q^1],16)}")
            if last: a(f"ds_read_b128 {vr(KF[kb],4)}, v13 offset:{toff(tl+2)}")
            for i in range(4): a(e(i))
            a(f"{MF} {vr(OA_[q^1],16)}, {vr(pv[1],4)}, {vr(PB,4)}, {vr(OA_[q^1],16)}")
            if first:
                a(f"s_mov_b64 exec, s[{MLO}:{MLO+1}]")
                a(f"ds_read_b128 {vr(VF[kb^1][0],4)}, v14 offset:{toff(tl+1)}")
                a(f"ds_read_b128 {vr(VF[kb^1][1],4)}, v14 offset:{toff(tl+1)+512}")
                a("s_mov_b64 exec, -1")
            for x in [c(0), e(4), e(5), c(1), e(6), e(7), c(2), e(8), c(3), e(9), e(10)]: a(x)
            if first: a("s_waitcnt lgkmcnt(3)")
            a(f"{MF} {vr(OA_[q],16)}, {vr(VF[kb][0],4)}, {vr(PA,4)}, {vr(OA_[q],16)}")
            for x in [e(11), c(4), e(12), e(13), c(5), e(14), e(15), c(6), c(7)]: a(x)
    a(f"""
    v_add_u32 v13, 16384, v13
    v_add_u32 v14, 16384, v14
    s_add_u32 s62, s62, 1
    s_cmp_lt_u32 s62, 8
    s_cbranch_scc1 {LOOP}
    {MF} {vr(OA_[1],16)}, {vr(VF[1][1],4)}, {vr(PB,4)}, {vr(OA_[1],16)}
    """)
    stamp(8)
    cstamp(9, False)
    lds_wait(VSY, 32, 10)
    LK1 = a.newlabel("kh1"); LKD = a.newlabel("khd")
    a(f"""
    s_mul_i32 s56, s3, 2304
    s_add_u32 s56, s56, {AREG}
    s_xor_b32 s57, s3, 4
    s_mul_i32 s57, s57, 2304
    s_add_u32 s57, s57, {AREG}
    v_add_u32 v10, s56, v{VKA}
    v_add_u32 v11, s57, v{VKA}
    v_lshlrev_b32 v12, 2, v1
    v_add_u32 v9, s57, v12
    v_add_u32 v12, s56, v12
    s_cmp_eq_u32 s60, 0
    s_cbranch_scc0 {LK1}
    ds_write_b128 v10, {vr(OA_[1],4)}
    ds_write_b128 v10, {vr(OA_[1]+4,4)} offset:1024
    ds_write_b32 v12, v{OA_[1]+8} offset:2048
    s_branch {LKD}
    """)
    a.label(LK1)
    a(f"""
    ds_write_b128 v10, {vr(OA_[0],4)}
    ds_write_b128 v10, {vr(OA_[0]+4,4)} offset:1024
    ds_write_b32 v12, v{OA_[0]+8} offset:2048
    s_nop 0
    """)
    for i in range(9): a(f"v_mov_b32 v{OA_[0]+i}, v{OA_[1]+i}")
    for i in range(4): a(f"v_mov_b32 v{QF[0]+i}, v{QF[1]+i}")
    a.label(LKD)
    a(f"""
    s_lshl_b32 s56, s3, 2
    s_add_u32 s56, s56, {SYNC+64}
    s_xor_b32 s57, s56, 16
    s_add_u32 s59, s59, s60
    s_waitcnt lgkmcnt(0)
    """)
    lds_set(56, 0, 13, 14)
    a("v_mov_b32 v15, s57")
    lds_wait(15, 0, 13)
    O = OA_[0]
    a(f"""
    ds_read_b128 {vr(48,4)}, v11
    ds_read_b128 {vr(52,4)}, v11 offset:1024
    ds_read_b32 v56, v9 offset:2048
    v_mov_b32 v10, {f2u(2.0**60)}
    s_waitcnt lgkmcnt(0)
    """)
    for i in range(9): a(f"v_add_f32 v{O+i}, v{O+i}, v{48+i}")
    LOK = a.newlabel("att_ok"); LFB = a.newlabel("att_fb")
    a(f"v_fma_f32 v11, v{O}, 0, v{O+8}")
    for i in range(1, 8): a(f"v_fma_f32 v11, v{O+i}, 0, v11")
    a(f"v_cmp_nlt_f32 vcc, v11, v10")
    a(f"s_nop 1\ns_cmp_eq_u64 vcc, 0\ns_cbranch_scc0 {LFB}")
    a.label(LOK)
    a(f"v_rcp_f32 v10, v{O+8}\ns_lshl_b32 s56, s59, 15\ns_lshl_b32 s57, s58, 10\ns_add_u32 s56, s56, s57\ns_add_u32 s56, s56, {WS_OB}")
    for i in range(8): a(f"v_mul_f32 v{O+i}, v{O+i}, v10")
    for i in range(4): a(f"v_cvt_pk_bf16_f32 v{PA+i}, v{O+2*i}, v{O+2*i+1}")
    a(f"buffer_store_dwordx4 {vr(PA,4)}, v{VKA}, {srd(S_WS)}, s56 offen sc1")
    a(f"s_lshl_b32 s56, s59, 7\ns_lshl_b32 s57, s58, 2\ns_add_u32 s56, s56, s57\ns_add_u32 s56, s56, {FB2}\ns_waitcnt vmcnt(0)")
    set_flag(56, 10, 11)
    dump_stamps()
    a("s_endpgm")
    a.label(LS1)
    lds_wait(VSY, 0, 10)
    a(f"s_branch {LB}")
    a.label(LS2)
    lds_wait(VSY, 16, 10)
    a(f"s_branch {LB}")
    a.label(LFB)
    LM = a.newlabel("att_mx"); LP = a.newlabel("att_p2")
    S = SB[0]
    a(f"v_mov_b32 v13, v{VKA}\nv_mov_b32 v15, 0xff800000\ns_mov_b32 s62, 0")
    a.label(LM)
    a(f"ds_read_b128 {vr(KF[0],4)}, v13\ns_waitcnt lgkmcnt(0)")
    a(f"{MF} {vr(S,16)}, {vr(KF[0],4)}, {vr(QF[0],4)}, 0")
    a.nop(12)
    rowmax(S)
    a(f"""
    v_max_f32 v15, v15, v11
    v_add_u32 v13, 2048, v13
    s_add_u32 s62, s62, 1
    s_cmp_lt_u32 s62, 64
    s_cbranch_scc1 {LM}
    v_mov_b32 v11, v15
    """)
    finish_negm(NEG[0])
    for i in range(16): a(f"v_mov_b32 v{O+i}, 0")
    a(f"v_mov_b32 v13, v{VKA}\nv_mov_b32 v14, v{VVA}\ns_mov_b32 s62, 0")
    a.label(LP)
    a(f"""
    ds_read_b128 {vr(KF[0],4)}, v13
    s_mov_b64 exec, s[{MLO}:{MLO+1}]
    ds_read_b128 {vr(VF[0][0],4)}, v14
    ds_read_b128 {vr(VF[0][1],4)}, v14 offset:512
    s_mov_b64 exec, -1
    s_waitcnt lgkmcnt(0)
    {MF} {vr(S,16)}, {vr(KF[0],4)}, {vr(QF[0],4)}, {vr(NEG[0],16)}
    """)
    a.nop(12)
    for i in range(16): a(f"v_exp_f32 v{S+i}, v{S+i}")
    a("s_nop 0")
    for i in range(8): a(f"v_cvt_pk_bf16_f32 v{PA+i}, v{S+2*i}, v{S+2*i+1}")
    a(f"""
    v_add_u32 v13, 2048, v13
    v_add_u32 v14, 2048, v14
    {MF} {vr(O,16)}, {vr(VF[0][0],4)}, {vr(PA,4)}, {vr(O,16)}
    {MF} {vr(O,16)}, {vr(VF[0][1],4)}, {vr(PB,4)}, {vr(O,16)}
    s_add_u32 s62, s62, 1
    s_cmp_lt_u32 s62, 64
    s_cbranch_scc1 {LP}
    """)
    a.nop(12)
    a(f"s_branch {LOK}")

kernels = []
def exit_label(k):
    a.label(f"L_exit_{k}")
    a("s_endpgm")

a('.amdgcn_target "amdgcn-amd-amdhsa--gfx950"\n.text')
k = NAME + "_kernel"
kernels = [k]
prologue(k)
LG2 = a.newlabel("g2"); LTA = a.newlabel("typeA"); LATT = a.newlabel("att")
a(f"s_cmp_ge_u32 s3, 8\ns_cbranch_scc1 {LG2}")
publish_tag()
gemm_setup()
if "gprio" in sys.argv:
    LPR = a.newlabel("gp")
    a(f"s_cmp_ge_u32 s3, 4\ns_cbranch_scc1 {LPR}\ns_setprio 2")
    a.label(LPR)
a(f"s_cmp_lg_u32 s{TYPE}, 0\ns_cbranch_scc1 {LTA}")
gemm_main(True)
stamp(2)
cstamp(9, False)
if any(x in sys.argv for x in ("x0","x1","x2","x3")):
    dump_stamps()
    a("s_endpgm")
tag_from(9)
b_epilogue()
att_ids()
att_pre(early=True)
a(f"s_lshl_b32 s56, s3, 2\ns_add_u32 s56, s56, {SYNC+96}\ns_waitcnt vmcnt(0)")
lds_set(56, 0, 10, 11)
a(f"s_branch {LATT}")
a.label(LTA)
gemm_main(False)
stamp(2)
cstamp(9, False)
if any(x in sys.argv for x in ("x0","x1","x2","x3")):
    dump_stamps()
    a("s_endpgm")
tag_from(9)
a_local()
att_ids()
att_pre(early=True)
a.label(LATT)
stamp(3)
for i in range(4): a(f"v_mov_b32 v{PB+i}, 0")
stamp(4)
attention()
a.label(LG2)
a("s_sub_u32 s51, s3, 8\ns_setprio 3")
loader()
a(f"""
s_lshl_b32 s61, s4, 2
s_and_b32 s50, s5, 3
s_add_u32 s61, s61, s50
v_lshlrev_b32 v2, 4, v1
s_lshl_b32 s62, s51, 2
s_add_u32 s62, s62, {SYNC}
s_barrier
""")
if any(x in sys.argv for x in ("x0","x1","x2","x3")):
    dump_stamps()
    a("s_endpgm")
LNE2 = a.newlabel("noe2")
a(f"s_cmp_eq_u32 s{TYPE}, 0\ns_cbranch_scc1 {LNE2}\ns_barrier")
a.label(LNE2)
stamp(2)
LW9 = a.newlabel("notw8"); LGO = a.newlabel("go"); LPA = a.newlabel("pollA")
a(f"v_and_b32 v12, 7, v1\nv_lshlrev_b32 v12, 2, v12\nv_add_u32 v12, {SYNC+96}, v12")
a(f"s_cmp_lg_u32 s51, 0\ns_cbranch_scc1 {LW9}")
a(f"s_cmp_lg_u32 s{TYPE}, 0\ns_cbranch_scc1 {LPA}")
lds_wait(12, 0, 11)
a(f"s_lshl_b32 s56, s7, 7\ns_lshl_b32 s57, s6, 2\ns_add_u32 s56, s56, s57\ns_add_u32 s56, s56, {FB1}")
set_flag(56, 10, 11)
a.label(LPA)
stamp(1)
a(f"v_and_b32 v10, 15, v1\nv_lshlrev_b32 v10, 2, v10\ns_lshl_b32 s56, s4, 7\ns_add_u32 s56, s56, {FB1}")
poll(10, 56, 11, 6)
lds_set(62, 128, 3, 4)
a(f"s_branch {LGO}")
a.label(LW9)
a(f"v_mov_b32 v10, {SYNC+128}")
lds_wait(10, 0, 11)
a.label(LGO)
stamp(3)
kv_dma(2, 61, 51, 0, 8)
a("s_waitcnt vmcnt(0)")
lds_set(62, 48, 3, 4)
kv_dma(2, 61, 51, 32, 12)
lds_wait(12, 0, 11)
kv_dma(2, 61, 51, 80, 12)
a("s_waitcnt vmcnt(12)")
lds_set(62, 0, 3, 4)
a("s_waitcnt vmcnt(0)")
lds_set(62, 16, 3, 4)
stamp(10)
op_setup()
wo_preload(S_AWO)
stamp(4)
outproj_direct(WS_OA, FA, 16, 0, True)
stamp(6)
wo_preload(S_BWO)
a(f"s_lshl_b32 s56, s51, 2\ns_add_u32 s56, s56, {SYNC}")
lds_set(56, 32, 2, 3)
stamp(7)
outproj_lds(WS_OB, FB2, 32, 512, True)
dump_stamps()
a("s_endpgm")
exit_label(k)

hdr = open(f"cdna_kernels/{NAME}.s.ref").read().split("; Override")[0]
if True:
    hdr += f"; @launch grid=(256,1,1) block=(768,1,1) lds={LDS_BYTES}\n"
tail = '.section .rodata,"a"\n'
for k in kernels:
    tail += f""".p2align 6
.amdhsa_kernel {k}
  .amdhsa_next_free_vgpr 168
  .amdhsa_next_free_sgpr 96
  .amdhsa_accum_offset 168
  .amdhsa_group_segment_fixed_size 0
  .amdhsa_kernarg_size 72
  .amdhsa_user_sgpr_count 2
  .amdhsa_user_sgpr_kernarg_segment_ptr 1
  .amdhsa_system_sgpr_workgroup_id_x 1
.end_amdhsa_kernel
"""
probs = check(a.lines)
for p in probs: print(p)
open(OUT, "w").write(hdr + a.text() + tail)
print("wrote", OUT, len(a.lines), "lines;", len(probs), "hazards")
```

```python
import sys, math
from asmlib import *

NAME = "concat_heads__sliding_local_dilated__softmax_full_mha__prompt"
MODE = sys.argv[1] if len(sys.argv) > 1 else "3k"
OUT = sys.argv[2] if len(sys.argv) > 2 else f"cdna_kernels/{NAME}.s"

WS_Q = 0
WS_KV = 2 << 20
WS_OB = 6 << 20
WS_OA = 8 << 20
WS_HALO = 10 << 20
WS_FLAG = 12 << 20
FB1 = WS_FLAG
FB2 = WS_FLAG + 4096
FA = WS_FLAG + 16384
HF = WS_FLAG + 32768
WS_SIZE = 16 << 20

SLOT = 40960
ALB = 98304
AREG = 131072
AW = 7680
SYNC = AREG + 4 * AW
LDS_BYTES = 163840

S_X, S_W, S_AWO, S_BWO, S_OUT, S_DBG, S_WS = 8, 12, 16, 20, 24, 28, 32
def srd(b): return f"s[{b}:{b+3}]"
TYPE = 36
TAG = 37
ROT = 38
MLO = 40
MHI = 42
QSCALE = 0.25 * math.log2(math.e)
import struct
def f2u(x): return struct.unpack("<I", struct.pack("<f", x))[0]
MF = "v_mfma_f32_32x32x16_bf16"
POLL_LIMIT = 30000

a = Asm()
STAMP = "stamp" in sys.argv
WS_STAMP = 14 << 20
def stamp(i):
    if STAMP:
        a(f"s_memrealtime s[82:83]\ns_waitcnt lgkmcnt(0)\ns_mov_b32 s{84+i}, s82")
def cstamp(i, first):
    if STAMP:
        a("s_memtime s[82:83]\ns_waitcnt lgkmcnt(0)")
        if first: a(f"s_mov_b32 s{84+i}, s82")
        else: a(f"s_sub_u32 s{84+i}, s82, s{84+i}")
def dump_stamps():
    if STAMP and "dbgout" in sys.argv:
        stamp(11)
        L = a.newlabel("nodbg")
        a(f"s_cmp_lg_u32 s2, 37\ns_cbranch_scc1 {L}\ns_and_b32 s82, s3, 3\ns_cmp_lg_u32 s82, 0\ns_cbranch_scc1 {L}\ns_cmp_eq_u32 s3, 0\ns_cbranch_scc1 {L}")
        a("s_mov_b64 exec, 1\ns_cmp_eq_u32 s3, 4")
        for k, (i, j) in enumerate(zip([0, 1, 2, 3, 5, 7, 8, 11], [1, 2, 3, 10, 4, 6, 9, 11])):
            a(f"s_cselect_b32 s83, s{84+i}, s{84+j}\ns_sub_u32 s83, s83, s84\nv_mov_b32 v{2+k}, s83\ns_cmp_eq_u32 s3, 4")
        a(f"s_cselect_b32 s82, 0, 32\nv_mov_b32 v1, s82")
        L2 = a.newlabel("w8")
        a(f"s_cbranch_scc0 {L2}")
        a(f"buffer_store_dword v3, v1, {srd(S_DBG)}, 0 offen offset:4\nbuffer_store_dwordx2 v[4:5], v1, {srd(S_DBG)}, 0 offen offset:8\nbuffer_store_dwordx4 v[6:9], v1, {srd(S_DBG)}, 0 offen offset:16\ns_branch {L}")
        a.label(L2)
        a(f"buffer_store_dwordx4 v[2:5], v1, {srd(S_DBG)}, 0 offen\nbuffer_store_dwordx4 v[6:9], v1, {srd(S_DBG)}, 0 offen offset:16")
        a.label(L)
        return
    if STAMP:
        stamp(11)
        a(f"s_mul_i32 s82, s2, 12\ns_add_u32 s82, s82, s3\ns_lshl_b32 s82, s82, 6\ns_add_u32 s82, s82, {WS_STAMP}\nv_mov_b32 v1, 0\ns_mov_b64 exec, 1")
        for i in range(12): a(f"v_mov_b32 v{2+i}, s{84+i}")
        for i in range(3): a(f"buffer_store_dwordx4 v[{2+4*i}:{5+4*i}], v1, {srd(S_WS)}, s82 offen offset:{16*i}")

def prologue(kname):
    a(f".globl {kname}\n.p2align 8\n.type {kname},@function")
    a.label(kname)
    a(f"""
    s_cmp_ge_u32 s2, 256
    s_cbranch_scc1 L_exit_{kname}
    s_load_dwordx16 s[64:79], s[0:1], 0
    s_load_dwordx2 s[80:81], s[0:1], 64
    v_lshrrev_b32 v2, 6, v0
    v_and_b32 v1, 63, v0
    s_and_b32 s4, s2, 7
    v_readfirstlane_b32 s3, v2
    s_lshr_b32 s5, s2, 3
    s_and_b32 s6, s4, 3
    s_lshl_b32 s6, s6, 2
    s_and_b32 s50, s5, 3
    s_add_u32 s6, s6, s50
    s_and_b32 s7, s4, 4
    s_lshr_b32 s50, s5, 2
    s_and_b32 s50, s50, 3
    s_add_u32 s7, s7, s50
    s_lshl_b32 s50, s7, 1
    s_add_u32 s{ROT}, s6, s50
    s_and_b32 s{ROT}, s{ROT}, 7
    s_lshr_b32 s{TYPE}, s5, 4
    s_mov_b32 s{MLO}, 0xffff
    s_mov_b32 s{MLO+1}, 0xffff
    s_mov_b32 s{MHI}, 0xffff0000
    s_mov_b32 s{MHI+1}, 0xffff0000
    """)
    sizes = {S_X: 2 << 20, S_W: 512 * 1536 * 2, S_AWO: 512 * 512 * 2, S_BWO: 512 * 512 * 2, S_OUT: 4 << 20, S_DBG: 256, S_WS: WS_SIZE}
    for b, sz in sizes.items():
        a(f"s_mov_b32 s{b+2}, {sz}\ns_mov_b32 s{b+3}, 0x20000")
    a(f"s_cmp_eq_u32 s{TYPE}, 0\ns_waitcnt lgkmcnt(0)")
    a(f"s_cselect_b64 s[{S_X}:{S_X+1}], s[70:71], s[64:65]\ns_cselect_b64 s[{S_W}:{S_W+1}], s[72:73], s[66:67]")
    for b, i in ((S_AWO, 2), (S_BWO, 5), (S_OUT, 6), (S_DBG, 7), (S_WS, 8)):
        a(f"s_mov_b64 s[{b}:{b+1}], s[{64+2*i}:{65+2*i}]")
    if STAMP:
        for i in range(12): a(f"s_mov_b32 s{84+i}, 0")
    stamp(0)

def publish_tag():
    L = a.newlabel("notag")
    a(f"""
    s_or_b32 s50, s2, s3
    s_cmp_lg_u32 s50, 0
    s_cbranch_scc1 {L}
    s_memrealtime s[52:53]
    v_mov_b32 v3, 0
    s_waitcnt lgkmcnt(0)
    s_or_b32 s52, s52, 1
    v_mov_b32 v2, s52
    s_mov_b64 exec, 1
    buffer_store_dword v2, v3, {srd(S_DBG)}, 0 offen sc1
    s_mov_b64 exec, -1
    """)
    a.label(L)

def get_tag(vt=2, vz=3):
    L = a.newlabel("gt"); D = a.newlabel("gtd")
    a(f"v_mov_b32 v{vz}, 0\ns_mov_b32 s50, {POLL_LIMIT}")
    a.label(L)
    a(f"""
    buffer_load_dword v{vt}, v{vz}, {srd(S_DBG)}, 0 offen sc1
    s_waitcnt vmcnt(0)
    v_readfirstlane_b32 s{TAG}, v{vt}
    s_nop 1
    s_cmp_lg_u32 s{TAG}, 0
    s_cbranch_scc1 {D}
    s_sleep 1
    s_sub_u32 s50, s50, 1
    s_cmp_lg_u32 s50, 0
    s_cbranch_scc1 {L}
    """)
    a.label(D)

def poll(voff, soff, vt, slp=1):
    L = a.newlabel("pl"); D = a.newlabel("pld")
    a(f"s_mov_b32 s50, {POLL_LIMIT}")
    a.label(L)
    a(f"""
    buffer_load_dword v{vt}, v{voff}, {srd(S_WS)}, s{soff} offen sc1
    s_waitcnt vmcnt(0)
    v_cmp_ne_u32 vcc, s{TAG}, v{vt}
    s_nop 1
    s_cmp_eq_u64 vcc, 0
    s_cbranch_scc1 {D}
    s_sleep {slp}
    s_sub_u32 s50, s50, 1
    s_cmp_lg_u32 s50, 0
    s_cbranch_scc1 {L}
    """)
    a.label(D)

def lds_wait(vaddr, off, vt):
    L = a.newlabel("lw"); D = a.newlabel("lwd")
    a(f"s_mov_b32 s50, 0x80000")
    a.label(L)
    a(f"""
    ds_read_b32 v{vt}, v{vaddr} offset:{off}
    s_waitcnt lgkmcnt(0)
    v_cmp_ne_u32 vcc, s{TAG}, v{vt}
    s_nop 1
    s_cmp_eq_u64 vcc, 0
    s_cbranch_scc1 {D}
    s_sleep 1
    s_sub_u32 s50, s50, 1
    s_cmp_lg_u32 s50, 0
    s_cbranch_scc1 {L}
    """)
    a.label(D)

def lds_set(saddr, off, vt, va):
    a(f"""
    v_mov_b32 v{vt}, s{TAG}
    v_mov_b32 v{va}, s{saddr}
    s_mov_b64 exec, 1
    ds_write_b32 v{va}, v{vt} offset:{off}
    s_mov_b64 exec, -1
    """)

def set_flag(soff, vt, vz):
    a(f"""
    v_mov_b32 v{vt}, s{TAG}
    v_mov_b32 v{vz}, 0
    s_mov_b64 exec, 1
    buffer_store_dword v{vt}, v{vz}, {srd(S_WS)}, s{soff} offen sc1
    s_mov_b64 exec, -1
    """)

def loader():
    a(f"""
    v_lshrrev_b32 v14, 3, v1
    v_and_b32 v15, 7, v1
    v_lshlrev_b32 v16, 1, v14
    v_and_b32 v16, 4, v16
    v_xor_b32 v16, v15, v16
    v_lshlrev_b32 v16, 4, v16
    v_mul_u32_u24 v13, 3072, v14
    v_add_u32 v13, v13, v16
    s_and_b32 s50, s51, 1
    s_lshl_b32 s50, s50, 2
    v_lshrrev_b32 v16, 4, v1
    v_add_u32 v16, s50, v16
    v_xor_b32 v15, v15, v16
    v_lshlrev_b32 v15, 4, v15
    v_lshlrev_b32 v14, 10, v14
    v_add_u32 v12, v14, v15
    s_lshl_b32 s52, s51, 10
    s_lshl_b32 s53, s6, 17
    s_lshl_b32 s50, s51, 13
    s_add_u32 s53, s53, s50
    s_mul_i32 s54, s51, 24576
    s_lshl_b32 s55, s7, 7
    s_add_u32 s54, s54, s55
    s_mul_i32 s55, s51, 3072
    s_add_u32 s55, s55, 16384
    v_mov_b32 v17, 0
    """)
    def cload(c):
        sl = (c & 3) * SLOT
        a(f"""
        s_add_u32 s56, s{ROT}, {c}
        s_and_b32 s56, s56, 7
        s_lshl_b32 s57, s56, 7
        s_add_u32 s57, s57, s53
        s_mul_i32 s56, s56, {64*3072}
        s_add_u32 s56, s56, s54
        """)
        for i in range(4):
            a(f"s_add_u32 m0, s52, {sl + i*4096}\ns_add_u32 s58, s57, {i*32768}")
            a(f"buffer_load_dwordx4 v12, {srd(S_X)}, s58 offen lds")
        for hh in range(2):
            a(f"s_add_u32 m0, s55, {sl + hh*4*3072}\ns_add_u32 s58, s56, {hh*32*3072}")
            for p in range(3):
                a(f"buffer_load_dwordx4 v13, {srd(S_W)}, s58 offen offset:{p*1024} lds")
    dl = [x for x in sys.argv if x.startswith("delay=")]
    if dl:
        LD = a.newlabel("nodelay")
        a(f"s_cmp_eq_u32 s{TYPE}, 0\ns_cbranch_scc1 {LD}")
        n = int(dl[0][6:])
        while n > 0:
            a(f"s_sleep {min(n,127)}"); n -= 127
        a.label(LD)
    cload(0); cload(1)
    stamp(1)
    for c in range(8):
        extra = 1 if c in (4,) else 0
        if "nobar" in sys.argv and c > 0: continue
        a(f"s_waitcnt vmcnt({10 + extra if c < 7 else 0})\ns_barrier")
        if c + 2 < 8 and "x3" not in sys.argv: cload(c + 2)
        if c == 3: a(f"buffer_load_dword v16, v17, {srd(S_DBG)}, 0 offen sc1")
    LT = a.newlabel("tagok")
    a(f"v_readfirstlane_b32 s{TAG}, v16\ns_nop 1\ns_cmp_lg_u32 s{TAG}, 0\ns_cbranch_scc1 {LT}")
    get_tag()
    a.label(LT)

ACCQ, ACCK, ACCV = 16, 32, 48
FR = [64, 80, 96]
XA, WA = 112, 120

def gemm_setup():
    a(f"""
    s_lshr_b32 s52, s3, 1
    s_and_b32 s53, s3, 1
    v_and_b32 v2, 31, v1
    v_lshrrev_b32 v3, 5, v1
    v_and_b32 v4, 15, v1
    s_lshl_b32 s50, s52, 12
    v_lshlrev_b32 v5, 7, v2
    v_add_u32 v5, s50, v5
    v_lshrrev_b32 v7, 1, v4
    """)
    for ss in range(4):
        a(f"""
        v_add_u32 v6, {2*ss}, v3
        v_xor_b32 v6, v6, v7
        v_lshlrev_b32 v6, 4, v6
        v_add_u32 v{XA+ss}, v5, v6
        v_add_u32 v{XA+4+ss}, {2*SLOT}, v{XA+ss}
        """)
    a(f"""
    v_mul_u32_u24 v6, 3072, v3
    v_lshrrev_b32 v7, 2, v4
    v_lshlrev_b32 v8, 7, v7
    v_add_u32 v6, v6, v8
    v_lshrrev_b32 v7, 1, v7
    v_xor_b32 v7, s53, v7
    v_lshlrev_b32 v7, 6, v7
    v_add_u32 v6, v6, v7
    v_and_b32 v7, 16, v1
    v_lshlrev_b32 v7, 1, v7
    v_add_u32 v6, v6, v7
    v_and_b32 v7, 3, v1
    v_lshlrev_b32 v7, 3, v7
    v_add_u32 v6, v6, v7
    v_add_u32 v{WA}, 16384, v6
    v_add_u32 v{WA+1}, {16384+2*SLOT}, v6
    v_mov_b32 v10, 0
    """)

def gemm_main(vtrans):
    def reads(n, f):
        c = n >> 2; ss = n & 3
        slot = c & 3
        hi = slot >> 1
        off = (slot & 1) * SLOT
        r = [f"ds_read_b128 {vr(f,4)}, v{XA+4*hi+ss} offset:{off}"]
        for p in range(3):
            r.append(f"ds_read_b64_tr_b16 {vr(f+4+4*p,2)}, v{WA+hi} offset:{off+ss*6144+p*1024}")
            r.append(f"ds_read_b64_tr_b16 {vr(f+6+4*p,2)}, v{WA+hi} offset:{off+ss*6144+p*1024+512}")
        return r
    def mfmas(f, first):
        c = lambda r: "0" if first else vr(r, 16)
        m = [f"{MF} {vr(ACCQ,16)}, {vr(f+4,4)}, {vr(f,4)}, {c(ACCQ)}",
             f"{MF} {vr(ACCK,16)}, {vr(f+8,4)}, {vr(f,4)}, {c(ACCK)}"]
        if vtrans:
            m.append(f"{MF} {vr(ACCV,16)}, {vr(f,4)}, {vr(f+12,4)}, {c(ACCV)}")
        else:
            m.append(f"{MF} {vr(ACCV,16)}, {vr(f+12,4)}, {vr(f,4)}, {c(ACCV)}")
        return m
    a("s_barrier")
    stamp(1)
    cstamp(9, True)
    for x in reads(0, FR[0]) + reads(1, FR[1]): a(x)
    for n in range(32):
        n2 = n + 2
        m = mfmas(FR[n % 3], n == 0)
        a(f"s_waitcnt lgkmcnt({7 if n < 31 else 0})")
        if n == 31: a("s_barrier")
        r = reads(n2, FR[n2 % 3]) if n2 < 32 else []
        if "x1" in sys.argv or "x2" in sys.argv: m = ["s_nop 0"] * 3
        if "x2" in sys.argv: r = []
        a(m[0])
        if n == 12: a(f"buffer_load_dword v9, v10, {srd(S_DBG)}, 0 offen sc1")
        if n2 < 32 and (n2 & 3) == 0 and "nobar" not in sys.argv: a("s_barrier")
        for x in r[0:3]: a(x)
        a(m[1])
        pc = [x for x in sys.argv if x.startswith("pace=")]
        if pc: a(f"s_nop {int(pc[0][5:])}")
        for x in r[3:5]: a(x)
        a(m[2])
        for x in r[5:7]: a(x)

def tag_from(v):
    LT = a.newlabel("tagok")
    a(f"s_waitcnt vmcnt(0)\nv_readfirstlane_b32 s{TAG}, v{v}\ns_nop 1\ns_cmp_lg_u32 s{TAG}, 0\ns_cbranch_scc1 {LT}")
    get_tag(9, 10)
    a.label(LT)

def b_epilogue():
    a(f"""
    s_lshl_b32 s54, s6, 2
    s_add_u32 s54, s54, s52
    s_lshl_b32 s55, s7, 2
    s_lshl_b32 s56, s53, 1
    s_add_u32 s55, s55, s56
    s_lshl_b32 s56, s55, 16
    s_lshl_b32 s57, s54, 10
    s_add_u32 s56, s56, s57
    s_add_u32 s57, s56, 65536
    s_lshl_b32 s58, s55, 17
    s_lshl_b32 s59, s54, 11
    s_add_u32 s58, s58, s59
    s_add_u32 s58, s58, {WS_KV}
    s_add_u32 s59, s58, 131072
    v_lshlrev_b32 v2, 4, v1
    v_and_b32 v3, 16, v1
    v_lshlrev_b32 v3, 13, v3
    v_lshrrev_b32 v4, 5, v1
    v_lshlrev_b32 v4, 8, v4
    v_add_u32 v3, v3, v4
    v_and_b32 v4, 15, v1
    v_lshlrev_b32 v4, 4, v4
    v_add_u32 v3, v3, v4
    s_mov_b32 s60, {f2u(QSCALE)}
    s_nop 3
    """)
    for i in range(8): a(f"v_cvt_pk_bf16_f32 v{64+i}, v{ACCK+2*i}, v{ACCK+2*i+1}")
    a(f"buffer_store_dwordx4 v[64:67], v2, {srd(S_WS)}, s58 offen sc1")
    a(f"buffer_store_dwordx4 v[68:71], v2, {srd(S_WS)}, s59 offen sc1")
    for i in range(8): a(f"v_cvt_pk_bf16_f32 v{72+i}, v{ACCV+2*i}, v{ACCV+2*i+1}")
    a(f"buffer_store_dwordx4 v[72:75], v3, {srd(S_WS)}, s58 offen offset:1024 sc1")
    a(f"buffer_store_dwordx4 v[76:79], v3, {srd(S_WS)}, s58 offen offset:1536 sc1")
    for i in range(8): a(f"v_cvt_pk_bf16_f32 v{80+i}, v{ACCQ+2*i}, v{ACCQ+2*i+1}")
    for i in range(8):
        a(f"v_lshlrev_b32 v{ACCQ+2*i}, 16, v{80+i}\nv_and_b32 v{ACCQ+2*i+1}, 0xffff0000, v{80+i}")
    for i in range(16): a(f"v_mul_f32 v{ACCQ+i}, s60, v{ACCQ+i}")
    for i in range(8): a(f"v_cvt_pk_bf16_f32 v{80+i}, v{ACCQ+2*i}, v{ACCQ+2*i+1}")
    a(f"buffer_store_dwordx4 v[80:83], v2, {srd(S_WS)}, s56 offen sc1")
    a(f"buffer_store_dwordx4 v[84:87], v2, {srd(S_WS)}, s57 offen sc1")

def b_flag():
    a(f"""
    s_lshl_b32 s56, s7, 1
    s_add_u32 s56, s56, s53
    s_lshl_b32 s56, s56, 8
    s_lshl_b32 s57, s54, 2
    s_add_u32 s56, s56, s57
    s_add_u32 s56, s56, {FB1}
    s_waitcnt vmcnt(0)
    """)
    set_flag(56, 2, 3)

def a_local():
    Q8, K8, V8 = 64, 72, 80
    KB = 88
    LG = 144
    PLO, PHI, OACC = 16, 24, 32
    a(f"""
    s_lshl_b32 s54, s6, 2
    s_add_u32 s54, s54, s52
    s_lshl_b32 s55, s7, 1
    s_add_u32 s55, s55, s53
    s_lshl_b32 s56, s6, 4
    s_add_u32 s56, s56, s55
    s_mul_i32 s57, s53, 23040
    s_mul_i32 s58, s52, 2560
    s_add_u32 s57, s57, s58
    s_add_u32 s57, s57, {ALB}
    v_and_b32 v2, 31, v1
    v_lshrrev_b32 v3, 5, v1
    v_mul_u32_u24 v4, 80, v2
    v_mul_u32_u24 v5, 11520, v3
    v_add_u32 v4, v4, v5
    v_add_u32 v4, s57, v4
    v_and_b32 v5, 15, v1
    v_lshlrev_b32 v5, 4, v5
    v_lshlrev_b32 v6, 8, v3
    v_add_u32 v5, v5, v6
    s_lshl_b32 s58, s56, 11
    s_add_u32 s58, s58, {WS_HALO}
    s_lshl_b32 s59, s56, 2
    s_add_u32 s59, s59, {HF}
    """)
    for dst, acc in ((K8, ACCK), (V8, ACCV)):
        for i in range(8): a(f"v_cvt_pk_bf16_f32 v{dst+i}, v{acc+2*i}, v{acc+2*i+1}")
    for dst in (K8, V8):
        a("s_nop 0")
        for t in range(4): a(f"v_permlane32_swap_b32 v{dst+t}, v{dst+4+t}")
    for i in range(4): a(f"ds_write_b128 v4, {vr(K8+4*i,4)} offset:{1280+16*i}")
    LNH = a.newlabel("nohs")
    a(f"s_cmp_lg_u32 s52, 3\ns_cbranch_scc1 {LNH}")
    a(f"s_mov_b64 exec, s[{MHI}:{MHI+1}]")
    for i in range(4): a(f"buffer_store_dwordx4 {vr(K8+4*i,4)}, v5, {srd(S_WS)}, s58 offen offset:{512*i} sc1")
    a("s_mov_b64 exec, -1")
    a.label(LNH)
    for i in range(8): a(f"v_cvt_pk_bf16_f32 v{Q8+i}, v{ACCQ+2*i}, v{ACCQ+2*i+1}")
    a("s_nop 0")
    for t in range(4): a(f"v_permlane32_swap_b32 v{Q8+t}, v{Q8+4+t}")
    a("s_waitcnt lgkmcnt(0)\ns_barrier")
    LZ = a.newlabel("hz"); LD = a.newlabel("hd"); LN0 = a.newlabel("nohl")
    a(f"s_cmp_lg_u32 s52, 0\ns_cbranch_scc1 {LN0}")
    a(f"s_cmp_eq_u32 s54, 0\ns_cbranch_scc1 {LZ}")
    a(f"s_sub_u32 s60, s59, 64\ns_sub_u32 s58, s58, {16*2048}\nv_mov_b32 v7, 0")
    poll(7, 60, 6, 8)
    a(f"s_mov_b64 exec, s[{MLO}:{MLO+1}]")
    for i in range(4): a(f"buffer_load_dwordx4 {vr(KB+4*i,4)}, v5, {srd(S_WS)}, s58 offen offset:{512*i} sc1")
    a(f"s_waitcnt vmcnt(0)\ns_branch {LD}")
    a.label(LZ)
    a(f"s_mov_b64 exec, s[{MLO}:{MLO+1}]")
    for i in range(16): a(f"v_mov_b32 v{KB+i}, 0")
    a.label(LD)
    for i in range(4): a(f"ds_write_b128 v4, {vr(KB+4*i,4)} offset:{16*i}")
    a("s_mov_b64 exec, -1\ns_waitcnt lgkmcnt(0)")
    a.label(LN0)
    for w in range(1, 8):
        a(f"ds_read_b128 {vr(KB+8*(w-1),4)}, v4 offset:{1280-160*w}")
        a(f"ds_read_b128 {vr(KB+8*(w-1)+4,4)}, v4 offset:{1280-160*w+16}")
    kreg = lambda w, i: (K8 + i) if w == 0 else (KB + 8 * (w - 1) + i)
    for i in range(8): a(f"v_dot2_f32_bf16 v{LG}, v{Q8+i}, v{kreg(0,i)}, {'0' if i==0 else f'v{LG}'}")
    for w in range(1, 8):
        a(f"s_waitcnt lgkmcnt({2*(7-w)})")
        for i in range(8): a(f"v_dot2_f32_bf16 v{LG+w}, v{Q8+i}, v{kreg(w,i)}, {'0' if i==0 else f'v{LG+w}'}")
    for w in range(1, 8):
        a(f"ds_read_b128 {vr(KB+8*(w-1),4)}, v4 offset:{1280-160*w+32}")
        a(f"ds_read_b128 {vr(KB+8*(w-1)+4,4)}, v4 offset:{1280-160*w+48}")
    LNF = a.newlabel("nohf")
    a(f"s_cmp_lg_u32 s52, 3\ns_cbranch_scc1 {LNF}\ns_waitcnt vmcnt(0)")
    set_flag(59, 6, 7)
    a.label(LNF)
    for i in range(4): a(f"v_cvt_pk_bf16_f32 v{152+i}, v{LG+2*i}, v{LG+2*i+1}")
    for i in range(4): a(f"v_lshlrev_b32 v{LG+2*i}, 16, v{152+i}\nv_and_b32 v{LG+2*i+1}, 0xffff0000, v{152+i}")
    LM = a.newlabel("nomask")
    a(f"s_cmp_lg_u32 s54, 0\ns_cbranch_scc1 {LM}\nv_mov_b32 v6, 0xf149f2ca")
    for w in range(1, 8):
        a(f"v_cmp_gt_u32 vcc, {2*w}, v2\ns_nop 1\nv_cndmask_b32 v{LG+w}, v{LG+w}, v6, vcc")
    a.label(LM)
    a(f"""
    v_max3_f32 v6, v{LG}, v{LG+1}, v{LG+2}
    v_max3_f32 v7, v{LG+3}, v{LG+4}, v{LG+5}
    v_max3_f32 v6, v6, v{LG+6}, v{LG+7}
    v_max_f32 v6, v6, v7
    s_mov_b32 s60, {f2u(QSCALE)}
    """)
    for w in range(8): a(f"v_sub_f32 v{LG+w}, v{LG+w}, v6")
    for w in range(8): a(f"v_mul_f32 v{LG+w}, s60, v{LG+w}")
    for w in range(8): a(f"v_exp_f32 v{LG+w}, v{LG+w}")
    a(f"""
    v_add_f32 v6, v{LG}, v{LG+1}
    v_add_f32 v7, v{LG+2}, v{LG+3}
    v_add_f32 v8, v{LG+4}, v{LG+5}
    v_add_f32 v9, v{LG+6}, v{LG+7}
    v_add_f32 v6, v6, v7
    v_add_f32 v8, v8, v9
    v_add_f32 v6, v6, v8
    v_rcp_f32 v6, v6
    s_nop 0
    """)
    for w in range(8): a(f"v_mul_f32 v{LG+w}, v{LG+w}, v6")
    for w in range(8): a(f"v_cvt_pk_bf16_f32 v{PLO+w}, v{LG+w}, 0\nv_cvt_pk_bf16_f32 v{PHI+w}, 0, v{LG+w}")
    vreg = lambda w, i: (V8 + i) if w == 0 else (KB + 8 * (w - 1) + i)
    for w in range(8):
        if w >= 1: a(f"s_waitcnt lgkmcnt({2*(7-w)})")
        for i in range(8):
            c0 = "0" if w == 0 else f"v{OACC+2*i}"
            c1 = "0" if w == 0 else f"v{OACC+2*i+1}"
            a(f"v_dot2_f32_bf16 v{OACC+2*i}, v{vreg(w,i)}, v{PLO+w}, {c0}")
            a(f"v_dot2_f32_bf16 v{OACC+2*i+1}, v{vreg(w,i)}, v{PHI+w}, {c1}")
    a(f"s_lshl_b32 s58, s3, 2\ns_add_u32 s58, s58, {SYNC+96}")
    lds_set(58, 0, 6, 7)
    a(f"""
    s_lshl_b32 s58, s54, 15
    s_lshl_b32 s59, s55, 11
    s_add_u32 s58, s58, s59
    s_add_u32 s58, s58, {WS_OA}
    v_lshlrev_b32 v5, 4, v2
    v_lshlrev_b32 v6, 10, v3
    v_add_u32 v5, v5, v6
    """)
    for i in range(8): a(f"v_cvt_pk_bf16_f32 v{64+i}, v{OACC+2*i}, v{OACC+2*i+1}")
    a(f"buffer_store_dwordx4 v[64:67], v5, {srd(S_WS)}, s58 offen sc1")
    a(f"buffer_store_dwordx4 v[68:71], v5, {srd(S_WS)}, s58 offen offset:512 sc1")
    a(f"""
    s_lshl_b32 s59, s54, 7
    s_lshl_b32 s60, s55, 2
    s_add_u32 s59, s59, s60
    s_add_u32 s44, s59, {FA}
    """)

WO = 40
OACC2 = 16
def op_setup():
    a(f"""
    s_lshl_b32 s61, s4, 3
    s_and_b32 s50, s5, 7
    s_add_u32 s61, s61, s50
    s_lshr_b32 s62, s5, 3
    s_lshl_b32 s62, s62, 8
    s_lshl_b32 s50, s51, 6
    s_add_u32 s62, s62, s50
    s_mul_i32 s63, s51, {AW}
    s_add_u32 s63, s63, {AREG}
    v_lshrrev_b32 v14, 2, v1
    v_lshlrev_b32 v14, 10, v14
    v_and_b32 v15, 3, v1
    v_lshlrev_b32 v15, 4, v15
    v_add_u32 v14, v14, v15
    v_lshrrev_b32 v15, 5, v1
    v_lshlrev_b32 v15, 8, v15
    v_and_b32 v2, 12, v1
    v_lshlrev_b32 v2, 4, v2
    v_add_u32 v15, v15, v2
    v_and_b32 v2, 16, v1
    v_lshlrev_b32 v2, 1, v2
    v_add_u32 v15, v15, v2
    v_and_b32 v2, 3, v1
    v_lshlrev_b32 v2, 3, v2
    v_add_u32 v15, v15, v2
    v_add_u32 v15, s63, v15
    """)

def wo_preload(swo):
    NS = 7
    def dma(s):
        a(f"s_add_u32 m0, s63, {(s%NS)*1024}\ns_add_u32 s50, s62, {s*16384}")
        a(f"buffer_load_dwordx4 v14, {srd(swo)}, s50 offen lds")
    for s in range(NS): dma(s)
    for s in range(32):
        a(f"s_waitcnt vmcnt({min(NS-1, 31-s)})")
        a(f"ds_read_b64_tr_b16 {vr(WO+4*s,2)}, v15 offset:{(s%NS)*1024}")
        a(f"ds_read_b64_tr_b16 {vr(WO+4*s+2,2)}, v15 offset:{(s%NS)*1024+512}")
        if s + NS < 32:
            a("s_waitcnt lgkmcnt(0)")
            dma(s + NS)
    a("s_waitcnt lgkmcnt(0)")

def op_store(colbase):
    a(f"""
    v_and_b32 v2, 31, v1
    v_lshlrev_b32 v2, 11, v2
    v_lshrrev_b32 v3, 5, v1
    v_lshlrev_b32 v3, 4, v3
    v_add_u32 v2, v2, v3
    s_lshl_b32 s50, s61, 16
    s_add_u32 s50, s50, s62
    s_add_u32 s50, s50, {colbase*2}
    s_nop 7
    """)
    for i in range(8): a(f"v_cvt_pk_bf16_f32 v{32+i}, v{OACC2+2*i}, v{OACC2+2*i+1}")
    a("s_nop 1")
    a("v_permlane32_swap_b32 v32, v34\nv_permlane32_swap_b32 v33, v35\nv_permlane32_swap_b32 v36, v38\nv_permlane32_swap_b32 v37, v39")
    of = "sc1" if "outsc1" in sys.argv else "nt" if "outnt" in sys.argv else ""
    a(f"buffer_store_dwordx4 v[32:35], v2, {srd(S_OUT)}, s50 offen {of}")
    a(f"buffer_store_dwordx4 v[36:39], v2, {srd(S_OUT)}, s50 offen offset:32 {of}")

def outproj_direct(wsoff, flagoff, nfl, colbase, do_poll):
    if do_poll:
        a(f"v_and_b32 v2, {nfl-1}, v1\nv_lshlrev_b32 v2, 2, v2\ns_lshl_b32 s56, s61, 7\ns_add_u32 s56, s56, {flagoff}")
        poll(2, 56, 3, 16)
    stamp(5)
    bufs = [2, 6, 10, 32, 36]
    a(f"v_lshlrev_b32 v0, 4, v1\ns_lshl_b32 s56, s61, 15\ns_add_u32 s56, s56, {wsoff}")
    def ld(s):
        a(f"s_add_u32 s57, s56, {(s>>2)*4096}")
        a(f"buffer_load_dwordx4 {vr(bufs[s%5],4)}, v0, {srd(S_WS)}, s57 offen offset:{(s&3)*1024} sc1")
    for s in range(5): ld(s)
    for s in range(32):
        a(f"s_waitcnt vmcnt({min(4, 31-s)})")
        a(f"{MF} {vr(OACC2,16)}, {vr(WO+4*s,4)}, {vr(bufs[s%5],4)}, {'0' if s==0 else vr(OACC2,16)}")
        if s + 5 < 32: ld(s + 5)
    op_store(colbase)

def outproj_lds(wsoff, flagoff, nfl, colbase, do_poll):
    a("s_barrier")
    stamp(8)
    LNP = a.newlabel("nopoll")
    a(f"s_cmp_lg_u32 s51, 0\ns_cbranch_scc1 {LNP}")
    a(f"v_and_b32 v2, 31, v1\nv_lshlrev_b32 v2, 2, v2\ns_lshl_b32 s56, s61, 7\ns_add_u32 s56, s56, {flagoff}")
    poll(2, 56, 3, 3)
    a.label(LNP)
    a("s_barrier")
    stamp(9)
    a(f"""
    v_lshlrev_b32 v0, 4, v1
    s_lshl_b32 s56, s61, 15
    s_add_u32 s56, s56, {wsoff}
    s_lshl_b32 s57, s51, 13
    s_add_u32 s56, s56, s57
    s_add_u32 s58, s56, 4096
    s_mov_b32 m0, s57
    s_nop 0
    """)
    for i in range(4): a(f"buffer_load_dwordx4 v0, {srd(S_WS)}, s56 offen offset:{i*1024} sc1 lds")
    a("s_add_u32 m0, s57, 4096\ns_nop 0")
    for i in range(4): a(f"buffer_load_dwordx4 v0, {srd(S_WS)}, s58 offen offset:{i*1024} sc1 lds")
    a("s_waitcnt vmcnt(0)\ns_barrier")
    bufs = [2, 6, 10, 32, 36]
    for s in range(5): a(f"ds_read_b128 {vr(bufs[s],4)}, v0 offset:{s*1024}")
    for s in range(32):
        a(f"s_waitcnt lgkmcnt({min(4, 31-s)})")
        a(f"{MF} {vr(OACC2,16)}, {vr(WO+4*s,4)}, {vr(bufs[s%5],4)}, {'0' if s==0 else vr(OACC2,16)}")
        if s + 5 < 32: a(f"ds_read_b128 {vr(bufs[s%5],4)}, v0 offset:{(s+5)*1024}")
    op_store(colbase)

QF, NEG, OA_, SB = [2, 120], [16, 124], [32, 140], [48, 64]
PA, PB = 80, 84
KF = [96, 100]
VF = [[104, 108], [112, 116]]
VKA, VVA, VSY = 6, 7, 8

def att_ids():
    a(f"""
    s_lshl_b32 s58, s4, 2
    s_and_b32 s50, s5, 3
    s_add_u32 s58, s58, s50
    s_lshr_b32 s59, s5, 2
    s_lshl_b32 s59, s59, 3
    s_and_b32 s50, s3, 3
    s_lshl_b32 s50, s50, 1
    s_add_u32 s59, s59, s50
    s_lshr_b32 s60, s3, 2
    v_lshlrev_b32 v{VKA}, 4, v1
    """)

def q_load():
    a(f"""
    s_lshl_b32 s56, s58, 16
    s_lshl_b32 s57, s59, 10
    s_add_u32 s56, s56, s57
    buffer_load_dwordx4 {vr(QF[0],4)}, v{VKA}, {srd(S_WS)}, s56 offen sc1
    buffer_load_dwordx4 {vr(QF[1],4)}, v{VKA}, {srd(S_WS)}, s56 offen offset:1024 sc1
    """)

def kv_dma(vlane16, shead, swave, first_kb, n_per_wave):
    a(f"""
    s_lshl_b32 s56, s{shead}, 17
    s_mul_i32 s57, s{swave}, {n_per_wave*1024}
    s_add_u32 s57, s57, {first_kb*1024}
    s_add_u32 s56, s56, s57
    s_add_u32 s56, s56, {WS_KV}
    """)
    for i in range(n_per_wave):
        if i % 4 == 0:
            a(f"s_add_u32 m0, s57, {i*1024}\ns_add_u32 s55, s56, {i*1024}")
        a(f"buffer_load_dwordx4 v{vlane16}, {srd(S_WS)}, s55 offen offset:{(i%4)*1024} sc1 lds")

def rowmax(S):
    a(f"v_max3_f32 v11, v{S}, v{S+1}, v{S+2}")
    for i in range(3, 15, 2): a(f"v_max3_f32 v11, v11, v{S+i}, v{S+i+1}")
    a(f"v_max_f32 v11, v11, v{S+15}")

def finish_negm(N):
    a(f"""
    v_mov_b32 v12, v11
    s_nop 1
    v_permlane32_swap_b32 v11, v12
    s_nop 1
    v_max_f32 v11, v11, v12
    v_sub_f32 v11, 0, v11
    """)
    for i in range(16): a(f"v_mov_b32 v{N+i}, v11")

def toff(u): return u * 2048 if u < 4 else 16384 + (u - 4) * 2048

def att_pre(early=False):
    a(f"""
    v_lshrrev_b32 v{VVA}, 5, v1
    v_lshlrev_b32 v{VVA}, 8, v{VVA}
    v_and_b32 v9, 15, v1
    v_lshlrev_b32 v9, 4, v9
    v_add_u32 v{VVA}, v{VVA}, v9
    v_add_u32 v{VVA}, 1024, v{VVA}
    v_and_b32 v{VSY}, 3, v1
    v_lshlrev_b32 v{VSY}, 2, v{VSY}
    v_add_u32 v{VSY}, {SYNC}, v{VSY}
    s_lshl_b32 s50, s60, 13
    v_add_u32 v13, s50, v{VKA}
    v_add_u32 v14, s50, v{VVA}
    """)
    for sx in range(2):
        for u in range(2):
            for i in range(4): a(f"v_mov_b32 v{VF[sx][u]+i}, 0")
    a("s_mov_b32 exec_lo, 0x110000\ns_mov_b32 exec_hi, 0x110000")
    for sx in range(2):
        for u in range(2):
            for i in range(4): a(f"v_mov_b32 v{VF[sx][u]+i}, 0x3f803f80")
    a("s_mov_b64 exec, -1")
    for q in range(2):
        for i in range(16): a(f"v_mov_b32 v{OA_[q]+i}, 0")

def attention():
    a(f"v_mov_b32 v15, {SYNC+128}")
    lds_wait(15, 0, 10)
    stamp(5)
    q_load()
    lds_wait(VSY, 48, 10)
    stamp(6)
    a(f"""
    ds_read_b128 {vr(88,4)}, v{VKA}
    ds_read_b128 {vr(KF[0],4)}, v13
    ds_read_b128 {vr(KF[1],4)}, v13 offset:2048
    s_mov_b64 exec, s[{MLO}:{MLO+1}]
    ds_read_b128 {vr(VF[0][0],4)}, v14
    ds_read_b128 {vr(VF[0][1],4)}, v14 offset:512
    s_mov_b64 exec, -1
    s_waitcnt vmcnt(0) lgkmcnt(4)
    {MF} {vr(SB[0],16)}, {vr(88,4)}, {vr(QF[0],4)}, 0
    {MF} {vr(SB[1],16)}, {vr(88,4)}, {vr(QF[1],4)}, 0
    """)
    LNFA = a.newlabel("nofa")
    a(f"s_cmp_eq_u32 s{TYPE}, 0\ns_cbranch_scc1 {LNFA}")
    set_flag(44, 10, 11)
    a.label(LNFA)
    a.nop(10)
    for q in range(2):
        rowmax(SB[q]); finish_negm(NEG[q])
    a(f"s_mov_b32 s62, 0\ns_waitcnt lgkmcnt(3)\n{MF} {vr(SB[0],16)}, {vr(KF[0],4)}, {vr(QF[0],4)}, {vr(NEG[0],16)}")
    stamp(7)
    cstamp(9, True)
    a.nop(8)
    LOOP = a.newlabel("att_loop"); LS1 = a.newlabel("att_s1"); LS2 = a.newlabel("att_s2"); LB = a.newlabel("att_body")
    a(".p2align 6")
    a.label(LOOP)
    a(f"s_cmp_eq_u32 s62, 1\ns_cbranch_scc1 {LS1}\ns_cmp_eq_u32 s62, 4\ns_cbranch_scc1 {LS2}")
    a.label(LB)
    step = 0
    for tl in range(4):
        kb = tl & 1
        for q in range(2):
            S = SB[q]; Sn = SB[q ^ 1]
            e = lambda i: f"v_exp_f32 v{S+i}, v{S+i}"
            c = lambda i: f"v_cvt_pk_bf16_f32 v{PA+i}, v{S+2*i}, v{S+2*i+1}"
            last = q == 1; first = q == 0
            nk = KF[kb ^ 1] if last else KF[kb]
            pv = VF[kb ^ 1] if first else VF[kb]
            if last: a("s_waitcnt lgkmcnt(2)")
            a(f"{MF} {vr(Sn,16)}, {vr(nk,4)}, {vr(QF[q^1],4)}, {vr(NEG[q^1],16)}")
            if last: a(f"ds_read_b128 {vr(KF[kb],4)}, v13 offset:{toff(tl+2)}")
            for i in range(4): a(e(i))
            a(f"{MF} {vr(OA_[q^1],16)}, {vr(pv[1],4)}, {vr(PB,4)}, {vr(OA_[q^1],16)}")
            if first:
                a(f"s_mov_b64 exec, s[{MLO}:{MLO+1}]")
                a(f"ds_read_b128 {vr(VF[kb^1][0],4)}, v14 offset:{toff(tl+1)}")
                a(f"ds_read_b128 {vr(VF[kb^1][1],4)}, v14 offset:{toff(tl+1)+512}")
                a("s_mov_b64 exec, -1")
            for x in [c(0), e(4), e(5), c(1), e(6), e(7), c(2), e(8), c(3), e(9), e(10)]: a(x)
            if first: a("s_waitcnt lgkmcnt(3)")
            a(f"{MF} {vr(OA_[q],16)}, {vr(VF[kb][0],4)}, {vr(PA,4)}, {vr(OA_[q],16)}")
            for x in [e(11), c(4), e(12), e(13), c(5), e(14), e(15), c(6), c(7)]: a(x)
    a(f"""
    v_add_u32 v13, 16384, v13
    v_add_u32 v14, 16384, v14
    s_add_u32 s62, s62, 1
    s_cmp_lt_u32 s62, 8
    s_cbranch_scc1 {LOOP}
    {MF} {vr(OA_[1],16)}, {vr(VF[1][1],4)}, {vr(PB,4)}, {vr(OA_[1],16)}
    """)
    stamp(8)
    cstamp(9, False)
    lds_wait(VSY, 32, 10)
    LK1 = a.newlabel("kh1"); LKD = a.newlabel("khd")
    a(f"""
    s_mul_i32 s56, s3, 2304
    s_add_u32 s56, s56, {AREG}
    s_xor_b32 s57, s3, 4
    s_mul_i32 s57, s57, 2304
    s_add_u32 s57, s57, {AREG}
    v_add_u32 v10, s56, v{VKA}
    v_add_u32 v11, s57, v{VKA}
    v_lshlrev_b32 v12, 2, v1
    v_add_u32 v9, s57, v12
    v_add_u32 v12, s56, v12
    s_cmp_eq_u32 s60, 0
    s_cbranch_scc0 {LK1}
    ds_write_b128 v10, {vr(OA_[1],4)}
    ds_write_b128 v10, {vr(OA_[1]+4,4)} offset:1024
    ds_write_b32 v12, v{OA_[1]+8} offset:2048
    s_branch {LKD}
    """)
    a.label(LK1)
    a(f"""
    ds_write_b128 v10, {vr(OA_[0],4)}
    ds_write_b128 v10, {vr(OA_[0]+4,4)} offset:1024
    ds_write_b32 v12, v{OA_[0]+8} offset:2048
    s_nop 0
    """)
    for i in range(9): a(f"v_mov_b32 v{OA_[0]+i}, v{OA_[1]+i}")
    for i in range(4): a(f"v_mov_b32 v{QF[0]+i}, v{QF[1]+i}")
    a.label(LKD)
    a(f"""
    s_lshl_b32 s56, s3, 2
    s_add_u32 s56, s56, {SYNC+64}
    s_xor_b32 s57, s56, 16
    s_add_u32 s59, s59, s60
    s_waitcnt lgkmcnt(0)
    """)
    lds_set(56, 0, 13, 14)
    a("v_mov_b32 v15, s57")
    lds_wait(15, 0, 13)
    O = OA_[0]
    a(f"""
    ds_read_b128 {vr(48,4)}, v11
    ds_read_b128 {vr(52,4)}, v11 offset:1024
    ds_read_b32 v56, v9 offset:2048
    v_mov_b32 v10, {f2u(2.0**60)}
    s_waitcnt lgkmcnt(0)
    """)
    for i in range(9): a(f"v_add_f32 v{O+i}, v{O+i}, v{48+i}")
    LOK = a.newlabel("att_ok"); LFB = a.newlabel("att_fb")
    a(f"v_fma_f32 v11, v{O}, 0, v{O+8}")
    for i in range(1, 8): a(f"v_fma_f32 v11, v{O+i}, 0, v11")
    a(f"v_cmp_nlt_f32 vcc, v11, v10")
    a(f"s_nop 1\ns_cmp_eq_u64 vcc, 0\ns_cbranch_scc0 {LFB}")
    a.label(LOK)
    a(f"v_rcp_f32 v10, v{O+8}\ns_lshl_b32 s56, s59, 15\ns_lshl_b32 s57, s58, 10\ns_add_u32 s56, s56, s57\ns_add_u32 s56, s56, {WS_OB}")
    for i in range(8): a(f"v_mul_f32 v{O+i}, v{O+i}, v10")
    for i in range(4): a(f"v_cvt_pk_bf16_f32 v{PA+i}, v{O+2*i}, v{O+2*i+1}")
    a(f"buffer_store_dwordx4 {vr(PA,4)}, v{VKA}, {srd(S_WS)}, s56 offen sc1")
    a(f"s_lshl_b32 s56, s59, 7\ns_lshl_b32 s57, s58, 2\ns_add_u32 s56, s56, s57\ns_add_u32 s56, s56, {FB2}\ns_waitcnt vmcnt(0)")
    set_flag(56, 10, 11)
    dump_stamps()
    a("s_endpgm")
    a.label(LS1)
    lds_wait(VSY, 0, 10)
    a(f"s_branch {LB}")
    a.label(LS2)
    lds_wait(VSY, 16, 10)
    a(f"s_branch {LB}")
    a.label(LFB)
    LM = a.newlabel("att_mx"); LP = a.newlabel("att_p2")
    S = SB[0]
    a(f"v_mov_b32 v13, v{VKA}\nv_mov_b32 v15, 0xff800000\ns_mov_b32 s62, 0")
    a.label(LM)
    a(f"ds_read_b128 {vr(KF[0],4)}, v13\ns_waitcnt lgkmcnt(0)")
    a(f"{MF} {vr(S,16)}, {vr(KF[0],4)}, {vr(QF[0],4)}, 0")
    a.nop(12)
    rowmax(S)
    a(f"""
    v_max_f32 v15, v15, v11
    v_add_u32 v13, 2048, v13
    s_add_u32 s62, s62, 1
    s_cmp_lt_u32 s62, 64
    s_cbranch_scc1 {LM}
    v_mov_b32 v11, v15
    """)
    finish_negm(NEG[0])
    for i in range(16): a(f"v_mov_b32 v{O+i}, 0")
    a(f"v_mov_b32 v13, v{VKA}\nv_mov_b32 v14, v{VVA}\ns_mov_b32 s62, 0")
    a.label(LP)
    a(f"""
    ds_read_b128 {vr(KF[0],4)}, v13
    s_mov_b64 exec, s[{MLO}:{MLO+1}]
    ds_read_b128 {vr(VF[0][0],4)}, v14
    ds_read_b128 {vr(VF[0][1],4)}, v14 offset:512
    s_mov_b64 exec, -1
    s_waitcnt lgkmcnt(0)
    {MF} {vr(S,16)}, {vr(KF[0],4)}, {vr(QF[0],4)}, {vr(NEG[0],16)}
    """)
    a.nop(12)
    for i in range(16): a(f"v_exp_f32 v{S+i}, v{S+i}")
    a("s_nop 0")
    for i in range(8): a(f"v_cvt_pk_bf16_f32 v{PA+i}, v{S+2*i}, v{S+2*i+1}")
    a(f"""
    v_add_u32 v13, 2048, v13
    v_add_u32 v14, 2048, v14
    {MF} {vr(O,16)}, {vr(VF[0][0],4)}, {vr(PA,4)}, {vr(O,16)}
    {MF} {vr(O,16)}, {vr(VF[0][1],4)}, {vr(PB,4)}, {vr(O,16)}
    s_add_u32 s62, s62, 1
    s_cmp_lt_u32 s62, 64
    s_cbranch_scc1 {LP}
    """)
    a.nop(12)
    a(f"s_branch {LOK}")

kernels = []
def exit_label(k):
    a.label(f"L_exit_{k}")
    a("s_endpgm")

a('.amdgcn_target "amdgcn-amd-amdhsa--gfx950"\n.text')
k = NAME + "_kernel"
kernels = [k]
prologue(k)
LG2 = a.newlabel("g2"); LTA = a.newlabel("typeA"); LATT = a.newlabel("att")
a(f"s_cmp_ge_u32 s3, 8\ns_cbranch_scc1 {LG2}")
publish_tag()
gemm_setup()
if "gprio" in sys.argv:
    LPR = a.newlabel("gp")
    a(f"s_cmp_ge_u32 s3, 4\ns_cbranch_scc1 {LPR}\ns_setprio 2")
    a.label(LPR)
a(f"s_cmp_lg_u32 s{TYPE}, 0\ns_cbranch_scc1 {LTA}")
gemm_main(True)
stamp(2)
cstamp(9, False)
if any(x in sys.argv for x in ("x0","x1","x2","x3")):
    dump_stamps()
    a("s_endpgm")
tag_from(9)
b_epilogue()
att_ids()
att_pre(early=True)
a(f"s_lshl_b32 s56, s3, 2\ns_add_u32 s56, s56, {SYNC+96}\ns_waitcnt vmcnt(0)")
lds_set(56, 0, 10, 11)
a(f"s_branch {LATT}")
a.label(LTA)
gemm_main(False)
stamp(2)
cstamp(9, False)
if any(x in sys.argv for x in ("x0","x1","x2","x3")):
    dump_stamps()
    a("s_endpgm")
tag_from(9)
a_local()
att_ids()
att_pre(early=True)
a.label(LATT)
stamp(3)
for i in range(4): a(f"v_mov_b32 v{PB+i}, 0")
stamp(4)
attention()
a.label(LG2)
a("s_sub_u32 s51, s3, 8\ns_setprio 3")
loader()
a(f"""
s_lshl_b32 s61, s4, 2
s_and_b32 s50, s5, 3
s_add_u32 s61, s61, s50
v_lshlrev_b32 v2, 4, v1
s_lshl_b32 s62, s51, 2
s_add_u32 s62, s62, {SYNC}
s_barrier
""")
if any(x in sys.argv for x in ("x0","x1","x2","x3")):
    dump_stamps()
    a("s_endpgm")
LNE2 = a.newlabel("noe2")
a(f"s_cmp_eq_u32 s{TYPE}, 0\ns_cbranch_scc1 {LNE2}\ns_barrier")
a.label(LNE2)
stamp(2)
LW9 = a.newlabel("notw8"); LGO = a.newlabel("go"); LPA = a.newlabel("pollA")
a(f"v_and_b32 v12, 7, v1\nv_lshlrev_b32 v12, 2, v12\nv_add_u32 v12, {SYNC+96}, v12")
a(f"s_cmp_lg_u32 s51, 0\ns_cbranch_scc1 {LW9}")
a(f"s_cmp_lg_u32 s{TYPE}, 0\ns_cbranch_scc1 {LPA}")
lds_wait(12, 0, 11)
a(f"s_lshl_b32 s56, s7, 7\ns_lshl_b32 s57, s6, 2\ns_add_u32 s56, s56, s57\ns_add_u32 s56, s56, {FB1}")
set_flag(56, 10, 11)
a.label(LPA)
stamp(1)
a(f"v_and_b32 v10, 15, v1\nv_lshlrev_b32 v10, 2, v10\ns_lshl_b32 s56, s4, 7\ns_add_u32 s56, s56, {FB1}")
poll(10, 56, 11, 6)
lds_set(62, 128, 3, 4)
a(f"s_branch {LGO}")
a.label(LW9)
a(f"v_mov_b32 v10, {SYNC+128}")
lds_wait(10, 0, 11)
a.label(LGO)
stamp(3)
kv_dma(2, 61, 51, 0, 8)
a("s_waitcnt vmcnt(0)")
lds_set(62, 48, 3, 4)
kv_dma(2, 61, 51, 32, 12)
lds_wait(12, 0, 11)
kv_dma(2, 61, 51, 80, 12)
a("s_waitcnt vmcnt(12)")
lds_set(62, 0, 3, 4)
a("s_waitcnt vmcnt(0)")
lds_set(62, 16, 3, 4)
stamp(10)
op_setup()
wo_preload(S_AWO)
stamp(4)
outproj_direct(WS_OA, FA, 16, 0, True)
stamp(6)
wo_preload(S_BWO)
a(f"s_lshl_b32 s56, s51, 2\ns_add_u32 s56, s56, {SYNC}")
lds_set(56, 32, 2, 3)
stamp(7)
outproj_lds(WS_OB, FB2, 32, 512, True)
dump_stamps()
a("s_endpgm")
exit_label(k)

hdr = open(f"cdna_kernels/{NAME}.s.ref").read().split("; Override")[0]
if True:
    hdr += f"; @launch grid=(256,1,1) block=(768,1,1) lds={LDS_BYTES}\n"
tail = '.section .rodata,"a"\n'
for k in kernels:
    tail += f""".p2align 6
.amdhsa_kernel {k}
  .amdhsa_next_free_vgpr 168
  .amdhsa_next_free_sgpr 96
  .amdhsa_accum_offset 168
  .amdhsa_group_segment_fixed_size 0
  .amdhsa_kernarg_size 72
  .amdhsa_user_sgpr_count 2
  .amdhsa_user_sgpr_kernarg_segment_ptr 1
  .amdhsa_system_sgpr_workgroup_id_x 1
.end_amdhsa_kernel
"""
probs = check(a.lines)
for p in probs: print(p)
open(OUT, "w").write(hdr + a.text() + tail)
print("wrote", OUT, len(a.lines), "lines;", len(probs), "hazards")
```

```python
import sys, math, struct
from asmlib import *

NAME = "concat_heads__sliding_local_dilated__softmax_full_mha__prompt"
OUT = sys.argv[1] if len(sys.argv) > 1 else f"cdna_kernels/{NAME}.s"
OPT = set(sys.argv[2:])

WS_Q = 0
WS_KV = 2 << 20
WS_OB = 6 << 20
WS_OA = 8 << 20
WS_HALO = 10 << 20
WS_FLAG = 12 << 20
FB1 = WS_FLAG
FB2 = WS_FLAG + (128 << 10)
FA = WS_FLAG + (384 << 10)
HF = WS_FLAG + (512 << 10)
WS_STAMP = 14 << 20
WS_SIZE = 16 << 20

SLOT = 32768
AREG = 0
AW = 7680
SYNC = 30720
KVB = 32768
LDS_BYTES = 163840

S_AX, S_AW, S_AWO, S_BX, S_BW, S_BWO, S_OUT, S_DBG, S_WS = 8, 12, 16, 20, 24, 28, 32, 36, 40
def srd(b): return f"s[{b}:{b+3}]"
TAG, ROT, MLO, MHI = 44, 45, 46, 48
QSCALE = 0.25 * math.log2(math.e)
def f2u(x): return struct.unpack("<I", struct.pack("<f", x))[0]
MF = "v_mfma_f32_32x32x16_bf16"
POLL_LIMIT = 30000

a = Asm()
YX = any(x in OPT for x in ("y0", "y1", "y2", "y3"))
STAMP = "stamp" in OPT
def stamp(i):
    if STAMP: a(f"s_memrealtime s[82:83]\ns_waitcnt lgkmcnt(0)\ns_mov_b32 s{84+i}, s82")
def cstamp(i, first):
    if STAMP:
        a("s_memtime s[82:83]\ns_waitcnt lgkmcnt(0)")
        a(f"s_mov_b32 s{84+i}, s82" if first else f"s_sub_u32 s{84+i}, s82, s{84+i}")
def dump_stamps():
    if STAMP:
        stamp(11)
        a(f"s_mul_i32 s82, s2, 12\ns_add_u32 s82, s82, s3\ns_lshl_b32 s82, s82, 6\ns_add_u32 s82, s82, {WS_STAMP}\nv_mov_b32 v1, 0\ns_mov_b64 exec, 1")
        for i in range(12): a(f"v_mov_b32 v{2+i}, s{84+i}")
        for i in range(3): a(f"buffer_store_dwordx4 v[{2+4*i}:{5+4*i}], v1, {srd(S_WS)}, s82 offen offset:{16*i}")

def prologue(kname):
    a(f".globl {kname}\n.p2align 8\n.type {kname},@function")
    a.label(kname)
    a(f"""
    s_cmp_ge_u32 s2, 256
    s_cbranch_scc1 L_exit
    s_load_dwordx16 s[64:79], s[0:1], 0
    s_load_dwordx2 s[80:81], s[0:1], 64
    v_lshrrev_b32 v2, 6, v0
    v_and_b32 v1, 63, v0
    s_and_b32 s4, s2, 7
    v_readfirstlane_b32 s3, v2
    s_lshr_b32 s5, s2, 3
    s_and_b32 s6, s4, 3
    s_lshl_b32 s6, s6, 3
    s_and_b32 s50, s5, 7
    s_add_u32 s6, s6, s50
    s_and_b32 s7, s4, 4
    s_lshr_b32 s50, s5, 3
    s_add_u32 s7, s7, s50
    s_lshl_b32 s50, s7, 1
    s_add_u32 s{ROT}, s6, s50
    s_and_b32 s{ROT}, s{ROT}, 7
    s_mov_b32 s{MLO}, 0xffff
    s_mov_b32 s{MLO+1}, 0xffff
    s_mov_b32 s{MHI}, 0xffff0000
    s_mov_b32 s{MHI+1}, 0xffff0000
    """)
    order = [S_AX, S_AW, S_AWO, S_BX, S_BW, S_BWO, S_OUT, S_DBG, S_WS]
    sizes = [2 << 20, 512 * 1536 * 2, 512 * 512 * 2, 2 << 20, 512 * 1536 * 2, 512 * 512 * 2, 4 << 20, 256, WS_SIZE]
    for b, sz in zip(order, sizes): a(f"s_mov_b32 s{b+2}, {sz}\ns_mov_b32 s{b+3}, 0x20000")
    a("s_waitcnt lgkmcnt(0)")
    for i, b in enumerate(order): a(f"s_mov_b64 s[{b}:{b+1}], s[{64+2*i}:{65+2*i}]")
    if STAMP:
        for i in range(12): a(f"s_mov_b32 s{84+i}, 0")
    stamp(0)

def publish_tag():
    L = a.newlabel("notag")
    a(f"""
    s_or_b32 s50, s2, s3
    s_cmp_lg_u32 s50, 0
    s_cbranch_scc1 {L}
    s_memrealtime s[52:53]
    v_mov_b32 v3, 0
    s_waitcnt lgkmcnt(0)
    s_or_b32 s52, s52, 1
    v_mov_b32 v2, s52
    s_mov_b64 exec, 1
    buffer_store_dword v2, v3, {srd(S_DBG)}, 0 offen sc1
    s_mov_b64 exec, -1
    """)
    a.label(L)

def tag_from(v, vz):
    L = a.newlabel("gt"); D = a.newlabel("gtd")
    a(f"s_mov_b32 s50, {POLL_LIMIT}")
    a.label(L)
    a(f"""
    v_readfirstlane_b32 s{TAG}, v{v}
    s_nop 1
    s_cmp_lg_u32 s{TAG}, 0
    s_cbranch_scc1 {D}
    s_sleep 4
    buffer_load_dword v{v}, v{vz}, {srd(S_DBG)}, 0 offen sc1
    s_sub_u32 s50, s50, 1
    s_cmp_lg_u32 s50, 0
    s_waitcnt vmcnt(0)
    s_cbranch_scc1 {L}
    """)
    a.label(D)

def poll(voff, soff, vt, slp):
    L = a.newlabel("pl"); D = a.newlabel("pld")
    a(f"s_mov_b32 s50, {POLL_LIMIT}")
    a.label(L)
    a(f"""
    buffer_load_dword v{vt}, v{voff}, {srd(S_WS)}, s{soff} offen sc1
    s_waitcnt vmcnt(0)
    v_cmp_ne_u32 vcc, s{TAG}, v{vt}
    s_nop 1
    s_cmp_eq_u64 vcc, 0
    s_cbranch_scc1 {D}
    s_sleep {slp}
    s_sub_u32 s50, s50, 1
    s_cmp_lg_u32 s50, 0
    s_cbranch_scc1 {L}
    """)
    a.label(D)

def poll2(voff, soff, vt):
    L = a.newlabel("pl"); D = a.newlabel("pld")
    ld = lambda v: f"buffer_load_dword v{v}, v{voff}, {srd(S_WS)}, s{soff} offen sc1"
    a(f"s_mov_b32 s50, {POLL_LIMIT}\n{ld(vt)}\ns_sleep 6")
    a.label(L)
    for k in range(2):
        a(f"""
        {ld(vt + (k ^ 1))}
        s_waitcnt vmcnt(1)
        v_cmp_ne_u32 vcc, s{TAG}, v{vt + k}
        s_nop 1
        s_cmp_eq_u64 vcc, 0
        s_cbranch_scc1 {D}
        """)
    a(f"s_sub_u32 s50, s50, 1\ns_cmp_lg_u32 s50, 0\ns_cbranch_scc1 {L}")
    a.label(D)

def lds_wait(vaddr, off, vt):
    L = a.newlabel("lw"); D = a.newlabel("lwd")
    a("s_mov_b32 s50, 0x80000")
    a.label(L)
    a(f"""
    ds_read_b32 v{vt}, v{vaddr} offset:{off}
    s_waitcnt lgkmcnt(0)
    v_cmp_ne_u32 vcc, s{TAG}, v{vt}
    s_nop 1
    s_cmp_eq_u64 vcc, 0
    s_cbranch_scc1 {D}
    s_sleep 1
    s_sub_u32 s50, s50, 1
    s_cmp_lg_u32 s50, 0
    s_cbranch_scc1 {L}
    """)
    a.label(D)

def lds_set(saddr, off, vt, va):
    a(f"""
    v_mov_b32 v{vt}, s{TAG}
    v_mov_b32 v{va}, s{saddr}
    s_mov_b64 exec, 1
    ds_write_b32 v{va}, v{vt} offset:{off}
    s_mov_b64 exec, -1
    """)

def set_flag(soff, vt, vz):
    a(f"""
    v_mov_b32 v{vt}, s{TAG}
    v_mov_b32 v{vz}, 0
    s_mov_b64 exec, 1
    buffer_store_dword v{vt}, v{vz}, {srd(S_WS)}, s{soff} offen sc1
    s_mov_b64 exec, -1
    """)

def loader():
    a(f"""
    s_sub_u32 s51, s3, 4
    v_lshrrev_b32 v14, 3, v1
    v_and_b32 v15, 7, v1
    v_lshlrev_b32 v16, 1, v14
    v_and_b32 v16, 4, v16
    v_xor_b32 v16, v15, v16
    v_lshlrev_b32 v16, 4, v16
    v_mul_u32_u24 v13, 3072, v14
    v_add_u32 v13, v13, v16
    s_and_b32 s50, s51, 1
    s_lshl_b32 s50, s50, 2
    v_lshrrev_b32 v16, 4, v1
    v_add_u32 v16, s50, v16
    v_xor_b32 v15, v15, v16
    v_lshlrev_b32 v15, 4, v15
    v_lshlrev_b32 v14, 10, v14
    v_add_u32 v12, v14, v15
    s_lshl_b32 s52, s51, 10
    s_lshl_b32 s53, s6, 16
    s_lshl_b32 s50, s51, 13
    s_add_u32 s53, s53, s50
    s_mul_i32 s54, s51, 24576
    s_lshl_b32 s55, s7, 7
    s_add_u32 s54, s54, s55
    s_mul_i32 s55, s51, 3072
    s_add_u32 s55, s55, 8192
    v_mov_b32 v17, 0
    """)
    q = []
    def cload(c):
        sx, sw = (S_BX, S_BW) if c < 8 else (S_AX, S_AW)
        sl = (c % 5) * SLOT
        a(f"""
        s_add_u32 s56, s{ROT}, {c & 7}
        s_and_b32 s56, s56, 7
        s_lshl_b32 s57, s56, 7
        s_add_u32 s57, s57, s53
        s_mul_i32 s56, s56, {64*3072}
        s_add_u32 s56, s56, s54
        """)
        for i in range(2):
            a(f"s_add_u32 m0, s52, {sl + i*4096}\ns_add_u32 s58, s57, {i*32768}")
            a(f"buffer_load_dwordx4 v12, {srd(sx)}, s58 offen lds")
        for hh in range(2):
            a(f"s_add_u32 m0, s55, {sl + hh*4*3072}\ns_add_u32 s58, s56, {hh*32*3072}")
            for p in range(3):
                a(f"buffer_load_dwordx4 v13, {srd(sw)}, s58 offen offset:{p*1024} lds")
        q.extend([c] * 8)
    for c in range(3): cload(c)
    stamp(1)
    for c in range(16):
        last = max(i for i, e in enumerate(q) if e == c)
        a(f"s_waitcnt vmcnt({len(q) - 1 - last})\ns_barrier")
        if c + 3 < 16: cload(c + 3)
        if c == 6:
            a(f"buffer_load_dword v16, v17, {srd(S_DBG)}, 0 offen sc1"); q.append(-1)
    tag_from(16, 17)

ACCQ, ACCK, ACCV = 16, 32, 48
FR = [64, 80, 96]
XA, WA = 112, 124

def gemm_setup():
    a(f"""
    s_and_b32 s52, s51, 1
    s_lshr_b32 s53, s51, 1
    v_and_b32 v2, 31, v1
    v_lshrrev_b32 v3, 5, v1
    v_and_b32 v4, 15, v1
    s_lshl_b32 s50, s52, 12
    v_lshlrev_b32 v5, 7, v2
    v_add_u32 v5, s50, v5
    v_lshrrev_b32 v7, 1, v4
    """)
    for ss in range(4):
        a(f"""
        v_add_u32 v6, {2*ss}, v3
        v_xor_b32 v6, v6, v7
        v_lshlrev_b32 v6, 4, v6
        v_add_u32 v{XA+ss}, v5, v6
        v_add_u32 v{XA+4+ss}, {2*SLOT}, v{XA+ss}
        v_add_u32 v{XA+8+ss}, {4*SLOT}, v{XA+ss}
        """)
    a(f"""
    v_mul_u32_u24 v6, 3072, v3
    v_lshrrev_b32 v7, 2, v4
    v_lshlrev_b32 v8, 7, v7
    v_add_u32 v6, v6, v8
    v_lshrrev_b32 v7, 1, v7
    v_xor_b32 v7, s53, v7
    v_lshlrev_b32 v7, 6, v7
    v_add_u32 v6, v6, v7
    v_and_b32 v7, 16, v1
    v_lshlrev_b32 v7, 1, v7
    v_add_u32 v6, v6, v7
    v_and_b32 v7, 3, v1
    v_lshlrev_b32 v7, 3, v7
    v_add_u32 v6, v6, v7
    v_add_u32 v{WA}, 8192, v6
    v_add_u32 v{WA+1}, {8192+2*SLOT}, v6
    v_add_u32 v{WA+2}, {8192+4*SLOT}, v6
    v_mov_b32 v10, 0
    s_lshl_b32 s54, s6, 1
    s_add_u32 s54, s54, s52
    """)

def gemm_main(c0, vtrans):
    def reads(n, f):
        c = c0 + (n >> 2); ss = n & 3
        slot = c % 5
        hi = slot >> 1
        off = (slot & 1) * SLOT
        r = [f"ds_read_b128 {vr(f,4)}, v{XA+4*hi+ss} offset:{off}"]
        for p in range(3):
            r.append(f"ds_read_b64_tr_b16 {vr(f+4+4*p,2)}, v{WA+hi} offset:{off+ss*6144+p*1024}")
            r.append(f"ds_read_b64_tr_b16 {vr(f+6+4*p,2)}, v{WA+hi} offset:{off+ss*6144+p*1024+512}")
        return r
    def mfmas(f, first):
        c = lambda r: "0" if first else vr(r, 16)
        m = [f"{MF} {vr(ACCK,16)}, {vr(f+8,4)}, {vr(f,4)}, {c(ACCK)}"]
        if vtrans: m.append(f"{MF} {vr(ACCV,16)}, {vr(f,4)}, {vr(f+12,4)}, {c(ACCV)}")
        else: m.append(f"{MF} {vr(ACCV,16)}, {vr(f+12,4)}, {vr(f,4)}, {c(ACCV)}")
        m.append(f"{MF} {vr(ACCQ,16)}, {vr(f+4,4)}, {vr(f,4)}, {c(ACCQ)}")
        return m
    for x in reads(0, FR[0]) + reads(1, FR[1]): a(x)
    for n in range(32):
        n2 = n + 2
        m = mfmas(FR[n % 3], n == 0)
        a(f"s_waitcnt lgkmcnt({7 if n < 31 else 0})")
        if n == 31 and c0 == 8: a("s_barrier")
        r = reads(n2, FR[n2 % 3]) if n2 < 32 else []
        if "y2" in OPT: m = ["s_nop 0"] * 3
        if "y3" in OPT: m = ["s_nop 0"] * 3; r = []
        a(m[0])
        if n == 12: a(f"buffer_load_dword v9, v10, {srd(S_DBG)}, 0 offen sc1")
        if (n2 & 3) == 0 and (n2 < 32 or (n2 == 32 and c0 == 0)): a("s_barrier")
        for x in r[0:3]: a(x)
        a(m[1])
        for x in r[3:5]: a(x)
        a(m[2])
        for x in r[5:7]: a(x)

def b_addr():
    a(f"""
    s_lshl_b32 s55, s7, 2
    s_lshl_b32 s56, s53, 1
    s_add_u32 s55, s55, s56
    s_lshl_b32 s56, s55, 16
    s_lshl_b32 s57, s54, 10
    s_add_u32 s56, s56, s57
    s_add_u32 s57, s56, 65536
    s_lshl_b32 s58, s55, 17
    s_lshl_b32 s59, s54, 11
    s_add_u32 s58, s58, s59
    s_add_u32 s58, s58, {WS_KV}
    s_add_u32 s59, s58, 131072
    v_lshlrev_b32 v2, 4, v1
    v_and_b32 v3, 16, v1
    v_lshlrev_b32 v3, 13, v3
    v_lshrrev_b32 v4, 5, v1
    v_lshlrev_b32 v4, 8, v4
    v_add_u32 v3, v3, v4
    v_and_b32 v4, 15, v1
    v_lshlrev_b32 v4, 4, v4
    v_add_u32 v3, v3, v4
    s_mov_b32 s60, {f2u(QSCALE)}
    """)

def b_epilogue():
    a("s_waitcnt vmcnt(0)")
    tag_from(9, 10)
    a.nop(3)
    for i in range(8): a(f"v_cvt_pk_bf16_f32 v{64+i}, v{ACCK+2*i}, v{ACCK+2*i+1}")
    a(f"buffer_store_dwordx4 v[64:67], v2, {srd(S_WS)}, s58 offen sc1")
    a(f"buffer_store_dwordx4 v[68:71], v2, {srd(S_WS)}, s59 offen sc1")
    for i in range(8): a(f"v_cvt_pk_bf16_f32 v{72+i}, v{ACCV+2*i}, v{ACCV+2*i+1}")
    a(f"buffer_store_dwordx4 v[72:75], v3, {srd(S_WS)}, s58 offen offset:1024 sc1")
    a(f"buffer_store_dwordx4 v[76:79], v3, {srd(S_WS)}, s58 offen offset:1536 sc1")
    a("s_barrier")
    for i in range(8): a(f"v_cvt_pk_bf16_f32 v{80+i}, v{ACCQ+2*i}, v{ACCQ+2*i+1}")
    for i in range(8):
        a(f"v_lshlrev_b32 v{ACCQ+2*i}, 16, v{80+i}\nv_and_b32 v{ACCQ+2*i+1}, 0xffff0000, v{80+i}")
    for i in range(16): a(f"v_mul_f32 v{ACCQ+i}, s60, v{ACCQ+i}")
    for i in range(8): a(f"v_cvt_pk_bf16_f32 v{80+i}, v{ACCQ+2*i}, v{ACCQ+2*i+1}")
    a(f"buffer_store_dwordx4 v[80:83], v2, {srd(S_WS)}, s56 offen sc1")
    a(f"buffer_store_dwordx4 v[84:87], v2, {srd(S_WS)}, s57 offen sc1")

Q8, K8, V8 = 64, 72, 80
def a_local_front():
    a(f"""
    s_lshl_b32 s55, s7, 1
    s_add_u32 s55, s55, s53
    s_lshl_b32 s56, s6, 4
    s_add_u32 s56, s56, s55
    s_mul_i32 s57, s53, 12800
    s_mul_i32 s58, s52, 2560
    s_add_u32 s57, s57, s58
    v_and_b32 v2, 31, v1
    v_lshrrev_b32 v3, 5, v1
    v_mul_u32_u24 v4, 80, v2
    v_mul_u32_u24 v5, 6400, v3
    v_add_u32 v4, v4, v5
    v_add_u32 v4, s57, v4
    v_and_b32 v5, 15, v1
    v_lshlrev_b32 v5, 4, v5
    v_lshlrev_b32 v6, 8, v3
    v_add_u32 v5, v5, v6
    s_lshl_b32 s58, s56, 11
    s_add_u32 s58, s58, {WS_HALO}
    s_lshl_b32 s59, s56, 7
    s_add_u32 s59, s59, {HF}
    s_lshl_b32 s60, s53, 2
    s_add_u32 s60, s60, {SYNC+112}
    """)
    for dst, acc in ((K8, ACCK), (V8, ACCV)):
        for i in range(8): a(f"v_cvt_pk_bf16_f32 v{dst+i}, v{acc+2*i}, v{acc+2*i+1}")
    for dst in (K8, V8):
        a("s_nop 0")
        for t in range(4): a(f"v_permlane32_swap_b32 v{dst+t}, v{dst+4+t}")
    for i in range(4): a(f"ds_write_b128 v4, {vr(K8+4*i,4)} offset:{1280+16*i}")
    LNH = a.newlabel("nohs"); LHD = a.newlabel("hsd")
    a(f"s_cmp_lg_u32 s52, 1\ns_cbranch_scc1 {LNH}")
    a(f"s_mov_b64 exec, s[{MHI}:{MHI+1}]")
    for i in range(4): a(f"buffer_store_dwordx4 {vr(K8+4*i,4)}, v5, {srd(S_WS)}, s58 offen offset:{512*i} sc1")
    a(f"s_mov_b64 exec, -1\ns_branch {LHD}")
    a.label(LNH)
    a("s_waitcnt lgkmcnt(0)")
    lds_set(60, 0, 6, 7)
    a.label(LHD)
    for i in range(8): a(f"v_cvt_pk_bf16_f32 v{Q8+i}, v{ACCQ+2*i}, v{ACCQ+2*i+1}")
    a("s_nop 0")
    for t in range(4): a(f"v_permlane32_swap_b32 v{Q8+t}, v{Q8+4+t}")

def a_local_back():
    KB = 88; LG = 144
    PLO, PHI, OACC = 16, 24, 32
    LZ = a.newlabel("hz"); LD = a.newlabel("hd"); LN0 = a.newlabel("nohl"); LN1 = a.newlabel("hl1")
    a(f"s_cmp_lg_u32 s52, 0\ns_cbranch_scc1 {LN1}")
    a(f"s_cmp_eq_u32 s54, 0\ns_cbranch_scc1 {LZ}")
    a(f"s_sub_u32 s59, s59, 2048\ns_sub_u32 s58, s58, {16*2048}\nv_mov_b32 v7, 0")
    poll(7, 59, 6, 8)
    a(f"s_mov_b64 exec, s[{MLO}:{MLO+1}]")
    for i in range(4): a(f"buffer_load_dwordx4 {vr(KB+4*i,4)}, v5, {srd(S_WS)}, s58 offen offset:{512*i} sc1")
    a(f"s_waitcnt vmcnt(0)\ns_branch {LD}")
    a.label(LZ)
    a(f"s_mov_b64 exec, s[{MLO}:{MLO+1}]")
    for i in range(16): a(f"v_mov_b32 v{KB+i}, 0")
    a.label(LD)
    for i in range(4): a(f"ds_write_b128 v4, {vr(KB+4*i,4)} offset:{16*i}")
    a(f"s_mov_b64 exec, -1\ns_waitcnt lgkmcnt(0)\ns_branch {LN0}")
    a.label(LN1)
    a("v_mov_b32 v7, s60")
    lds_wait(7, 0, 6)
    a.label(LN0)
    for w in range(1, 8):
        a(f"ds_read_b128 {vr(KB+8*(w-1),4)}, v4 offset:{1280-160*w}")
        a(f"ds_read_b128 {vr(KB+8*(w-1)+4,4)}, v4 offset:{1280-160*w+16}")
    kreg = lambda w, i: (K8 + i) if w == 0 else (KB + 8 * (w - 1) + i)
    for i in range(8): a(f"v_dot2_f32_bf16 v{LG}, v{Q8+i}, v{kreg(0,i)}, {'0' if i==0 else f'v{LG}'}")
    for w in range(1, 8):
        a(f"s_waitcnt lgkmcnt({2*(7-w)})")
        for i in range(8): a(f"v_dot2_f32_bf16 v{LG+w}, v{Q8+i}, v{kreg(w,i)}, {'0' if i==0 else f'v{LG+w}'}")
    for w in range(1, 8):
        a(f"ds_read_b128 {vr(KB+8*(w-1),4)}, v4 offset:{1280-160*w+32}")
        a(f"ds_read_b128 {vr(KB+8*(w-1)+4,4)}, v4 offset:{1280-160*w+48}")
    for i in range(4): a(f"v_cvt_pk_bf16_f32 v{152+i}, v{LG+2*i}, v{LG+2*i+1}")
    for i in range(4): a(f"v_lshlrev_b32 v{LG+2*i}, 16, v{152+i}\nv_and_b32 v{LG+2*i+1}, 0xffff0000, v{152+i}")
    LM = a.newlabel("nomask")
    a(f"s_cmp_lg_u32 s54, 0\ns_cbranch_scc1 {LM}\nv_mov_b32 v6, 0xf149f2ca")
    for w in range(1, 8):
        a(f"v_cmp_gt_u32 vcc, {2*w}, v2\ns_nop 1\nv_cndmask_b32 v{LG+w}, v{LG+w}, v6, vcc")
    a.label(LM)
    a(f"""
    v_max3_f32 v6, v{LG}, v{LG+1}, v{LG+2}
    v_max3_f32 v7, v{LG+3}, v{LG+4}, v{LG+5}
    v_max3_f32 v6, v6, v{LG+6}, v{LG+7}
    v_max_f32 v6, v6, v7
    s_mov_b32 s60, {f2u(QSCALE)}
    """)
    for w in range(8): a(f"v_sub_f32 v{LG+w}, v{LG+w}, v6")
    for w in range(8): a(f"v_mul_f32 v{LG+w}, s60, v{LG+w}")
    for w in range(8): a(f"v_exp_f32 v{LG+w}, v{LG+w}")
    a(f"""
    v_add_f32 v6, v{LG}, v{LG+1}
    v_add_f32 v7, v{LG+2}, v{LG+3}
    v_add_f32 v8, v{LG+4}, v{LG+5}
    v_add_f32 v9, v{LG+6}, v{LG+7}
    v_add_f32 v6, v6, v7
    v_add_f32 v8, v8, v9
    v_add_f32 v6, v6, v8
    v_rcp_f32 v6, v6
    s_nop 0
    """)
    for w in range(8): a(f"v_mul_f32 v{LG+w}, v{LG+w}, v6")
    for w in range(8): a(f"v_cvt_pk_bf16_f32 v{PLO+w}, v{LG+w}, 0\nv_cvt_pk_bf16_f32 v{PHI+w}, 0, v{LG+w}")
    vreg = lambda w, i: (V8 + i) if w == 0 else (KB + 8 * (w - 1) + i)
    for w in range(8):
        if w >= 1: a(f"s_waitcnt lgkmcnt({2*(7-w)})")
        for i in range(8):
            c0 = "0" if w == 0 else f"v{OACC+2*i}"
            c1 = "0" if w == 0 else f"v{OACC+2*i+1}"
            a(f"v_dot2_f32_bf16 v{OACC+2*i}, v{vreg(w,i)}, v{PLO+w}, {c0}")
            a(f"v_dot2_f32_bf16 v{OACC+2*i+1}, v{vreg(w,i)}, v{PHI+w}, {c1}")
    a(f"s_lshl_b32 s58, s51, 2\ns_add_u32 s58, s58, {SYNC+96}")
    lds_set(58, 0, 6, 7)
    a(f"""
    s_lshl_b32 s58, s54, 15
    s_lshl_b32 s59, s55, 11
    s_add_u32 s58, s58, s59
    s_add_u32 s58, s58, {WS_OA}
    v_lshlrev_b32 v5, 4, v2
    v_lshlrev_b32 v6, 10, v3
    v_add_u32 v5, v5, v6
    """)
    for i in range(8): a(f"v_cvt_pk_bf16_f32 v{64+i}, v{OACC+2*i}, v{OACC+2*i+1}")
    a(f"buffer_store_dwordx4 v[64:67], v5, {srd(S_WS)}, s58 offen sc1")
    a(f"buffer_store_dwordx4 v[68:71], v5, {srd(S_WS)}, s58 offen offset:512 sc1")
    a(f"""
    s_lshl_b32 s59, s54, 11
    s_lshl_b32 s60, s55, 7
    s_add_u32 s59, s59, s60
    s_add_u32 s59, s59, {FA}
    s_waitcnt vmcnt(0)
    """)
    set_flag(59, 6, 7)

WO = 40
OACC2 = 16
def op_setup():
    a(f"""
    s_lshl_b32 s61, s4, 3
    s_and_b32 s50, s5, 7
    s_add_u32 s61, s61, s50
    s_lshr_b32 s62, s5, 3
    s_lshl_b32 s62, s62, 8
    s_lshl_b32 s50, s51, 6
    s_add_u32 s62, s62, s50
    s_mul_i32 s63, s51, {AW}
    v_lshrrev_b32 v14, 2, v1
    v_lshlrev_b32 v14, 10, v14
    v_and_b32 v15, 3, v1
    v_lshlrev_b32 v15, 4, v15
    v_add_u32 v14, v14, v15
    v_lshrrev_b32 v15, 5, v1
    v_lshlrev_b32 v15, 8, v15
    v_and_b32 v2, 12, v1
    v_lshlrev_b32 v2, 4, v2
    v_add_u32 v15, v15, v2
    v_and_b32 v2, 16, v1
    v_lshlrev_b32 v2, 1, v2
    v_add_u32 v15, v15, v2
    v_and_b32 v2, 3, v1
    v_lshlrev_b32 v2, 3, v2
    v_add_u32 v15, v15, v2
    v_add_u32 v15, s63, v15
    """)

def wo_preload(swo):
    NS = 7
    def dma(s):
        a(f"s_add_u32 m0, s63, {(s%NS)*1024}\ns_add_u32 s50, s62, {s*16384}")
        a(f"buffer_load_dwordx4 v14, {srd(swo)}, s50 offen lds")
    for s in range(NS): dma(s)
    for s in range(32):
        a(f"s_waitcnt vmcnt({min(NS-1, 31-s)})")
        a(f"ds_read_b64_tr_b16 {vr(WO+4*s,2)}, v15 offset:{(s%NS)*1024}")
        a(f"ds_read_b64_tr_b16 {vr(WO+4*s+2,2)}, v15 offset:{(s%NS)*1024+512}")
        if s + NS < 32:
            a("s_waitcnt lgkmcnt(0)")
            dma(s + NS)
    a("s_waitcnt lgkmcnt(0)")

def op_addr(colbase, va, vb):
    a(f"""
    v_and_b32 v{va}, 31, v1
    v_lshlrev_b32 v{va}, 11, v{va}
    v_lshrrev_b32 v{vb}, 5, v1
    v_lshlrev_b32 v{vb}, 4, v{vb}
    v_add_u32 v{va}, v{va}, v{vb}
    s_lshl_b32 s55, s61, 16
    s_add_u32 s55, s55, s62
    s_add_u32 s55, s55, {colbase*2}
    """)

def op_store(va):
    a.nop(12)
    for i in range(8): a(f"v_cvt_pk_bf16_f32 v{32+i}, v{OACC2+2*i}, v{OACC2+2*i+1}")
    a("s_nop 1")
    a("v_permlane32_swap_b32 v32, v34\nv_permlane32_swap_b32 v33, v35\nv_permlane32_swap_b32 v36, v38\nv_permlane32_swap_b32 v37, v39")
    a(f"buffer_store_dwordx4 v[32:35], v{va}, {srd(S_OUT)}, s55 offen")
    a(f"buffer_store_dwordx4 v[36:39], v{va}, {srd(S_OUT)}, s55 offen offset:32")

BUFS = [2, 6, 10, 32, 36]
def outproj_a():
    a(f"v_and_b32 v2, 15, v1\nv_lshlrev_b32 v2, 7, v2\ns_lshl_b32 s56, s61, 11\ns_add_u32 s56, s56, {FA}")
    poll(2, 56, 3, 16)
    stamp(5)
    a(f"v_lshlrev_b32 v0, 4, v1\ns_lshl_b32 s56, s61, 15\ns_add_u32 s56, s56, {WS_OA}")
    def ld(s):
        a(f"s_add_u32 s57, s56, {(s>>2)*4096}")
        a(f"buffer_load_dwordx4 {vr(BUFS[s%5],4)}, v0, {srd(S_WS)}, s57 offen offset:{(s&3)*1024} sc1")
    for s in range(5): ld(s)
    for s in range(32):
        a(f"s_waitcnt vmcnt({min(4, 31-s)})")
        a(f"{MF} {vr(OACC2,16)}, {vr(WO+4*s,4)}, {vr(BUFS[s%5],4)}, {'0' if s==0 else vr(OACC2,16)}")
        if s + 5 < 32: ld(s + 5)
    op_addr(0, 2, 3)
    op_store(2)

def outproj_b():
    op_addr(512, 14, 15)
    a(f"""
    v_lshlrev_b32 v0, 4, v1
    v_add_u32 v15, {KVB}, v0
    s_lshl_b32 s58, s61, 15
    s_add_u32 s58, s58, {WS_OB}
    s_lshl_b32 s57, s51, 12
    s_add_u32 s58, s58, s57
    s_add_u32 s59, s58, 16384
    s_add_u32 s57, s57, {KVB}
    """)
    LNP = a.newlabel("nopoll")
    a(f"s_cmp_lg_u32 s51, 0\ns_cbranch_scc1 {LNP}")
    a(f"v_and_b32 v2, 31, v1\nv_lshlrev_b32 v2, 7, v2\ns_lshl_b32 s56, s61, 12\ns_add_u32 s56, s56, {FB2}")
    a(f"v_and_b32 v5, 7, v1\nv_lshlrev_b32 v5, 2, v5\nv_add_u32 v5, {SYNC+64}, v5")
    L = a.newlabel("xfw"); D = a.newlabel("xfd")
    a("s_mov_b32 s50, 0x80000")
    a.label(L)
    a(f"""
    ds_read_b32 v3, v5
    s_waitcnt lgkmcnt(0)
    v_cmp_ne_u32 vcc, s{TAG}, v3
    s_nop 1
    s_cmp_eq_u64 vcc, 0
    s_cbranch_scc1 {D}
    s_sleep 4
    s_sub_u32 s50, s50, 1
    s_cmp_lg_u32 s50, 0
    s_cbranch_scc1 {L}
    """)
    a.label(D)
    stamp(8)
    poll2(2, 56, 3)
    a.label(LNP)
    a("s_barrier")
    stamp(9)
    a("s_mov_b32 m0, s57\ns_nop 0")
    for i in range(4): a(f"buffer_load_dwordx4 v0, {srd(S_WS)}, s58 offen offset:{i*1024} sc1 lds")
    a("s_add_u32 m0, s57, 16384\ns_nop 0")
    for i in range(4): a(f"buffer_load_dwordx4 v0, {srd(S_WS)}, s59 offen offset:{i*1024} sc1 lds")
    a("s_waitcnt vmcnt(4)\ns_barrier")
    for s in range(5): a(f"ds_read_b128 {vr(BUFS[s],4)}, v15 offset:{s*1024}")
    for s in range(32):
        if s == 11: a("s_waitcnt vmcnt(0)\ns_barrier")
        a(f"s_waitcnt lgkmcnt({min(4, 31-s)})")
        a(f"{MF} {vr(OACC2,16)}, {vr(WO+4*s,4)}, {vr(BUFS[s%5],4)}, {'0' if s==0 else vr(OACC2,16)}")
        if s + 5 < 32: a(f"ds_read_b128 {vr(BUFS[s%5],4)}, v15 offset:{(s+5)*1024}")
    op_store(14)

QF, NEG, OA_, SB = [2, 120], [16, 124], [32, 140], [48, 64]
PA, PB = 80, 84
KF = [96, 100]
VF = [[104, 108], [112, 116]]
VKA, VVA, VSY = 6, 7, 8
VK, VV, VKN, VVN = 13, 14, 92, 93

def att_ids():
    a(f"""
    s_lshl_b32 s58, s4, 2
    s_and_b32 s50, s5, 3
    s_add_u32 s58, s58, s50
    s_lshr_b32 s59, s5, 2
    s_lshl_b32 s59, s59, 3
    s_and_b32 s50, s3, 3
    s_lshl_b32 s50, s50, 1
    s_add_u32 s59, s59, s50
    s_lshr_b32 s60, s3, 2
    v_lshlrev_b32 v{VKA}, 4, v1
    """)

def q_load():
    a(f"""
    s_lshl_b32 s56, s58, 16
    s_lshl_b32 s57, s59, 10
    s_add_u32 s56, s56, s57
    buffer_load_dwordx4 {vr(QF[0],4)}, v{VKA}, {srd(S_WS)}, s56 offen sc1
    buffer_load_dwordx4 {vr(QF[1],4)}, v{VKA}, {srd(S_WS)}, s56 offen offset:1024 sc1
    """)

def kv_dma(vlane16, shead, swave, first_kb, n):
    a(f"""
    s_lshl_b32 s56, s{shead}, 17
    s_mul_i32 s57, s{swave}, {n*1024}
    s_add_u32 s57, s57, {first_kb*1024}
    s_add_u32 s56, s56, s57
    s_add_u32 s56, s56, {WS_KV}
    """)
    for i in range(n):
        if i % 4 == 0: a(f"s_add_u32 m0, s57, {KVB + i*1024}\ns_add_u32 s55, s56, {i*1024}")
        a(f"buffer_load_dwordx4 v{vlane16}, {srd(S_WS)}, s55 offen offset:{(i%4)*1024} sc1 lds")

def rowmax(S):
    a(f"v_max3_f32 v11, v{S}, v{S+1}, v{S+2}")
    for i in range(3, 15, 2): a(f"v_max3_f32 v11, v11, v{S+i}, v{S+i+1}")
    a(f"v_max_f32 v11, v11, v{S+15}")

def finish_negm(N):
    a(f"""
    v_mov_b32 v12, v11
    s_nop 1
    v_permlane32_swap_b32 v11, v12
    s_nop 1
    v_max_f32 v11, v11, v12
    v_sub_f32 v{N}, 0, v11
    v_sub_f32 v{N+1}, 0, v11
    """)
    for i in range(2, 16, 2): a(f"v_pk_mov_b32 v[{N+i}:{N+i+1}], v[{N}:{N+1}], v[{N}:{N+1}]")

def att_pre():
    a(f"""
    v_lshrrev_b32 v{VVA}, 5, v1
    v_lshlrev_b32 v{VVA}, 8, v{VVA}
    v_and_b32 v9, 15, v1
    v_lshlrev_b32 v9, 4, v9
    v_add_u32 v{VVA}, v{VVA}, v9
    v_add_u32 v{VVA}, {KVB+1024}, v{VVA}
    v_and_b32 v{VSY}, 3, v1
    v_lshlrev_b32 v{VSY}, 2, v{VSY}
    v_add_u32 v{VSY}, {SYNC}, v{VSY}
    s_lshl_b32 s50, s60, 13
    v_add_u32 v15, {KVB}, v{VKA}
    v_add_u32 v{VK}, s50, v15
    v_add_u32 v{VV}, s50, v{VVA}
    v_add_u32 v{VKN}, 16384, v{VK}
    v_add_u32 v{VVN}, 16384, v{VV}
    """)
    for r in range(104, 120): a(f"v_mov_b32 v{r}, 0")
    a("s_mov_b32 exec_lo, 0x110000\ns_mov_b32 exec_hi, 0x110000")
    for r in range(104, 120): a(f"v_mov_b32 v{r}, 0x3f803f80")
    a("s_mov_b64 exec, -1")
    for q in range(2):
        for i in range(16): a(f"v_mov_b32 v{OA_[q]+i}, 0")

def attention():
    for i in range(4): a(f"v_mov_b32 v{PB+i}, 0")
    a(f"""
    ds_read_b128 {vr(88,4)}, v15
    ds_read_b128 {vr(KF[0],4)}, v{VK}
    ds_read_b128 {vr(KF[1],4)}, v{VK} offset:2048
    s_mov_b64 exec, s[{MLO}:{MLO+1}]
    ds_read_b128 {vr(VF[0][0],4)}, v{VV}
    ds_read_b128 {vr(VF[0][1],4)}, v{VV} offset:512
    s_mov_b64 exec, -1
    s_waitcnt vmcnt(0) lgkmcnt(4)
    {MF} {vr(SB[0],16)}, {vr(88,4)}, {vr(QF[0],4)}, 0
    {MF} {vr(SB[1],16)}, {vr(88,4)}, {vr(QF[1],4)}, 0
    """)
    a.nop(11)
    for q in range(2):
        rowmax(SB[q]); finish_negm(NEG[q])
    a(f"s_mov_b32 s62, 0\ns_waitcnt lgkmcnt(3)\n{MF} {vr(SB[0],16)}, {vr(KF[0],4)}, {vr(QF[0],4)}, {vr(NEG[0],16)}")
    stamp(7)
    cstamp(9, True)
    a.nop(6)
    LOOP = a.newlabel("att_loop"); LS1 = a.newlabel("att_s1"); LS2 = a.newlabel("att_s2"); LS3 = a.newlabel("att_s3"); LB = a.newlabel("att_body")
    a(".p2align 6")
    a.label(LOOP)
    a(f"s_cmp_eq_u32 s62, 1\ns_cbranch_scc1 {LS1}\ns_cmp_eq_u32 s62, 4\ns_cbranch_scc1 {LS2}\ns_cmp_eq_u32 s62, 7\ns_cbranch_scc1 {LS3}")
    a.label(LB)
    kaddr = lambda u: f"v{VK} offset:{u*2048}" if u < 4 else f"v{VKN} offset:{(u-4)*2048}"
    vaddr = lambda u, o: f"v{VV} offset:{u*2048+o}" if u < 4 else f"v{VVN} offset:{(u-4)*2048+o}"
    for tl in range(4):
        kb = tl & 1
        for q in range(2):
            S = SB[q]; Sn = SB[q ^ 1]
            e = lambda i: f"v_exp_f32 v{S+i}, v{S+i}"
            c = lambda i: f"v_cvt_pk_bf16_f32 v{PA+i}, v{S+2*i}, v{S+2*i+1}"
            last = q == 1; first = q == 0
            nk = KF[kb ^ 1] if last else KF[kb]
            pv = VF[kb ^ 1] if first else VF[kb]
            if last: a("s_waitcnt lgkmcnt(2)")
            a(f"{MF} {vr(Sn,16)}, {vr(nk,4)}, {vr(QF[q^1],4)}, {vr(NEG[q^1],16)}")
            if last: a(f"ds_read_b128 {vr(KF[kb],4)}, {kaddr(tl+2)}")
            for i in range(4): a(e(i))
            a(f"{MF} {vr(OA_[q^1],16)}, {vr(pv[1],4)}, {vr(PB,4)}, {vr(OA_[q^1],16)}")
            if first:
                a(f"s_mov_b64 exec, s[{MLO}:{MLO+1}]")
                a(f"ds_read_b128 {vr(VF[kb^1][0],4)}, {vaddr(tl+1,0)}")
                a(f"ds_read_b128 {vr(VF[kb^1][1],4)}, {vaddr(tl+1,512)}")
                a("s_mov_b64 exec, -1")
            for x in [c(0), e(4), e(5), c(1), e(6), e(7), c(2), e(8), c(3), e(9), e(10)]: a(x)
            if first: a("s_waitcnt lgkmcnt(3)")
            a(f"{MF} {vr(OA_[q],16)}, {vr(VF[kb][0],4)}, {vr(PA,4)}, {vr(OA_[q],16)}")
            for x in [e(11), c(4), e(12), e(13), c(5), e(14), e(15), c(6), c(7)]: a(x)
    a(f"""
    v_mov_b32 v{VK}, v{VKN}
    v_mov_b32 v{VV}, v{VVN}
    v_add_u32 v{VKN}, 16384, v{VKN}
    v_add_u32 v{VVN}, 16384, v{VVN}
    s_add_u32 s62, s62, 1
    s_cmp_lt_u32 s62, 8
    s_cbranch_scc1 {LOOP}
    {MF} {vr(OA_[1],16)}, {vr(VF[1][1],4)}, {vr(PB,4)}, {vr(OA_[1],16)}
    """)
    stamp(8)
    cstamp(9, False)
    LK1 = a.newlabel("kh1"); LKD = a.newlabel("khd")
    a(f"""
    s_mul_i32 s56, s3, 2304
    s_xor_b32 s57, s3, 4
    s_mul_i32 s57, s57, 2304
    v_add_u32 v10, s56, v{VKA}
    v_add_u32 v11, s57, v{VKA}
    v_lshlrev_b32 v12, 2, v1
    v_add_u32 v9, s57, v12
    v_add_u32 v12, s56, v12
    s_lshl_b32 s56, s3, 2
    s_add_u32 s56, s56, {SYNC+64}
    s_xor_b32 s57, s56, 16
    s_add_u32 s59, s59, s60
    s_cmp_eq_u32 s60, 0
    s_cbranch_scc0 {LK1}
    ds_write_b128 v10, {vr(OA_[1],4)}
    ds_write_b128 v10, {vr(OA_[1]+4,4)} offset:1024
    ds_write_b32 v12, v{OA_[1]+8} offset:2048
    s_branch {LKD}
    """)
    a.label(LK1)
    a(f"""
    ds_write_b128 v10, {vr(OA_[0],4)}
    ds_write_b128 v10, {vr(OA_[0]+4,4)} offset:1024
    ds_write_b32 v12, v{OA_[0]+8} offset:2048
    s_nop 0
    """)
    for i in range(9): a(f"v_mov_b32 v{OA_[0]+i}, v{OA_[1]+i}")
    for i in range(4): a(f"v_mov_b32 v{QF[0]+i}, v{QF[1]+i}")
    a.label(LKD)
    a("s_waitcnt lgkmcnt(0)")
    lds_set(56, 0, 13, 14)
    a("v_mov_b32 v14, s57")
    a(f"s_lshl_b32 s56, s59, 15\ns_lshl_b32 s57, s58, 10\ns_add_u32 s56, s56, s57\ns_add_u32 s56, s56, {WS_OB}")
    a(f"s_lshl_b32 s55, s59, 12\ns_lshl_b32 s57, s58, 7\ns_add_u32 s55, s55, s57\ns_add_u32 s55, s55, {FB2}")
    lds_wait(14, 0, 13)
    O = OA_[0]
    a(f"""
    ds_read_b128 {vr(48,4)}, v11
    ds_read_b128 {vr(52,4)}, v11 offset:1024
    ds_read_b32 v56, v9 offset:2048
    v_mov_b32 v10, {f2u(2.0**60)}
    s_waitcnt lgkmcnt(0)
    """)
    for i in range(9): a(f"v_add_f32 v{O+i}, v{O+i}, v{48+i}")
    LOK = a.newlabel("att_ok"); LFB = a.newlabel("att_fb")
    a(f"v_fma_f32 v11, v{O}, 0, v{O+8}")
    for i in range(1, 8): a(f"v_fma_f32 v11, v{O+i}, 0, v11")
    a(f"v_cmp_nlt_f32 vcc, v11, v10")
    a(f"s_nop 1\ns_cmp_eq_u64 vcc, 0\ns_cbranch_scc0 {LFB}")
    a.label(LOK)
    a(f"v_rcp_f32 v10, v{O+8}\ns_nop 0")
    for i in range(8): a(f"v_mul_f32 v{O+i}, v{O+i}, v10")
    for i in range(4): a(f"v_cvt_pk_bf16_f32 v{PA+i}, v{O+2*i}, v{O+2*i+1}")
    a(f"buffer_store_dwordx4 {vr(PA,4)}, v{VKA}, {srd(S_WS)}, s56 offen sc1\ns_waitcnt vmcnt(0)")
    set_flag(55, 10, 11)
    dump_stamps()
    a("s_endpgm")
    a.label(LS1)
    lds_wait(VSY, 0, 10)
    a(f"s_branch {LB}")
    a.label(LS2)
    lds_wait(VSY, 16, 10)
    a(f"s_branch {LB}")
    a.label(LS3)
    lds_wait(VSY, 32, 10)
    a(f"v_mov_b32 v{VKN}, v{VK}\nv_mov_b32 v{VVN}, v{VV}\ns_branch {LB}")
    a.label(LFB)
    LM = a.newlabel("att_mx"); LP = a.newlabel("att_p2")
    S = SB[0]
    a(f"v_mov_b32 v13, v15\nv_mov_b32 v9, 0xff800000\ns_mov_b32 s62, 0")
    a.label(LM)
    a(f"ds_read_b128 {vr(KF[0],4)}, v13\ns_waitcnt lgkmcnt(0)")
    a(f"{MF} {vr(S,16)}, {vr(KF[0],4)}, {vr(QF[0],4)}, 0")
    a.nop(12)
    rowmax(S)
    a(f"""
    v_max_f32 v9, v9, v11
    v_add_u32 v13, 2048, v13
    s_add_u32 s62, s62, 1
    s_cmp_lt_u32 s62, 64
    s_cbranch_scc1 {LM}
    v_mov_b32 v11, v9
    """)
    finish_negm(NEG[0])
    for i in range(16): a(f"v_mov_b32 v{O+i}, 0")
    a(f"v_mov_b32 v13, v15\nv_mov_b32 v14, v{VVA}\ns_mov_b32 s62, 0")
    a.label(LP)
    a(f"""
    ds_read_b128 {vr(KF[0],4)}, v13
    s_mov_b64 exec, s[{MLO}:{MLO+1}]
    ds_read_b128 {vr(VF[0][0],4)}, v14
    ds_read_b128 {vr(VF[0][1],4)}, v14 offset:512
    s_mov_b64 exec, -1
    s_waitcnt lgkmcnt(0)
    {MF} {vr(S,16)}, {vr(KF[0],4)}, {vr(QF[0],4)}, {vr(NEG[0],16)}
    """)
    a.nop(12)
    for i in range(16): a(f"v_exp_f32 v{S+i}, v{S+i}")
    a("s_nop 0")
    for i in range(8): a(f"v_cvt_pk_bf16_f32 v{PA+i}, v{S+2*i}, v{S+2*i+1}")
    a(f"""
    v_add_u32 v13, 2048, v13
    v_add_u32 v14, 2048, v14
    {MF} {vr(O,16)}, {vr(VF[0][0],4)}, {vr(PA,4)}, {vr(O,16)}
    {MF} {vr(O,16)}, {vr(VF[0][1],4)}, {vr(PB,4)}, {vr(O,16)}
    s_add_u32 s62, s62, 1
    s_cmp_lt_u32 s62, 64
    s_cbranch_scc1 {LP}
    """)
    a.nop(12)
    a(f"s_branch {LOK}")

a('.amdgcn_target "amdgcn-amd-amdhsa--gfx950"\n.text')
k = NAME + "_kernel"
prologue(k)
LG1 = a.newlabel("g1"); LG2 = a.newlabel("g2"); LATT = a.newlabel("att"); LG0 = a.newlabel("g0"); LQW = a.newlabel("qwait")
a(f"s_cmp_lt_u32 s3, 4\ns_cbranch_scc1 {LG0}\ns_cmp_ge_u32 s3, 8\ns_cbranch_scc1 {LG2}")
loader()
att_ids()
att_pre()
a("s_barrier")
if YX:
    dump_stamps(); a("s_endpgm")
a.label(LQW)
a(f"v_mov_b32 v10, {SYNC+120}")
lds_wait(10, 0, 11)
stamp(5)
q_load()
a(f"v_mov_b32 v10, {SYNC+48}")
lds_wait(10, 0, 11)
stamp(6)
a(f"s_branch {LATT}")
a.label(LG0)
publish_tag()
a("s_mov_b32 s51, s3")
gemm_setup()
b_addr()
a("s_barrier")
stamp(1)
gemm_main(0, True)
stamp(2)
b_epilogue()
att_ids()
a(f"""
s_lshl_b32 s61, s7, 14
s_lshl_b32 s57, s6, 9
s_add_u32 s61, s61, s57
s_lshl_b32 s57, s3, 7
s_add_u32 s61, s61, s57
s_add_u32 s61, s61, {FB1}
s_lshl_b32 s62, s4, 14
s_add_u32 s62, s62, {FB1}
s_mov_b32 s63, 0
v_lshlrev_b32 v10, 8, v1
""")
def pload():
    a(f"buffer_load_dword v11, v10, {srd(S_WS)}, s62 offen sc1\nbuffer_load_dword v12, v10, {srd(S_WS)}, s62 offen offset:128 sc1")
def pcheck(lfail):
    a(f"v_cmp_ne_u32 vcc, s{TAG}, v11\nv_cmp_ne_u32 s[56:57], s{TAG}, v12\ns_nop 1\ns_or_b64 vcc, vcc, s[56:57]\ns_cmp_eq_u64 vcc, 0\ns_cbranch_scc0 {lfail}")
def kv_first():
    stamp(5)
    a("s_mov_b32 s55, 0")
    kv_dma(VKA, 58, 55, 0, 32)
    q_load()
    a("s_mov_b32 s63, 2")
def tick(kv_ok):
    if "y4" in OPT: return
    LE = a.newlabel("tk"); L1 = a.newlabel("tk1"); LP = a.newlabel("tkp")
    a(f"""
    s_getreg_b32 s50, hwreg(HW_REG_IB_STS, 0, 4)
    s_cmp_lg_u32 s50, 0
    s_cbranch_scc1 {LE}
    s_cmp_eq_u32 s63, 2
    s_cbranch_scc1 {LE}
    s_cmp_eq_u32 s63, 1
    s_cbranch_scc1 {L1}
    """)
    set_flag(61, 11, 12)
    stamp(3)
    a(f"s_cmp_eq_u32 s3, 0\ns_cselect_b32 s63, 1, 2\ns_cbranch_scc1 {LP}\ns_branch {LE}")
    a.label(L1)
    if kv_ok:
        pcheck(LP)
        kv_first()
        a(f"s_branch {LE}")
    a.label(LP)
    pload()
    a.label(LE)
a("s_barrier")
att_pre()
tick(False)
for r in range(11, 16):
    a("s_barrier")
    tick(r >= 13)
a("s_barrier")
stamp(4)
if YX:
    dump_stamps(); a("s_endpgm")
LD0 = a.newlabel("fin0"); LD1 = a.newlabel("fin1"); LDP = a.newlabel("finp"); LDF = a.newlabel("finf")
a(f"s_cmp_lg_u32 s63, 0\ns_cbranch_scc1 {LD0}\ns_waitcnt vmcnt(0)")
set_flag(61, 11, 12)
a(f"s_cmp_lg_u32 s3, 0\ns_cbranch_scc1 {LQW}\ns_mov_b32 s63, 1")
pload()
a.label(LD0)
a(f"s_cmp_lg_u32 s3, 0\ns_cbranch_scc1 {LQW}")
a(f"s_cmp_eq_u32 s63, 2\ns_cbranch_scc1 {LD1}\ns_mov_b32 s54, {POLL_LIMIT}")
a.label(LDP)
a("s_waitcnt vmcnt(0)")
pcheck(LDF)
kv_first()
a(f"s_branch {LD1}")
a.label(LDF)
pload()
a(f"s_sub_u32 s54, s54, 1\ns_cmp_lg_u32 s54, 0\ns_cbranch_scc1 {LDP}")
a.label(LD1)
a(f"s_mov_b32 s56, {SYNC}")
lds_set(56, 120, 10, 11)
a("s_waitcnt vmcnt(0)")
lds_set(56, 48, 10, 11)
stamp(6)
a.label(LATT)
attention()
a.label(LG2)
a("s_sub_u32 s51, s3, 8\ns_setprio 3")
gemm_setup()
for _ in range(9): a("s_barrier")
stamp(1)
gemm_main(8, False)
stamp(2)
if YX:
    dump_stamps(); a("s_endpgm")
a("s_waitcnt vmcnt(0)")
tag_from(9, 10)
a_local_front()
a(f"""
s_lshl_b32 s61, s4, 2
s_and_b32 s50, s5, 3
s_add_u32 s61, s61, s50
v_lshlrev_b32 v10, 4, v1
s_lshl_b32 s62, s51, 2
s_add_u32 s62, s62, {SYNC}
v_and_b32 v11, 3, v1
v_lshlrev_b32 v11, 2, v11
v_add_u32 v11, {SYNC}, v11
s_mov_b32 s63, s55
""")
a(f"v_mov_b32 v13, {SYNC+48}")
lds_wait(13, 0, 12)
kv_dma(10, 61, 51, 32, 12)
kv_dma(10, 61, 51, 80, 12)
LHF = a.newlabel("nohf")
a(f"s_cmp_lg_u32 s52, 1\ns_cbranch_scc1 {LHF}\ns_waitcnt vmcnt(24)")
set_flag(59, 12, 13)
a.label(LHF)
a("s_waitcnt vmcnt(12)")
lds_set(62, 0, 12, 13)
a("s_waitcnt vmcnt(0)\ns_mov_b32 s55, s63")
lds_set(62, 16, 12, 13)
stamp(10)
a_local_back()
stamp(3)
lds_wait(11, 96, 12)
op_setup()
wo_preload(S_AWO)
stamp(4)
outproj_a()
stamp(6)
wo_preload(S_BWO)
a(f"s_lshl_b32 s56, s51, 2\ns_add_u32 s56, s56, {SYNC}")
lds_set(56, 32, 2, 3)
stamp(7)
outproj_b()
dump_stamps()
a("s_endpgm")
a.label("L_exit")
a("s_endpgm")

hdr = open(f"cdna_kernels/{NAME}.s.ref").read().split("; Override")[0]
hdr += f"; @launch grid=(256,1,1) block=(768,1,1) lds={LDS_BYTES}\n"
tail = f'''.section .rodata,"a"
.p2align 6
.amdhsa_kernel {k}
  .amdhsa_next_free_vgpr 168
  .amdhsa_next_free_sgpr 96
  .amdhsa_accum_offset 168
  .amdhsa_group_segment_fixed_size 0
  .amdhsa_kernarg_size 72
  .amdhsa_user_sgpr_count 2
  .amdhsa_user_sgpr_kernarg_segment_ptr 1
  .amdhsa_system_sgpr_workgroup_id_x 1
.end_amdhsa_kernel
'''
if "y1" in OPT:
    a.lines = [l for l in a.lines if not (l.startswith("buffer_store_dwordx4 v[") and "sc1" in l)]
probs = check(a.lines)
for p in probs: print(p)
open(OUT, "w").write(hdr + a.text() + tail)
print("wrote", OUT, len(a.lines), "lines;", len(probs), "hazards")
```

```python
import sys, math, struct
from asmlib import *

NAME = "concat_heads__sliding_local_dilated__softmax_full_mha__prompt"
OUT = sys.argv[1] if len(sys.argv) > 1 else f"cdna_kernels/{NAME}.s"
OPT = set(sys.argv[2:])

WS_Q = 0
WS_KV = 2 << 20
WS_OB = 6 << 20
WS_OA = 8 << 20
WS_HALO = 10 << 20
WS_FLAG = 12 << 20
FB1 = WS_FLAG
FB2 = WS_FLAG + (128 << 10)
FA = WS_FLAG + (384 << 10)
HF = WS_FLAG + (512 << 10)
WS_STAMP = 14 << 20
WS_SIZE = 16 << 20

SLOT = 32768
AREG = 0
AW = 7680
SYNC = 30720
KVB = 32768
LDS_BYTES = 163840

S_AX, S_AW, S_AWO, S_BX, S_BW, S_BWO, S_OUT, S_DBG, S_WS = 8, 12, 16, 20, 24, 28, 32, 36, 40
def srd(b): return f"s[{b}:{b+3}]"
TAG, ROT, MLO, MHI = 44, 45, 46, 48
QSCALE = 0.25 * math.log2(math.e)
def f2u(x): return struct.unpack("<I", struct.pack("<f", x))[0]
MF = "v_mfma_f32_32x32x16_bf16"
POLL_LIMIT = 30000

a = Asm()
YX = any(x in OPT for x in ("y0", "y1", "y2", "y3"))
STAMP = "stamp" in OPT
def stamp(i):
    if STAMP: a(f"s_memrealtime s[82:83]\ns_waitcnt lgkmcnt(0)\ns_mov_b32 s{84+i}, s82")
def cstamp(i, first):
    if STAMP:
        a("s_memtime s[82:83]\ns_waitcnt lgkmcnt(0)")
        a(f"s_mov_b32 s{84+i}, s82" if first else f"s_sub_u32 s{84+i}, s82, s{84+i}")
def dump_stamps():
    if STAMP:
        stamp(11)
        a(f"s_mul_i32 s82, s2, 12\ns_add_u32 s82, s82, s3\ns_lshl_b32 s82, s82, 6\ns_add_u32 s82, s82, {WS_STAMP}\nv_mov_b32 v1, 0\ns_mov_b64 exec, 1")
        for i in range(12): a(f"v_mov_b32 v{2+i}, s{84+i}")
        for i in range(3): a(f"buffer_store_dwordx4 v[{2+4*i}:{5+4*i}], v1, {srd(S_WS)}, s82 offen offset:{16*i}")

def prologue(kname):
    a(f".globl {kname}\n.p2align 8\n.type {kname},@function")
    a.label(kname)
    a(f"""
    s_cmp_ge_u32 s2, 256
    s_cbranch_scc1 L_exit
    s_load_dwordx16 s[64:79], s[0:1], 0
    s_load_dwordx2 s[80:81], s[0:1], 64
    v_lshrrev_b32 v2, 6, v0
    v_and_b32 v1, 63, v0
    s_and_b32 s4, s2, 7
    v_readfirstlane_b32 s3, v2
    s_lshr_b32 s5, s2, 3
    s_and_b32 s6, s4, 3
    s_lshl_b32 s6, s6, 3
    s_and_b32 s50, s5, 7
    s_add_u32 s6, s6, s50
    s_and_b32 s7, s4, 4
    s_lshr_b32 s50, s5, 3
    s_add_u32 s7, s7, s50
    s_lshl_b32 s50, s7, 1
    s_add_u32 s{ROT}, s6, s50
    s_and_b32 s{ROT}, s{ROT}, 7
    s_mov_b32 s{MLO}, 0xffff
    s_mov_b32 s{MLO+1}, 0xffff
    s_mov_b32 s{MHI}, 0xffff0000
    s_mov_b32 s{MHI+1}, 0xffff0000
    """)
    order = [S_AX, S_AW, S_AWO, S_BX, S_BW, S_BWO, S_OUT, S_DBG, S_WS]
    sizes = [2 << 20, 512 * 1536 * 2, 512 * 512 * 2, 2 << 20, 512 * 1536 * 2, 512 * 512 * 2, 4 << 20, 256, WS_SIZE]
    for b, sz in zip(order, sizes): a(f"s_mov_b32 s{b+2}, {sz}\ns_mov_b32 s{b+3}, 0x20000")
    a("s_waitcnt lgkmcnt(0)")
    for i, b in enumerate(order): a(f"s_mov_b64 s[{b}:{b+1}], s[{64+2*i}:{65+2*i}]")
    if STAMP:
        for i in range(12): a(f"s_mov_b32 s{84+i}, 0")
    stamp(0)

def publish_tag():
    L = a.newlabel("notag")
    a(f"""
    s_or_b32 s50, s2, s3
    s_cmp_lg_u32 s50, 0
    s_cbranch_scc1 {L}
    s_memrealtime s[52:53]
    v_mov_b32 v3, 0
    s_waitcnt lgkmcnt(0)
    s_or_b32 s52, s52, 1
    v_mov_b32 v2, s52
    s_mov_b64 exec, 1
    buffer_store_dword v2, v3, {srd(S_DBG)}, 0 offen sc1
    s_mov_b64 exec, -1
    """)
    a.label(L)

def tag_from(v, vz):
    L = a.newlabel("gt"); D = a.newlabel("gtd")
    a(f"s_mov_b32 s50, {POLL_LIMIT}")
    a.label(L)
    a(f"""
    v_readfirstlane_b32 s{TAG}, v{v}
    s_nop 1
    s_cmp_lg_u32 s{TAG}, 0
    s_cbranch_scc1 {D}
    s_sleep 4
    buffer_load_dword v{v}, v{vz}, {srd(S_DBG)}, 0 offen sc1
    s_sub_u32 s50, s50, 1
    s_cmp_lg_u32 s50, 0
    s_waitcnt vmcnt(0)
    s_cbranch_scc1 {L}
    """)
    a.label(D)

def poll(voff, soff, vt, slp):
    L = a.newlabel("pl"); D = a.newlabel("pld")
    a(f"s_mov_b32 s50, {POLL_LIMIT}")
    a.label(L)
    a(f"""
    buffer_load_dword v{vt}, v{voff}, {srd(S_WS)}, s{soff} offen sc1
    s_waitcnt vmcnt(0)
    v_cmp_ne_u32 vcc, s{TAG}, v{vt}
    s_nop 1
    s_cmp_eq_u64 vcc, 0
    s_cbranch_scc1 {D}
    s_sleep {slp}
    s_sub_u32 s50, s50, 1
    s_cmp_lg_u32 s50, 0
    s_cbranch_scc1 {L}
    """)
    a.label(D)

def poll2(voff, soff, vt):
    L = a.newlabel("pl"); D = a.newlabel("pld")
    ld = lambda v: f"buffer_load_dword v{v}, v{voff}, {srd(S_WS)}, s{soff} offen sc1"
    a(f"s_mov_b32 s50, {POLL_LIMIT}\n{ld(vt)}\ns_sleep 6")
    a.label(L)
    for k in range(2):
        a(f"""
        {ld(vt + (k ^ 1))}
        s_waitcnt vmcnt(1)
        v_cmp_ne_u32 vcc, s{TAG}, v{vt + k}
        s_nop 1
        s_cmp_eq_u64 vcc, 0
        s_cbranch_scc1 {D}
        """)
    a(f"s_sub_u32 s50, s50, 1\ns_cmp_lg_u32 s50, 0\ns_cbranch_scc1 {L}")
    a.label(D)

def lds_wait(vaddr, off, vt):
    L = a.newlabel("lw"); D = a.newlabel("lwd")
    a("s_mov_b32 s50, 0x80000")
    a.label(L)
    a(f"""
    ds_read_b32 v{vt}, v{vaddr} offset:{off}
    s_waitcnt lgkmcnt(0)
    v_cmp_ne_u32 vcc, s{TAG}, v{vt}
    s_nop 1
    s_cmp_eq_u64 vcc, 0
    s_cbranch_scc1 {D}
    s_sleep 1
    s_sub_u32 s50, s50, 1
    s_cmp_lg_u32 s50, 0
    s_cbranch_scc1 {L}
    """)
    a.label(D)

def lds_set(saddr, off, vt, va):
    a(f"""
    v_mov_b32 v{vt}, s{TAG}
    v_mov_b32 v{va}, s{saddr}
    s_mov_b64 exec, 1
    ds_write_b32 v{va}, v{vt} offset:{off}
    s_mov_b64 exec, -1
    """)

def set_flag(soff, vt, vz):
    a(f"""
    v_mov_b32 v{vt}, s{TAG}
    v_mov_b32 v{vz}, 0
    s_mov_b64 exec, 1
    buffer_store_dword v{vt}, v{vz}, {srd(S_WS)}, s{soff} offen sc1
    s_mov_b64 exec, -1
    """)

def loader():
    a(f"""
    s_sub_u32 s51, s3, 4
    v_lshrrev_b32 v14, 3, v1
    v_and_b32 v15, 7, v1
    v_lshlrev_b32 v16, 1, v14
    v_and_b32 v16, 4, v16
    v_xor_b32 v16, v15, v16
    v_lshlrev_b32 v16, 4, v16
    v_mul_u32_u24 v13, 3072, v14
    v_add_u32 v13, v13, v16
    s_and_b32 s50, s51, 1
    s_lshl_b32 s50, s50, 2
    v_lshrrev_b32 v16, 4, v1
    v_add_u32 v16, s50, v16
    v_xor_b32 v15, v15, v16
    v_lshlrev_b32 v15, 4, v15
    v_lshlrev_b32 v14, 10, v14
    v_add_u32 v12, v14, v15
    s_lshl_b32 s52, s51, 10
    s_lshl_b32 s53, s6, 16
    s_lshl_b32 s50, s51, 13
    s_add_u32 s53, s53, s50
    s_mul_i32 s54, s51, 24576
    s_lshl_b32 s55, s7, 7
    s_add_u32 s54, s54, s55
    s_mul_i32 s55, s51, 3072
    s_add_u32 s55, s55, 8192
    v_mov_b32 v17, 0
    """)
    q = []
    def cload(c):
        sx, sw = (S_BX, S_BW) if c < 8 else (S_AX, S_AW)
        sl = (c % 5) * SLOT
        a(f"""
        s_add_u32 s56, s{ROT}, {c & 7}
        s_and_b32 s56, s56, 7
        s_lshl_b32 s57, s56, 7
        s_add_u32 s57, s57, s53
        s_mul_i32 s56, s56, {64*3072}
        s_add_u32 s56, s56, s54
        """)
        for i in range(2):
            a(f"s_add_u32 m0, s52, {sl + i*4096}\ns_add_u32 s58, s57, {i*32768}")
            a(f"buffer_load_dwordx4 v12, {srd(sx)}, s58 offen lds")
        for hh in range(2):
            a(f"s_add_u32 m0, s55, {sl + hh*4*3072}\ns_add_u32 s58, s56, {hh*32*3072}")
            for p in range(3):
                a(f"buffer_load_dwordx4 v13, {srd(sw)}, s58 offen offset:{p*1024} lds")
        q.extend([c] * 8)
    NPRE = 2 if "pre2" in OPT else 1 if "pre1" in OPT else 3
    for c in range(NPRE): cload(c)
    stamp(1)
    nxt = NPRE
    for c in range(16):
        last = max(i for i, e in enumerate(q) if e == c)
        a(f"s_waitcnt vmcnt({len(q) - 1 - last})\ns_barrier")
        k = 0
        while nxt <= c + 3 and nxt < 16 and k < 2:
            cload(nxt); nxt += 1; k += 1
        if c == 6:
            a(f"buffer_load_dword v16, v17, {srd(S_DBG)}, 0 offen sc1"); q.append(-1)
    tag_from(16, 17)

ACCQ, ACCK, ACCV = 16, 32, 48
FR = [64, 80, 96]
XA, WA = 112, 124

def gemm_setup():
    a(f"""
    s_and_b32 s52, s51, 1
    s_lshr_b32 s53, s51, 1
    v_and_b32 v2, 31, v1
    v_lshrrev_b32 v3, 5, v1
    v_and_b32 v4, 15, v1
    s_lshl_b32 s50, s52, 12
    v_lshlrev_b32 v5, 7, v2
    v_add_u32 v5, s50, v5
    v_lshrrev_b32 v7, 1, v4
    """)
    for ss in range(4):
        a(f"""
        v_add_u32 v6, {2*ss}, v3
        v_xor_b32 v6, v6, v7
        v_lshlrev_b32 v6, 4, v6
        v_add_u32 v{XA+ss}, v5, v6
        v_add_u32 v{XA+4+ss}, {2*SLOT}, v{XA+ss}
        v_add_u32 v{XA+8+ss}, {4*SLOT}, v{XA+ss}
        """)
    a(f"""
    v_mul_u32_u24 v6, 3072, v3
    v_lshrrev_b32 v7, 2, v4
    v_lshlrev_b32 v8, 7, v7
    v_add_u32 v6, v6, v8
    v_lshrrev_b32 v7, 1, v7
    v_xor_b32 v7, s53, v7
    v_lshlrev_b32 v7, 6, v7
    v_add_u32 v6, v6, v7
    v_and_b32 v7, 16, v1
    v_lshlrev_b32 v7, 1, v7
    v_add_u32 v6, v6, v7
    v_and_b32 v7, 3, v1
    v_lshlrev_b32 v7, 3, v7
    v_add_u32 v6, v6, v7
    v_add_u32 v{WA}, 8192, v6
    v_add_u32 v{WA+1}, {8192+2*SLOT}, v6
    v_add_u32 v{WA+2}, {8192+4*SLOT}, v6
    v_mov_b32 v10, 0
    s_lshl_b32 s54, s6, 1
    s_add_u32 s54, s54, s52
    """)

def gemm_main(c0, vtrans):
    def reads(n, f):
        c = c0 + (n >> 2); ss = n & 3
        slot = c % 5
        hi = slot >> 1
        off = (slot & 1) * SLOT
        r = [f"ds_read_b128 {vr(f,4)}, v{XA+4*hi+ss} offset:{off}"]
        for p in range(3):
            r.append(f"ds_read_b64_tr_b16 {vr(f+4+4*p,2)}, v{WA+hi} offset:{off+ss*6144+p*1024}")
            r.append(f"ds_read_b64_tr_b16 {vr(f+6+4*p,2)}, v{WA+hi} offset:{off+ss*6144+p*1024+512}")
        return r
    def mfmas(f, first):
        c = lambda r: "0" if first else vr(r, 16)
        m = [f"{MF} {vr(ACCK,16)}, {vr(f+8,4)}, {vr(f,4)}, {c(ACCK)}"]
        if vtrans: m.append(f"{MF} {vr(ACCV,16)}, {vr(f,4)}, {vr(f+12,4)}, {c(ACCV)}")
        else: m.append(f"{MF} {vr(ACCV,16)}, {vr(f+12,4)}, {vr(f,4)}, {c(ACCV)}")
        m.append(f"{MF} {vr(ACCQ,16)}, {vr(f+4,4)}, {vr(f,4)}, {c(ACCQ)}")
        return m
    for x in reads(0, FR[0]) + reads(1, FR[1]): a(x)
    for n in range(32):
        n2 = n + 2
        m = mfmas(FR[n % 3], n == 0)
        a(f"s_waitcnt lgkmcnt({7 if n < 31 else 0})")
        if n == 31 and c0 == 8: a("s_barrier")
        r = reads(n2, FR[n2 % 3]) if n2 < 32 else []
        if "y2" in OPT: m = ["s_nop 0"] * 3
        if "y3" in OPT: m = ["s_nop 0"] * 3; r = []
        a(m[0])
        if n == 12: a(f"buffer_load_dword v9, v10, {srd(S_DBG)}, 0 offen sc1")
        if (n2 & 3) == 0 and (n2 < 32 or (n2 == 32 and c0 == 0)): a("s_barrier")
        for x in r[0:3]: a(x)
        a(m[1])
        for x in r[3:5]: a(x)
        a(m[2])
        for x in r[5:7]: a(x)

def b_addr():
    a(f"""
    s_lshl_b32 s55, s7, 2
    s_lshl_b32 s56, s53, 1
    s_add_u32 s55, s55, s56
    s_lshl_b32 s56, s55, 16
    s_lshl_b32 s57, s54, 10
    s_add_u32 s56, s56, s57
    s_add_u32 s57, s56, 65536
    s_lshl_b32 s58, s55, 17
    s_lshl_b32 s59, s54, 11
    s_add_u32 s58, s58, s59
    s_add_u32 s58, s58, {WS_KV}
    s_add_u32 s59, s58, 131072
    v_lshlrev_b32 v2, 4, v1
    v_and_b32 v3, 16, v1
    v_lshlrev_b32 v3, 13, v3
    v_lshrrev_b32 v4, 5, v1
    v_lshlrev_b32 v4, 8, v4
    v_add_u32 v3, v3, v4
    v_and_b32 v4, 15, v1
    v_lshlrev_b32 v4, 4, v4
    v_add_u32 v3, v3, v4
    s_mov_b32 s60, {f2u(QSCALE)}
    """)

def b_epilogue():
    a("s_waitcnt vmcnt(0)")
    tag_from(9, 10)
    a.nop(3)
    for i in range(8): a(f"v_cvt_pk_bf16_f32 v{64+i}, v{ACCK+2*i}, v{ACCK+2*i+1}")
    a(f"buffer_store_dwordx4 v[64:67], v2, {srd(S_WS)}, s58 offen sc1")
    a(f"buffer_store_dwordx4 v[68:71], v2, {srd(S_WS)}, s59 offen sc1")
    for i in range(8): a(f"v_cvt_pk_bf16_f32 v{72+i}, v{ACCV+2*i}, v{ACCV+2*i+1}")
    a(f"buffer_store_dwordx4 v[72:75], v3, {srd(S_WS)}, s58 offen offset:1024 sc1")
    a(f"buffer_store_dwordx4 v[76:79], v3, {srd(S_WS)}, s58 offen offset:1536 sc1")
    a("s_barrier")
    for i in range(8): a(f"v_cvt_pk_bf16_f32 v{80+i}, v{ACCQ+2*i}, v{ACCQ+2*i+1}")
    for i in range(8):
        a(f"v_lshlrev_b32 v{ACCQ+2*i}, 16, v{80+i}\nv_and_b32 v{ACCQ+2*i+1}, 0xffff0000, v{80+i}")
    for i in range(16): a(f"v_mul_f32 v{ACCQ+i}, s60, v{ACCQ+i}")
    for i in range(8): a(f"v_cvt_pk_bf16_f32 v{80+i}, v{ACCQ+2*i}, v{ACCQ+2*i+1}")
    a(f"buffer_store_dwordx4 v[80:83], v2, {srd(S_WS)}, s56 offen sc1")
    a(f"buffer_store_dwordx4 v[84:87], v2, {srd(S_WS)}, s57 offen sc1")

Q8, K8, V8 = 64, 72, 80
def a_local_front():
    a(f"""
    s_lshl_b32 s55, s7, 1
    s_add_u32 s55, s55, s53
    s_lshl_b32 s56, s6, 4
    s_add_u32 s56, s56, s55
    s_mul_i32 s57, s53, 12800
    s_mul_i32 s58, s52, 2560
    s_add_u32 s57, s57, s58
    v_and_b32 v2, 31, v1
    v_lshrrev_b32 v3, 5, v1
    v_mul_u32_u24 v4, 80, v2
    v_mul_u32_u24 v5, 6400, v3
    v_add_u32 v4, v4, v5
    v_add_u32 v4, s57, v4
    v_and_b32 v5, 15, v1
    v_lshlrev_b32 v5, 4, v5
    v_lshlrev_b32 v6, 8, v3
    v_add_u32 v5, v5, v6
    s_lshl_b32 s58, s56, 11
    s_add_u32 s58, s58, {WS_HALO}
    s_lshl_b32 s59, s56, 7
    s_add_u32 s59, s59, {HF}
    s_lshl_b32 s60, s53, 2
    s_add_u32 s60, s60, {SYNC+112}
    """)
    for dst, acc in ((K8, ACCK), (V8, ACCV)):
        for i in range(8): a(f"v_cvt_pk_bf16_f32 v{dst+i}, v{acc+2*i}, v{acc+2*i+1}")
    for dst in (K8, V8):
        a("s_nop 0")
        for t in range(4): a(f"v_permlane32_swap_b32 v{dst+t}, v{dst+4+t}")
    for i in range(4): a(f"ds_write_b128 v4, {vr(K8+4*i,4)} offset:{1280+16*i}")
    LNH = a.newlabel("nohs"); LHD = a.newlabel("hsd")
    a(f"s_cmp_lg_u32 s52, 1\ns_cbranch_scc1 {LNH}")
    a(f"s_mov_b64 exec, s[{MHI}:{MHI+1}]")
    for i in range(4): a(f"buffer_store_dwordx4 {vr(K8+4*i,4)}, v5, {srd(S_WS)}, s58 offen offset:{512*i} sc1")
    a(f"s_mov_b64 exec, -1\ns_branch {LHD}")
    a.label(LNH)
    a("s_waitcnt lgkmcnt(0)")
    lds_set(60, 0, 6, 7)
    a.label(LHD)
    for i in range(8): a(f"v_cvt_pk_bf16_f32 v{Q8+i}, v{ACCQ+2*i}, v{ACCQ+2*i+1}")
    a("s_nop 0")
    for t in range(4): a(f"v_permlane32_swap_b32 v{Q8+t}, v{Q8+4+t}")

def a_local_back():
    KB = 88; LG = 144
    PLO, PHI, OACC = 16, 24, 32
    LZ = a.newlabel("hz"); LD = a.newlabel("hd"); LN0 = a.newlabel("nohl"); LN1 = a.newlabel("hl1")
    a(f"s_cmp_lg_u32 s52, 0\ns_cbranch_scc1 {LN1}")
    a(f"s_cmp_eq_u32 s54, 0\ns_cbranch_scc1 {LZ}")
    a(f"s_sub_u32 s59, s59, 2048\ns_sub_u32 s58, s58, {16*2048}\nv_mov_b32 v7, 0")
    poll(7, 59, 6, 8)
    a(f"s_mov_b64 exec, s[{MLO}:{MLO+1}]")
    for i in range(4): a(f"buffer_load_dwordx4 {vr(KB+4*i,4)}, v5, {srd(S_WS)}, s58 offen offset:{512*i} sc1")
    a(f"s_waitcnt vmcnt(0)\ns_branch {LD}")
    a.label(LZ)
    a(f"s_mov_b64 exec, s[{MLO}:{MLO+1}]")
    for i in range(16): a(f"v_mov_b32 v{KB+i}, 0")
    a.label(LD)
    for i in range(4): a(f"ds_write_b128 v4, {vr(KB+4*i,4)} offset:{16*i}")
    a(f"s_mov_b64 exec, -1\ns_waitcnt lgkmcnt(0)\ns_branch {LN0}")
    a.label(LN1)
    a("v_mov_b32 v7, s60")
    lds_wait(7, 0, 6)
    a.label(LN0)
    for w in range(1, 8):
        a(f"ds_read_b128 {vr(KB+8*(w-1),4)}, v4 offset:{1280-160*w}")
        a(f"ds_read_b128 {vr(KB+8*(w-1)+4,4)}, v4 offset:{1280-160*w+16}")
    kreg = lambda w, i: (K8 + i) if w == 0 else (KB + 8 * (w - 1) + i)
    for i in range(8): a(f"v_dot2_f32_bf16 v{LG}, v{Q8+i}, v{kreg(0,i)}, {'0' if i==0 else f'v{LG}'}")
    for w in range(1, 8):
        a(f"s_waitcnt lgkmcnt({2*(7-w)})")
        for i in range(8): a(f"v_dot2_f32_bf16 v{LG+w}, v{Q8+i}, v{kreg(w,i)}, {'0' if i==0 else f'v{LG+w}'}")
    for w in range(1, 8):
        a(f"ds_read_b128 {vr(KB+8*(w-1),4)}, v4 offset:{1280-160*w+32}")
        a(f"ds_read_b128 {vr(KB+8*(w-1)+4,4)}, v4 offset:{1280-160*w+48}")
    for i in range(4): a(f"v_cvt_pk_bf16_f32 v{152+i}, v{LG+2*i}, v{LG+2*i+1}")
    for i in range(4): a(f"v_lshlrev_b32 v{LG+2*i}, 16, v{152+i}\nv_and_b32 v{LG+2*i+1}, 0xffff0000, v{152+i}")
    LM = a.newlabel("nomask")
    a(f"s_cmp_lg_u32 s54, 0\ns_cbranch_scc1 {LM}\nv_mov_b32 v6, 0xf149f2ca")
    for w in range(1, 8):
        a(f"v_cmp_gt_u32 vcc, {2*w}, v2\ns_nop 1\nv_cndmask_b32 v{LG+w}, v{LG+w}, v6, vcc")
    a.label(LM)
    a(f"""
    v_max3_f32 v6, v{LG}, v{LG+1}, v{LG+2}
    v_max3_f32 v7, v{LG+3}, v{LG+4}, v{LG+5}
    v_max3_f32 v6, v6, v{LG+6}, v{LG+7}
    v_max_f32 v6, v6, v7
    s_mov_b32 s60, {f2u(QSCALE)}
    """)
    for w in range(8): a(f"v_sub_f32 v{LG+w}, v{LG+w}, v6")
    for w in range(8): a(f"v_mul_f32 v{LG+w}, s60, v{LG+w}")
    for w in range(8): a(f"v_exp_f32 v{LG+w}, v{LG+w}")
    a(f"""
    v_add_f32 v6, v{LG}, v{LG+1}
    v_add_f32 v7, v{LG+2}, v{LG+3}
    v_add_f32 v8, v{LG+4}, v{LG+5}
    v_add_f32 v9, v{LG+6}, v{LG+7}
    v_add_f32 v6, v6, v7
    v_add_f32 v8, v8, v9
    v_add_f32 v6, v6, v8
    v_rcp_f32 v6, v6
    s_nop 0
    """)
    for w in range(8): a(f"v_mul_f32 v{LG+w}, v{LG+w}, v6")
    for w in range(8): a(f"v_cvt_pk_bf16_f32 v{PLO+w}, v{LG+w}, 0\nv_cvt_pk_bf16_f32 v{PHI+w}, 0, v{LG+w}")
    vreg = lambda w, i: (V8 + i) if w == 0 else (KB + 8 * (w - 1) + i)
    for w in range(8):
        if w >= 1: a(f"s_waitcnt lgkmcnt({2*(7-w)})")
        for i in range(8):
            c0 = "0" if w == 0 else f"v{OACC+2*i}"
            c1 = "0" if w == 0 else f"v{OACC+2*i+1}"
            a(f"v_dot2_f32_bf16 v{OACC+2*i}, v{vreg(w,i)}, v{PLO+w}, {c0}")
            a(f"v_dot2_f32_bf16 v{OACC+2*i+1}, v{vreg(w,i)}, v{PHI+w}, {c1}")
    a(f"s_lshl_b32 s58, s51, 2\ns_add_u32 s58, s58, {SYNC+96}")
    lds_set(58, 0, 6, 7)
    a(f"""
    s_lshl_b32 s58, s54, 15
    s_lshl_b32 s59, s55, 11
    s_add_u32 s58, s58, s59
    s_add_u32 s58, s58, {WS_OA}
    v_lshlrev_b32 v5, 4, v2
    v_lshlrev_b32 v6, 10, v3
    v_add_u32 v5, v5, v6
    """)
    for i in range(8): a(f"v_cvt_pk_bf16_f32 v{64+i}, v{OACC+2*i}, v{OACC+2*i+1}")
    a(f"buffer_store_dwordx4 v[64:67], v5, {srd(S_WS)}, s58 offen sc1")
    a(f"buffer_store_dwordx4 v[68:71], v5, {srd(S_WS)}, s58 offen offset:512 sc1")
    a(f"""
    s_lshl_b32 s59, s54, 11
    s_lshl_b32 s60, s55, 7
    s_add_u32 s59, s59, s60
    s_add_u32 s59, s59, {FA}
    s_waitcnt vmcnt(0)
    """)
    set_flag(59, 6, 7)

WO = 40
OACC2 = 16
def op_setup():
    a(f"""
    s_lshl_b32 s61, s4, 3
    s_and_b32 s50, s5, 7
    s_add_u32 s61, s61, s50
    s_lshr_b32 s62, s5, 3
    s_lshl_b32 s62, s62, 8
    s_lshl_b32 s50, s51, 6
    s_add_u32 s62, s62, s50
    s_mul_i32 s63, s51, {AW}
    v_lshrrev_b32 v14, 2, v1
    v_lshlrev_b32 v14, 10, v14
    v_and_b32 v15, 3, v1
    v_lshlrev_b32 v15, 4, v15
    v_add_u32 v14, v14, v15
    v_lshrrev_b32 v15, 5, v1
    v_lshlrev_b32 v15, 8, v15
    v_and_b32 v2, 12, v1
    v_lshlrev_b32 v2, 4, v2
    v_add_u32 v15, v15, v2
    v_and_b32 v2, 16, v1
    v_lshlrev_b32 v2, 1, v2
    v_add_u32 v15, v15, v2
    v_and_b32 v2, 3, v1
    v_lshlrev_b32 v2, 3, v2
    v_add_u32 v15, v15, v2
    v_add_u32 v15, s63, v15
    """)

def wo_preload(swo):
    NS = 7
    def dma(s):
        a(f"s_add_u32 m0, s63, {(s%NS)*1024}\ns_add_u32 s50, s62, {s*16384}")
        a(f"buffer_load_dwordx4 v14, {srd(swo)}, s50 offen lds")
    for s in range(NS): dma(s)
    for s in range(32):
        issued = min(32, s + NS - 1 if s > 0 else NS)
        a(f"s_waitcnt vmcnt({issued - 1 - s})")
        a(f"ds_read_b64_tr_b16 {vr(WO+4*s,2)}, v15 offset:{(s%NS)*1024}")
        a(f"ds_read_b64_tr_b16 {vr(WO+4*s+2,2)}, v15 offset:{(s%NS)*1024+512}")
        if s >= 1 and s - 1 + NS < 32:
            a("s_waitcnt lgkmcnt(2)")
            dma(s - 1 + NS)
    a("s_waitcnt lgkmcnt(0)")

def op_addr(colbase, va, vb):
    a(f"""
    v_and_b32 v{va}, 31, v1
    v_lshlrev_b32 v{va}, 11, v{va}
    v_lshrrev_b32 v{vb}, 5, v1
    v_lshlrev_b32 v{vb}, 4, v{vb}
    v_add_u32 v{va}, v{va}, v{vb}
    s_lshl_b32 s55, s61, 16
    s_add_u32 s55, s55, s62
    s_add_u32 s55, s55, {colbase*2}
    """)

def op_store(va):
    a.nop(12)
    for i in range(8): a(f"v_cvt_pk_bf16_f32 v{32+i}, v{OACC2+2*i}, v{OACC2+2*i+1}")
    a("s_nop 1")
    a("v_permlane32_swap_b32 v32, v34\nv_permlane32_swap_b32 v33, v35\nv_permlane32_swap_b32 v36, v38\nv_permlane32_swap_b32 v37, v39")
    a(f"buffer_store_dwordx4 v[32:35], v{va}, {srd(S_OUT)}, s55 offen")
    a(f"buffer_store_dwordx4 v[36:39], v{va}, {srd(S_OUT)}, s55 offen offset:32")

BUFS = [2, 6, 10, 32, 36]
def outproj_a():
    a(f"v_and_b32 v2, 15, v1\nv_lshlrev_b32 v2, 7, v2\ns_lshl_b32 s56, s61, 11\ns_add_u32 s56, s56, {FA}")
    poll(2, 56, 3, 16)
    stamp(5)
    a(f"v_lshlrev_b32 v0, 4, v1\ns_lshl_b32 s56, s61, 15\ns_add_u32 s56, s56, {WS_OA}")
    def ld(s):
        a(f"s_add_u32 s57, s56, {(s>>2)*4096}")
        a(f"buffer_load_dwordx4 {vr(BUFS[s%5],4)}, v0, {srd(S_WS)}, s57 offen offset:{(s&3)*1024} sc1")
    for s in range(5): ld(s)
    for s in range(32):
        a(f"s_waitcnt vmcnt({min(4, 31-s)})")
        a(f"{MF} {vr(OACC2,16)}, {vr(WO+4*s,4)}, {vr(BUFS[s%5],4)}, {'0' if s==0 else vr(OACC2,16)}")
        if s + 5 < 32: ld(s + 5)
    op_addr(0, 2, 3)
    op_store(2)

def outproj_b():
    op_addr(512, 14, 15)
    a(f"""
    v_lshlrev_b32 v0, 4, v1
    v_add_u32 v15, {KVB}, v0
    s_lshl_b32 s58, s61, 15
    s_add_u32 s58, s58, {WS_OB}
    s_lshl_b32 s57, s51, 12
    s_add_u32 s58, s58, s57
    s_add_u32 s59, s58, 16384
    s_add_u32 s57, s57, {KVB}
    """)
    LNP = a.newlabel("nopoll")
    a(f"s_cmp_lg_u32 s51, 0\ns_cbranch_scc1 {LNP}")
    a(f"v_and_b32 v2, 31, v1\nv_lshlrev_b32 v2, 7, v2\ns_lshl_b32 s56, s61, 12\ns_add_u32 s56, s56, {FB2}")
    a(f"v_and_b32 v5, 7, v1\nv_lshlrev_b32 v5, 2, v5\nv_add_u32 v5, {SYNC+64}, v5")
    L = a.newlabel("xfw"); D = a.newlabel("xfd")
    a("s_mov_b32 s50, 0x80000")
    a.label(L)
    a(f"""
    ds_read_b32 v3, v5
    s_waitcnt lgkmcnt(0)
    v_cmp_ne_u32 vcc, s{TAG}, v3
    s_nop 1
    s_cmp_eq_u64 vcc, 0
    s_cbranch_scc1 {D}
    s_sleep 4
    s_sub_u32 s50, s50, 1
    s_cmp_lg_u32 s50, 0
    s_cbranch_scc1 {L}
    """)
    a.label(D)
    stamp(8)
    poll2(2, 56, 3)
    a.label(LNP)
    a("s_barrier")
    stamp(9)
    a("s_mov_b32 m0, s57\ns_nop 0")
    for i in range(4): a(f"buffer_load_dwordx4 v0, {srd(S_WS)}, s58 offen offset:{i*1024} sc1 lds")
    a("s_add_u32 m0, s57, 16384\ns_nop 0")
    for i in range(4): a(f"buffer_load_dwordx4 v0, {srd(S_WS)}, s59 offen offset:{i*1024} sc1 lds")
    a("s_waitcnt vmcnt(4)\ns_barrier")
    for s in range(5): a(f"ds_read_b128 {vr(BUFS[s],4)}, v15 offset:{s*1024}")
    for s in range(32):
        if s == 11: a("s_waitcnt vmcnt(0)\ns_barrier")
        a(f"s_waitcnt lgkmcnt({min(4, 31-s)})")
        a(f"{MF} {vr(OACC2,16)}, {vr(WO+4*s,4)}, {vr(BUFS[s%5],4)}, {'0' if s==0 else vr(OACC2,16)}")
        if s + 5 < 32: a(f"ds_read_b128 {vr(BUFS[s%5],4)}, v15 offset:{(s+5)*1024}")
    op_store(14)

QF, NEG, OA_, SB = [2, 120], [16, 124], [32, 140], [48, 64]
PA, PB = 80, 84
KF = [96, 100]
VF = [[104, 108], [112, 116]]
VKA, VVA, VSY = 6, 7, 8
VK, VV, VKN, VVN = 13, 14, 92, 93

def att_ids():
    a(f"""
    s_lshl_b32 s58, s4, 2
    s_and_b32 s50, s5, 3
    s_add_u32 s58, s58, s50
    s_lshr_b32 s59, s5, 2
    s_lshl_b32 s59, s59, 3
    s_and_b32 s50, s3, 3
    s_lshl_b32 s50, s50, 1
    s_add_u32 s59, s59, s50
    s_lshr_b32 s60, s3, 2
    v_lshlrev_b32 v{VKA}, 4, v1
    """)

def q_load():
    a(f"""
    s_lshl_b32 s56, s58, 16
    s_lshl_b32 s57, s59, 10
    s_add_u32 s56, s56, s57
    buffer_load_dwordx4 {vr(QF[0],4)}, v{VKA}, {srd(S_WS)}, s56 offen sc1
    buffer_load_dwordx4 {vr(QF[1],4)}, v{VKA}, {srd(S_WS)}, s56 offen offset:1024 sc1
    """)

def kv_dma(vlane16, shead, swave, first_kb, n):
    a(f"""
    s_lshl_b32 s56, s{shead}, 17
    s_mul_i32 s57, s{swave}, {n*1024}
    s_add_u32 s57, s57, {first_kb*1024}
    s_add_u32 s56, s56, s57
    s_add_u32 s56, s56, {WS_KV}
    """)
    for i in range(n):
        if i % 4 == 0: a(f"s_add_u32 m0, s57, {KVB + i*1024}\ns_add_u32 s55, s56, {i*1024}")
        a(f"buffer_load_dwordx4 v{vlane16}, {srd(S_WS)}, s55 offen offset:{(i%4)*1024} sc1 lds")

def rowmax(S):
    a(f"v_max3_f32 v11, v{S}, v{S+1}, v{S+2}")
    for i in range(3, 15, 2): a(f"v_max3_f32 v11, v11, v{S+i}, v{S+i+1}")
    a(f"v_max_f32 v11, v11, v{S+15}")

def finish_negm(N):
    a(f"""
    v_mov_b32 v12, v11
    s_nop 1
    v_permlane32_swap_b32 v11, v12
    s_nop 1
    v_max_f32 v11, v11, v12
    v_sub_f32 v{N}, 0, v11
    v_sub_f32 v{N+1}, 0, v11
    """)
    for i in range(2, 16, 2): a(f"v_pk_mov_b32 v[{N+i}:{N+i+1}], v[{N}:{N+1}], v[{N}:{N+1}]")

def att_pre():
    a(f"""
    v_lshrrev_b32 v{VVA}, 5, v1
    v_lshlrev_b32 v{VVA}, 8, v{VVA}
    v_and_b32 v9, 15, v1
    v_lshlrev_b32 v9, 4, v9
    v_add_u32 v{VVA}, v{VVA}, v9
    v_add_u32 v{VVA}, {KVB+1024}, v{VVA}
    v_and_b32 v{VSY}, 3, v1
    v_lshlrev_b32 v{VSY}, 2, v{VSY}
    v_add_u32 v{VSY}, {SYNC}, v{VSY}
    s_lshl_b32 s50, s60, 13
    v_add_u32 v15, {KVB}, v{VKA}
    v_add_u32 v{VK}, s50, v15
    v_add_u32 v{VV}, s50, v{VVA}
    v_add_u32 v{VKN}, 16384, v{VK}
    v_add_u32 v{VVN}, 16384, v{VV}
    """)
    for r in range(104, 120): a(f"v_mov_b32 v{r}, 0")
    a("s_mov_b32 exec_lo, 0x110000\ns_mov_b32 exec_hi, 0x110000")
    for r in range(104, 120): a(f"v_mov_b32 v{r}, 0x3f803f80")
    a("s_mov_b64 exec, -1")
    for q in range(2):
        for i in range(16): a(f"v_mov_b32 v{OA_[q]+i}, 0")

def attention():
    for i in range(4): a(f"v_mov_b32 v{PB+i}, 0")
    a(f"""
    ds_read_b128 {vr(88,4)}, v15
    ds_read_b128 {vr(KF[0],4)}, v{VK}
    ds_read_b128 {vr(KF[1],4)}, v{VK} offset:2048
    s_mov_b64 exec, s[{MLO}:{MLO+1}]
    ds_read_b128 {vr(VF[0][0],4)}, v{VV}
    ds_read_b128 {vr(VF[0][1],4)}, v{VV} offset:512
    s_mov_b64 exec, -1
    s_waitcnt vmcnt(0) lgkmcnt(4)
    {MF} {vr(SB[0],16)}, {vr(88,4)}, {vr(QF[0],4)}, 0
    {MF} {vr(SB[1],16)}, {vr(88,4)}, {vr(QF[1],4)}, 0
    """)
    a.nop(11)
    for q in range(2):
        rowmax(SB[q]); finish_negm(NEG[q])
    if "noprio" not in OPT: a("s_setprio 2")
    a(f"s_mov_b32 s62, 0\ns_waitcnt lgkmcnt(3)\n{MF} {vr(SB[0],16)}, {vr(KF[0],4)}, {vr(QF[0],4)}, {vr(NEG[0],16)}")
    stamp(7)
    cstamp(9, True)
    a.nop(6)
    LOOP = a.newlabel("att_loop"); LS1 = a.newlabel("att_s1"); LS2 = a.newlabel("att_s2"); LS3 = a.newlabel("att_s3"); LB = a.newlabel("att_body")
    a(".p2align 6")
    a.label(LOOP)
    a(f"s_cmp_eq_u32 s62, 1\ns_cbranch_scc1 {LS1}\ns_cmp_eq_u32 s62, 4\ns_cbranch_scc1 {LS2}\ns_cmp_eq_u32 s62, 7\ns_cbranch_scc1 {LS3}")
    a.label(LB)
    kaddr = lambda u: f"v{VK} offset:{u*2048}" if u < 4 else f"v{VKN} offset:{(u-4)*2048}"
    vaddr = lambda u, o: f"v{VV} offset:{u*2048+o}" if u < 4 else f"v{VVN} offset:{(u-4)*2048+o}"
    for tl in range(4):
        kb = tl & 1
        for q in range(2):
            S = SB[q]; Sn = SB[q ^ 1]
            e = lambda i: f"v_exp_f32 v{S+i}, v{S+i}"
            c = lambda i: f"v_cvt_pk_bf16_f32 v{PA+i}, v{S+2*i}, v{S+2*i+1}"
            last = q == 1; first = q == 0
            nk = KF[kb ^ 1] if last else KF[kb]
            pv = VF[kb ^ 1] if first else VF[kb]
            if last: a("s_waitcnt lgkmcnt(2)")
            a(f"{MF} {vr(Sn,16)}, {vr(nk,4)}, {vr(QF[q^1],4)}, {vr(NEG[q^1],16)}")
            if last: a(f"ds_read_b128 {vr(KF[kb],4)}, {kaddr(tl+2)}")
            for i in range(4): a(e(i))
            a(f"{MF} {vr(OA_[q^1],16)}, {vr(pv[1],4)}, {vr(PB,4)}, {vr(OA_[q^1],16)}")
            if first:
                a(f"s_mov_b64 exec, s[{MLO}:{MLO+1}]")
                a(f"ds_read_b128 {vr(VF[kb^1][0],4)}, {vaddr(tl+1,0)}")
                a(f"ds_read_b128 {vr(VF[kb^1][1],4)}, {vaddr(tl+1,512)}")
                a("s_mov_b64 exec, -1")
            for x in [c(0), e(4), e(5), c(1), e(6), e(7), c(2), e(8), c(3), e(9), e(10)]: a(x)
            if first: a("s_waitcnt lgkmcnt(3)")
            a(f"{MF} {vr(OA_[q],16)}, {vr(VF[kb][0],4)}, {vr(PA,4)}, {vr(OA_[q],16)}")
            for x in [e(11), c(4), e(12), e(13), c(5), e(14), e(15), c(6), c(7)]: a(x)
    a(f"""
    v_mov_b32 v{VK}, v{VKN}
    v_mov_b32 v{VV}, v{VVN}
    v_add_u32 v{VKN}, 16384, v{VKN}
    v_add_u32 v{VVN}, 16384, v{VVN}
    s_add_u32 s62, s62, 1
    s_cmp_lt_u32 s62, 8
    s_cbranch_scc1 {LOOP}
    {MF} {vr(OA_[1],16)}, {vr(VF[1][1],4)}, {vr(PB,4)}, {vr(OA_[1],16)}
    """)
    stamp(8)
    cstamp(9, False)
    lds_wait(VSY, 32, 10)
    LK1 = a.newlabel("kh1"); LKD = a.newlabel("khd")
    a(f"""
    s_mul_i32 s56, s3, 2304
    s_xor_b32 s57, s3, 4
    s_mul_i32 s57, s57, 2304
    v_add_u32 v10, s56, v{VKA}
    v_add_u32 v11, s57, v{VKA}
    v_lshlrev_b32 v12, 2, v1
    v_add_u32 v9, s57, v12
    v_add_u32 v12, s56, v12
    s_lshl_b32 s56, s3, 2
    s_add_u32 s56, s56, {SYNC+64}
    s_xor_b32 s57, s56, 16
    s_add_u32 s59, s59, s60
    s_cmp_eq_u32 s60, 0
    s_cbranch_scc0 {LK1}
    ds_write_b128 v10, {vr(OA_[1],4)}
    ds_write_b128 v10, {vr(OA_[1]+4,4)} offset:1024
    ds_write_b32 v12, v{OA_[1]+8} offset:2048
    s_branch {LKD}
    """)
    a.label(LK1)
    a(f"""
    ds_write_b128 v10, {vr(OA_[0],4)}
    ds_write_b128 v10, {vr(OA_[0]+4,4)} offset:1024
    ds_write_b32 v12, v{OA_[0]+8} offset:2048
    s_nop 0
    """)
    for i in range(9): a(f"v_mov_b32 v{OA_[0]+i}, v{OA_[1]+i}")
    for i in range(4): a(f"v_mov_b32 v{QF[0]+i}, v{QF[1]+i}")
    a.label(LKD)
    a("s_waitcnt lgkmcnt(0)")
    lds_set(56, 0, 13, 14)
    a("v_mov_b32 v14, s57")
    a(f"s_lshl_b32 s56, s59, 15\ns_lshl_b32 s57, s58, 10\ns_add_u32 s56, s56, s57\ns_add_u32 s56, s56, {WS_OB}")
    a(f"s_lshl_b32 s55, s59, 12\ns_lshl_b32 s57, s58, 7\ns_add_u32 s55, s55, s57\ns_add_u32 s55, s55, {FB2}")
    lds_wait(14, 0, 13)
    O = OA_[0]
    a(f"""
    ds_read_b128 {vr(48,4)}, v11
    ds_read_b128 {vr(52,4)}, v11 offset:1024
    ds_read_b32 v56, v9 offset:2048
    v_mov_b32 v10, {f2u(2.0**60)}
    s_waitcnt lgkmcnt(0)
    """)
    for i in range(9): a(f"v_add_f32 v{O+i}, v{O+i}, v{48+i}")
    LOK = a.newlabel("att_ok"); LFB = a.newlabel("att_fb")
    a(f"v_fma_f32 v11, v{O}, 0, v{O+8}")
    for i in range(1, 8): a(f"v_fma_f32 v11, v{O+i}, 0, v11")
    a(f"v_cmp_nlt_f32 vcc, v11, v10")
    a(f"s_nop 1\ns_cmp_eq_u64 vcc, 0\ns_cbranch_scc0 {LFB}")
    a.label(LOK)
    a(f"v_rcp_f32 v10, v{O+8}\ns_nop 0")
    for i in range(8): a(f"v_mul_f32 v{O+i}, v{O+i}, v10")
    for i in range(4): a(f"v_cvt_pk_bf16_f32 v{PA+i}, v{O+2*i}, v{O+2*i+1}")
    a(f"buffer_store_dwordx4 {vr(PA,4)}, v{VKA}, {srd(S_WS)}, s56 offen sc1\ns_waitcnt vmcnt(0)")
    set_flag(55, 10, 11)
    dump_stamps()
    a("s_endpgm")
    a.label(LS1)
    lds_wait(VSY, 0, 10)
    a(f"s_branch {LB}")
    a.label(LS2)
    lds_wait(VSY, 16, 10)
    if "noprio" not in OPT: a("s_setprio 1")
    a(f"s_branch {LB}")
    a.label(LS3)
    if "noprio" not in OPT: a("s_setprio 0")
    a(f"v_mov_b32 v{VKN}, v{VK}\nv_mov_b32 v{VVN}, v{VV}\ns_branch {LB}")
    a.label(LFB)
    LM = a.newlabel("att_mx"); LP = a.newlabel("att_p2")
    S = SB[0]
    a(f"v_mov_b32 v13, v15\nv_mov_b32 v9, 0xff800000\ns_mov_b32 s62, 0")
    a.label(LM)
    a(f"ds_read_b128 {vr(KF[0],4)}, v13\ns_waitcnt lgkmcnt(0)")
    a(f"{MF} {vr(S,16)}, {vr(KF[0],4)}, {vr(QF[0],4)}, 0")
    a.nop(12)
    rowmax(S)
    a(f"""
    v_max_f32 v9, v9, v11
    v_add_u32 v13, 2048, v13
    s_add_u32 s62, s62, 1
    s_cmp_lt_u32 s62, 64
    s_cbranch_scc1 {LM}
    v_mov_b32 v11, v9
    """)
    finish_negm(NEG[0])
    for i in range(16): a(f"v_mov_b32 v{O+i}, 0")
    a(f"v_mov_b32 v13, v15\nv_mov_b32 v14, v{VVA}\ns_mov_b32 s62, 0")
    a.label(LP)
    a(f"""
    ds_read_b128 {vr(KF[0],4)}, v13
    s_mov_b64 exec, s[{MLO}:{MLO+1}]
    ds_read_b128 {vr(VF[0][0],4)}, v14
    ds_read_b128 {vr(VF[0][1],4)}, v14 offset:512
    s_mov_b64 exec, -1
    s_waitcnt lgkmcnt(0)
    {MF} {vr(S,16)}, {vr(KF[0],4)}, {vr(QF[0],4)}, {vr(NEG[0],16)}
    """)
    a.nop(12)
    for i in range(16): a(f"v_exp_f32 v{S+i}, v{S+i}")
    a("s_nop 0")
    for i in range(8): a(f"v_cvt_pk_bf16_f32 v{PA+i}, v{S+2*i}, v{S+2*i+1}")
    a(f"""
    v_add_u32 v13, 2048, v13
    v_add_u32 v14, 2048, v14
    {MF} {vr(O,16)}, {vr(VF[0][0],4)}, {vr(PA,4)}, {vr(O,16)}
    {MF} {vr(O,16)}, {vr(VF[0][1],4)}, {vr(PB,4)}, {vr(O,16)}
    s_add_u32 s62, s62, 1
    s_cmp_lt_u32 s62, 64
    s_cbranch_scc1 {LP}
    """)
    a.nop(12)
    a(f"s_branch {LOK}")

a('.amdgcn_target "amdgcn-amd-amdhsa--gfx950"\n.text')
k = NAME + "_kernel"
prologue(k)
LG1 = a.newlabel("g1"); LG2 = a.newlabel("g2"); LATT = a.newlabel("att"); LG0 = a.newlabel("g0"); LQW = a.newlabel("qwait")
a(f"s_cmp_lt_u32 s3, 4\ns_cbranch_scc1 {LG0}\ns_cmp_ge_u32 s3, 8\ns_cbranch_scc1 {LG2}")
loader()
att_ids()
att_pre()
a("s_barrier")
if YX:
    dump_stamps(); a("s_endpgm")
a.label(LQW)
a(f"v_mov_b32 v10, {SYNC+120}")
lds_wait(10, 0, 11)
stamp(5)
q_load()
a(f"v_mov_b32 v10, {SYNC+48}")
lds_wait(10, 0, 11)
stamp(6)
a(f"s_branch {LATT}")
a.label(LG0)
publish_tag()
a("s_mov_b32 s51, s3")
gemm_setup()
b_addr()
a("s_barrier")
stamp(1)
cstamp(10, True)
gemm_main(0, True)
stamp(2)
cstamp(10, False)
b_epilogue()
att_ids()
a(f"""
s_lshl_b32 s61, s7, 12
s_lshl_b32 s57, s6, 7
s_add_u32 s61, s61, s57
s_lshl_b32 s57, s3, 2
s_add_u32 s61, s61, s57
s_add_u32 s61, s61, {FB1}
s_lshl_b32 s62, s4, 12
s_add_u32 s62, s62, {FB1}
s_mov_b32 s63, 0
v_lshrrev_b32 v10, 1, v1
v_lshlrev_b32 v10, 7, v10
v_and_b32 v11, 1, v1
v_lshlrev_b32 v11, 3, v11
v_add_u32 v10, v10, v11
""")
def pload():
    a(f"buffer_load_dwordx2 v[90:91], v10, {srd(S_WS)}, s62 offen sc1")
def pcheck(lfail):
    a(f"v_cmp_ne_u32 vcc, s{TAG}, v90\nv_cmp_ne_u32 s[56:57], s{TAG}, v91\ns_nop 1\ns_or_b64 vcc, vcc, s[56:57]\ns_cmp_eq_u64 vcc, 0\ns_cbranch_scc0 {lfail}")
def kv_first():
    stamp(5)
    a("s_mov_b32 s55, 0")
    kv_dma(VKA, 58, 55, 0, 32)
    q_load()
    a("s_mov_b32 s63, 2")
def tick(kv_ok, may_poll=True):
    if "y4" in OPT: return
    LE = a.newlabel("tk"); L1 = a.newlabel("tk1"); LP = a.newlabel("tkp")
    a(f"""
    s_getreg_b32 s50, hwreg(HW_REG_IB_STS, 0, 4)
    s_cmp_lg_u32 s50, 0
    s_cbranch_scc1 {LE}
    s_cmp_eq_u32 s63, 2
    s_cbranch_scc1 {LE}
    s_cmp_eq_u32 s63, 1
    s_cbranch_scc1 {L1}
    """)
    set_flag(61, 11, 12)
    stamp(3)
    a(f"s_cmp_eq_u32 s3, 0\ns_cselect_b32 s63, 1, 2\ns_cbranch_scc1 {LP}\ns_branch {LE}")
    a.label(L1)
    if kv_ok:
        pcheck(LP)
        kv_first()
        a(f"s_branch {LE}")
    a.label(LP)
    if may_poll: pload()
    else: a("v_mov_b32 v90, 0")
    a.label(LE)
a("s_barrier")
att_pre()
tick(False, False)
for r in range(11, 16):
    a("s_barrier")
    tick(r >= 14, r >= 13)
a("s_barrier")
stamp(4)
if YX:
    dump_stamps(); a("s_endpgm")
LD0 = a.newlabel("fin0"); LD1 = a.newlabel("fin1"); LDP = a.newlabel("finp"); LDF = a.newlabel("finf")
a(f"s_cmp_lg_u32 s63, 0\ns_cbranch_scc1 {LD0}\ns_waitcnt vmcnt(0)")
set_flag(61, 11, 12)
a(f"s_cmp_lg_u32 s3, 0\ns_cbranch_scc1 {LQW}\ns_mov_b32 s63, 1")
pload()
a.label(LD0)
a(f"s_cmp_lg_u32 s3, 0\ns_cbranch_scc1 {LQW}")
a(f"s_cmp_eq_u32 s63, 2\ns_cbranch_scc1 {LD1}\ns_mov_b32 s54, {POLL_LIMIT}")
a.label(LDP)
a("s_waitcnt vmcnt(0)")
pcheck(LDF)
kv_first()
a(f"s_branch {LD1}")
a.label(LDF)
pload()
a(f"s_sub_u32 s54, s54, 1\ns_cmp_lg_u32 s54, 0\ns_cbranch_scc1 {LDP}")
a.label(LD1)
a(f"s_mov_b32 s56, {SYNC}")
lds_set(56, 120, 10, 11)
a("s_waitcnt vmcnt(0)")
lds_set(56, 48, 10, 11)
stamp(6)
a.label(LATT)
attention()
a.label(LG2)
a("s_sub_u32 s51, s3, 8\ns_setprio 3")
gemm_setup()
for _ in range(9): a("s_barrier")
stamp(1)
gemm_main(8, False)
stamp(2)
if YX:
    dump_stamps(); a("s_endpgm")
a("s_waitcnt vmcnt(0)")
tag_from(9, 10)
a_local_front()
a(f"""
s_lshl_b32 s61, s4, 2
s_and_b32 s50, s5, 3
s_add_u32 s61, s61, s50
v_lshlrev_b32 v10, 4, v1
s_lshl_b32 s62, s51, 2
s_add_u32 s62, s62, {SYNC}
v_and_b32 v11, 3, v1
v_lshlrev_b32 v11, 2, v11
v_add_u32 v11, {SYNC}, v11
s_mov_b32 s63, s55
""")
a(f"v_mov_b32 v13, {SYNC+48}")
lds_wait(13, 0, 12)
kv_dma(10, 61, 51, 32, 12)
kv_dma(10, 61, 51, 80, 12)
LHF = a.newlabel("nohf")
a(f"s_cmp_lg_u32 s52, 1\ns_cbranch_scc1 {LHF}\ns_waitcnt vmcnt(24)")
set_flag(59, 12, 13)
a.label(LHF)
a("s_waitcnt vmcnt(12)")
lds_set(62, 0, 12, 13)
a("s_waitcnt vmcnt(0)\ns_mov_b32 s55, s63")
lds_set(62, 16, 12, 13)
stamp(10)
a_local_back()
stamp(3)
lds_wait(11, 96, 12)
op_setup()
wo_preload(S_AWO)
stamp(4)
outproj_a()
stamp(6)
wo_preload(S_BWO)
a(f"s_lshl_b32 s56, s51, 2\ns_add_u32 s56, s56, {SYNC}")
lds_set(56, 32, 2, 3)
stamp(7)
outproj_b()
dump_stamps()
a("s_endpgm")
a.label("L_exit")
a("s_endpgm")

hdr = open(f"cdna_kernels/{NAME}.s.ref").read().split("; Override")[0]
hdr += f"; @launch grid=(256,1,1) block=(768,1,1) lds={LDS_BYTES}\n"
tail = f'''.section .rodata,"a"
.p2align 6
.amdhsa_kernel {k}
  .amdhsa_next_free_vgpr 168
  .amdhsa_next_free_sgpr 96
  .amdhsa_accum_offset 168
  .amdhsa_group_segment_fixed_size 0
  .amdhsa_kernarg_size 72
  .amdhsa_user_sgpr_count 2
  .amdhsa_user_sgpr_kernarg_segment_ptr 1
  .amdhsa_system_sgpr_workgroup_id_x 1
.end_amdhsa_kernel
'''
if "y1" in OPT:
    a.lines = [l for l in a.lines if not (l.startswith("buffer_store_dwordx4 v[") and "sc1" in l)]
probs = check(a.lines)
for p in probs: print(p)
open(OUT, "w").write(hdr + a.text() + tail)
print("wrote", OUT, len(a.lines), "lines;", len(probs), "hazards")
```

```python
import sys, math, struct
from asmlib import *

NAME = "concat_heads__sliding_local_dilated__softmax_full_mha__prompt"
OUT = sys.argv[1] if len(sys.argv) > 1 else f"cdna_kernels/{NAME}.s"
OPT = set(sys.argv[2:])

WS_Q = 0
WS_KV = 2 << 20
WS_OB = 6 << 20
WS_OA = 8 << 20
WS_HALO = 10 << 20
WS_FLAG = 12 << 20
FB1 = WS_FLAG
FB2 = WS_FLAG + (128 << 10)
FA = WS_FLAG + (384 << 10)
HF = WS_FLAG + (512 << 10)
WS_STAMP = 14 << 20
WS_SIZE = 16 << 20

SLOT = 32768
AREG = 0
AW = 7680
SYNC = 30720
KVB = 32768
LDS_BYTES = 163840

S_AX, S_AW, S_AWO, S_BX, S_BW, S_BWO, S_OUT, S_DBG, S_WS = 8, 12, 16, 20, 24, 28, 32, 36, 40
def srd(b): return f"s[{b}:{b+3}]"
TAG, ROT, MLO, MHI = 44, 45, 46, 48
QSCALE = 0.25 * math.log2(math.e)
def f2u(x): return struct.unpack("<I", struct.pack("<f", x))[0]
MF = "v_mfma_f32_32x32x16_bf16"
POLL_LIMIT = 30000

a = Asm()
ORA = [int(x[4:]) for x in OPT if x.startswith("ora=")]
YX = any(x in OPT for x in ("y0", "y1", "y2", "y3"))
STAMP = "stamp" in OPT
def stamp(i):
    if STAMP: a(f"s_memrealtime s[82:83]\ns_waitcnt lgkmcnt(0)\ns_mov_b32 s{84+i}, s82")
def cstamp(i, first):
    if STAMP:
        a("s_memtime s[82:83]\ns_waitcnt lgkmcnt(0)")
        a(f"s_mov_b32 s{84+i}, s82" if first else f"s_sub_u32 s{84+i}, s82, s{84+i}")
def dump_stamps():
    if STAMP:
        stamp(11)
        a(f"s_mul_i32 s82, s2, 12\ns_add_u32 s82, s82, s3\ns_lshl_b32 s82, s82, 6\ns_add_u32 s82, s82, {WS_STAMP}\nv_mov_b32 v1, 0\ns_mov_b64 exec, 1")
        for i in range(12): a(f"v_mov_b32 v{2+i}, s{84+i}")
        for i in range(3): a(f"buffer_store_dwordx4 v[{2+4*i}:{5+4*i}], v1, {srd(S_WS)}, s82 offen offset:{16*i}")

def prologue(kname):
    a(f".globl {kname}\n.p2align 8\n.type {kname},@function")
    a.label(kname)
    a(f"""
    s_cmp_ge_u32 s2, 256
    s_cbranch_scc1 L_exit
    s_load_dwordx16 s[64:79], s[0:1], 0
    s_load_dwordx2 s[80:81], s[0:1], 64
    v_lshrrev_b32 v2, 6, v0
    v_and_b32 v1, 63, v0
    s_and_b32 s4, s2, 7
    v_readfirstlane_b32 s3, v2
    s_lshr_b32 s5, s2, 3
    s_and_b32 s6, s4, 3
    s_lshl_b32 s6, s6, 3
    s_and_b32 s50, s5, 7
    s_add_u32 s6, s6, s50
    s_and_b32 s7, s4, 4
    s_lshr_b32 s50, s5, 3
    s_add_u32 s7, s7, s50
    s_lshl_b32 s50, s7, 1
    s_add_u32 s{ROT}, s6, s50
    s_and_b32 s{ROT}, s{ROT}, 7
    s_mov_b32 s{MLO}, 0xffff
    s_mov_b32 s{MLO+1}, 0xffff
    s_mov_b32 s{MHI}, 0xffff0000
    s_mov_b32 s{MHI+1}, 0xffff0000
    """)
    order = [S_AX, S_AW, S_AWO, S_BX, S_BW, S_BWO, S_OUT, S_DBG, S_WS]
    sizes = [2 << 20, 512 * 1536 * 2, 512 * 512 * 2, 2 << 20, 512 * 1536 * 2, 512 * 512 * 2, 4 << 20, 256, WS_SIZE]
    for b, sz in zip(order, sizes): a(f"s_mov_b32 s{b+2}, {sz}\ns_mov_b32 s{b+3}, 0x20000")
    a("s_waitcnt lgkmcnt(0)")
    for i, b in enumerate(order): a(f"s_mov_b64 s[{b}:{b+1}], s[{64+2*i}:{65+2*i}]")
    if STAMP:
        for i in range(12): a(f"s_mov_b32 s{84+i}, 0")
    stamp(0)
    if ORA: a("s_memrealtime s[90:91]\ns_waitcnt lgkmcnt(0)")

def publish_tag():
    L = a.newlabel("notag")
    a(f"""
    s_or_b32 s50, s2, s3
    s_cmp_lg_u32 s50, 0
    s_cbranch_scc1 {L}
    s_memrealtime s[52:53]
    v_mov_b32 v3, 0
    s_waitcnt lgkmcnt(0)
    s_or_b32 s52, s52, 1
    v_mov_b32 v2, s52
    s_mov_b64 exec, 1
    buffer_store_dword v2, v3, {srd(S_DBG)}, 0 offen sc1
    s_mov_b64 exec, -1
    """)
    a.label(L)

def tag_from(v, vz):
    L = a.newlabel("gt"); D = a.newlabel("gtd")
    a(f"s_mov_b32 s50, {POLL_LIMIT}")
    a.label(L)
    a(f"""
    v_readfirstlane_b32 s{TAG}, v{v}
    s_nop 1
    s_cmp_lg_u32 s{TAG}, 0
    s_cbranch_scc1 {D}
    s_sleep 4
    buffer_load_dword v{v}, v{vz}, {srd(S_DBG)}, 0 offen sc1
    s_sub_u32 s50, s50, 1
    s_cmp_lg_u32 s50, 0
    s_waitcnt vmcnt(0)
    s_cbranch_scc1 {L}
    """)
    a.label(D)

def poll(voff, soff, vt, slp):
    L = a.newlabel("pl"); D = a.newlabel("pld")
    a(f"s_mov_b32 s50, {POLL_LIMIT}")
    a.label(L)
    a(f"""
    buffer_load_dword v{vt}, v{voff}, {srd(S_WS)}, s{soff} offen sc1
    s_waitcnt vmcnt(0)
    v_cmp_ne_u32 vcc, s{TAG}, v{vt}
    s_nop 1
    s_cmp_eq_u64 vcc, 0
    s_cbranch_scc1 {D}
    s_sleep {slp}
    s_sub_u32 s50, s50, 1
    s_cmp_lg_u32 s50, 0
    s_cbranch_scc1 {L}
    """)
    a.label(D)

def poll2(voff, soff, vt):
    L = a.newlabel("pl"); D = a.newlabel("pld")
    ld = lambda v: f"buffer_load_dword v{v}, v{voff}, {srd(S_WS)}, s{soff} offen sc1"
    a(f"s_mov_b32 s50, {POLL_LIMIT}\n{ld(vt)}\ns_sleep 6")
    a.label(L)
    for k in range(2):
        a(f"""
        {ld(vt + (k ^ 1))}
        s_waitcnt vmcnt(1)
        v_cmp_ne_u32 vcc, s{TAG}, v{vt + k}
        s_nop 1
        s_cmp_eq_u64 vcc, 0
        s_cbranch_scc1 {D}
        """)
    a(f"s_sub_u32 s50, s50, 1\ns_cmp_lg_u32 s50, 0\ns_cbranch_scc1 {L}")
    a.label(D)

def lds_wait(vaddr, off, vt):
    L = a.newlabel("lw"); D = a.newlabel("lwd")
    a("s_mov_b32 s50, 0x80000")
    a.label(L)
    a(f"""
    ds_read_b32 v{vt}, v{vaddr} offset:{off}
    s_waitcnt lgkmcnt(0)
    v_cmp_ne_u32 vcc, s{TAG}, v{vt}
    s_nop 1
    s_cmp_eq_u64 vcc, 0
    s_cbranch_scc1 {D}
    s_sleep 1
    s_sub_u32 s50, s50, 1
    s_cmp_lg_u32 s50, 0
    s_cbranch_scc1 {L}
    """)
    a.label(D)

def lds_set(saddr, off, vt, va):
    a(f"""
    v_mov_b32 v{vt}, s{TAG}
    v_mov_b32 v{va}, s{saddr}
    s_mov_b64 exec, 1
    ds_write_b32 v{va}, v{vt} offset:{off}
    s_mov_b64 exec, -1
    """)

def set_flag(soff, vt, vz):
    a(f"""
    v_mov_b32 v{vt}, s{TAG}
    v_mov_b32 v{vz}, 0
    s_mov_b64 exec, 1
    buffer_store_dword v{vt}, v{vz}, {srd(S_WS)}, s{soff} offen sc1
    s_mov_b64 exec, -1
    """)

def loader():
    a(f"""
    s_sub_u32 s51, s3, 4
    v_lshrrev_b32 v14, 3, v1
    v_and_b32 v15, 7, v1
    v_lshlrev_b32 v16, 1, v14
    v_and_b32 v16, 4, v16
    v_xor_b32 v16, v15, v16
    v_lshlrev_b32 v16, 4, v16
    v_mul_u32_u24 v13, 3072, v14
    v_add_u32 v13, v13, v16
    s_and_b32 s50, s51, 1
    s_lshl_b32 s50, s50, 2
    v_lshrrev_b32 v16, 4, v1
    v_add_u32 v16, s50, v16
    v_xor_b32 v15, v15, v16
    v_lshlrev_b32 v15, 4, v15
    v_lshlrev_b32 v14, 10, v14
    v_add_u32 v12, v14, v15
    s_lshl_b32 s52, s51, 10
    s_lshl_b32 s53, s6, 16
    s_lshl_b32 s50, s51, 13
    s_add_u32 s53, s53, s50
    s_mul_i32 s54, s51, 24576
    s_lshl_b32 s55, s7, 7
    s_add_u32 s54, s54, s55
    s_mul_i32 s55, s51, 3072
    s_add_u32 s55, s55, 8192
    v_mov_b32 v17, 0
    """)
    q = []
    def cload(c):
        sx, sw = (S_BX, S_BW) if c < 8 else (S_AX, S_AW)
        sl = (c % 5) * SLOT
        a(f"""
        s_add_u32 s56, s{ROT}, {c & 7}
        s_and_b32 s56, s56, 7
        s_lshl_b32 s57, s56, 7
        s_add_u32 s57, s57, s53
        s_mul_i32 s56, s56, {64*3072}
        s_add_u32 s56, s56, s54
        """)
        for i in range(2):
            a(f"s_add_u32 m0, s52, {sl + i*4096}\ns_add_u32 s58, s57, {i*32768}")
            a(f"buffer_load_dwordx4 v12, {srd(sx)}, s58 offen lds")
        for hh in range(2):
            a(f"s_add_u32 m0, s55, {sl + hh*4*3072}\ns_add_u32 s58, s56, {hh*32*3072}")
            for p in range(3):
                a(f"buffer_load_dwordx4 v13, {srd(sw)}, s58 offen offset:{p*1024} lds")
        q.extend([c] * 8)
    NPRE = 2 if "pre2" in OPT else 1 if "pre1" in OPT else 3
    for c in range(NPRE): cload(c)
    stamp(1)
    nxt = NPRE
    for c in range(16):
        last = max(i for i, e in enumerate(q) if e == c)
        a(f"s_waitcnt vmcnt({len(q) - 1 - last})\ns_barrier")
        k = 0
        while nxt <= c + 3 and nxt < 16 and k < 2:
            cload(nxt); nxt += 1; k += 1
        if c == 6:
            a(f"buffer_load_dword v16, v17, {srd(S_DBG)}, 0 offen sc1"); q.append(-1)
    tag_from(16, 17)

ACCQ, ACCK, ACCV = 16, 32, 48
FR = [64, 80, 96]
XA, WA = 112, 124

def gemm_setup():
    a(f"""
    s_and_b32 s52, s51, 1
    s_lshr_b32 s53, s51, 1
    v_and_b32 v2, 31, v1
    v_lshrrev_b32 v3, 5, v1
    v_and_b32 v4, 15, v1
    s_lshl_b32 s50, s52, 12
    v_lshlrev_b32 v5, 7, v2
    v_add_u32 v5, s50, v5
    v_lshrrev_b32 v7, 1, v4
    """)
    for ss in range(4):
        a(f"""
        v_add_u32 v6, {2*ss}, v3
        v_xor_b32 v6, v6, v7
        v_lshlrev_b32 v6, 4, v6
        v_add_u32 v{XA+ss}, v5, v6
        v_add_u32 v{XA+4+ss}, {2*SLOT}, v{XA+ss}
        v_add_u32 v{XA+8+ss}, {4*SLOT}, v{XA+ss}
        """)
    a(f"""
    v_mul_u32_u24 v6, 3072, v3
    v_lshrrev_b32 v7, 2, v4
    v_lshlrev_b32 v8, 7, v7
    v_add_u32 v6, v6, v8
    v_lshrrev_b32 v7, 1, v7
    v_xor_b32 v7, s53, v7
    v_lshlrev_b32 v7, 6, v7
    v_add_u32 v6, v6, v7
    v_and_b32 v7, 16, v1
    v_lshlrev_b32 v7, 1, v7
    v_add_u32 v6, v6, v7
    v_and_b32 v7, 3, v1
    v_lshlrev_b32 v7, 3, v7
    v_add_u32 v6, v6, v7
    v_add_u32 v{WA}, 8192, v6
    v_add_u32 v{WA+1}, {8192+2*SLOT}, v6
    v_add_u32 v{WA+2}, {8192+4*SLOT}, v6
    v_mov_b32 v10, 0
    s_lshl_b32 s54, s6, 1
    s_add_u32 s54, s54, s52
    """)

def gemm_main(c0, vtrans):
    def reads(n, f):
        c = c0 + (n >> 2); ss = n & 3
        slot = c % 5
        hi = slot >> 1
        off = (slot & 1) * SLOT
        r = [f"ds_read_b128 {vr(f,4)}, v{XA+4*hi+ss} offset:{off}"]
        for p in range(3):
            r.append(f"ds_read_b64_tr_b16 {vr(f+4+4*p,2)}, v{WA+hi} offset:{off+ss*6144+p*1024}")
            r.append(f"ds_read_b64_tr_b16 {vr(f+6+4*p,2)}, v{WA+hi} offset:{off+ss*6144+p*1024+512}")
        return r
    def mfmas(f, first):
        c = lambda r: "0" if first else vr(r, 16)
        m = [f"{MF} {vr(ACCK,16)}, {vr(f+8,4)}, {vr(f,4)}, {c(ACCK)}"]
        if vtrans: m.append(f"{MF} {vr(ACCV,16)}, {vr(f,4)}, {vr(f+12,4)}, {c(ACCV)}")
        else: m.append(f"{MF} {vr(ACCV,16)}, {vr(f+12,4)}, {vr(f,4)}, {c(ACCV)}")
        m.append(f"{MF} {vr(ACCQ,16)}, {vr(f+4,4)}, {vr(f,4)}, {c(ACCQ)}")
        return m
    for x in reads(0, FR[0]) + reads(1, FR[1]): a(x)
    for n in range(32):
        n2 = n + 2
        m = mfmas(FR[n % 3], n == 0)
        a(f"s_waitcnt lgkmcnt({7 if n < 31 else 0})")
        if n == 31 and c0 == 8: a("s_barrier")
        r = reads(n2, FR[n2 % 3]) if n2 < 32 else []
        if "y2" in OPT: m = ["s_nop 0"] * 3
        if "y3" in OPT: m = ["s_nop 0"] * 3; r = []
        a(m[0])
        if n == 12: a(f"buffer_load_dword v9, v10, {srd(S_DBG)}, 0 offen sc1")
        if (n2 & 3) == 0 and (n2 < 32 or (n2 == 32 and c0 == 0)): a("s_barrier")
        for x in r[0:3]: a(x)
        a(m[1])
        for x in r[3:5]: a(x)
        a(m[2])
        for x in r[5:7]: a(x)

def b_addr():
    a(f"""
    s_lshl_b32 s55, s7, 2
    s_lshl_b32 s56, s53, 1
    s_add_u32 s55, s55, s56
    s_lshl_b32 s56, s55, 16
    s_lshl_b32 s57, s54, 10
    s_add_u32 s56, s56, s57
    s_add_u32 s57, s56, 65536
    s_lshl_b32 s58, s55, 17
    s_lshl_b32 s59, s54, 11
    s_add_u32 s58, s58, s59
    s_add_u32 s58, s58, {WS_KV}
    s_add_u32 s59, s58, 131072
    v_lshlrev_b32 v2, 4, v1
    v_and_b32 v3, 16, v1
    v_lshlrev_b32 v3, 13, v3
    v_lshrrev_b32 v4, 5, v1
    v_lshlrev_b32 v4, 8, v4
    v_add_u32 v3, v3, v4
    v_and_b32 v4, 15, v1
    v_lshlrev_b32 v4, 4, v4
    v_add_u32 v3, v3, v4
    s_mov_b32 s60, {f2u(QSCALE)}
    """)

def b_epilogue():
    a("s_waitcnt vmcnt(0)")
    tag_from(9, 10)
    a.nop(3)
    for i in range(8): a(f"v_cvt_pk_bf16_f32 v{64+i}, v{ACCK+2*i}, v{ACCK+2*i+1}")
    a(f"buffer_store_dwordx4 v[64:67], v2, {srd(S_WS)}, s58 offen sc1")
    a(f"buffer_store_dwordx4 v[68:71], v2, {srd(S_WS)}, s59 offen sc1")
    for i in range(8): a(f"v_cvt_pk_bf16_f32 v{72+i}, v{ACCV+2*i}, v{ACCV+2*i+1}")
    a(f"buffer_store_dwordx4 v[72:75], v3, {srd(S_WS)}, s58 offen offset:1024 sc1")
    a(f"buffer_store_dwordx4 v[76:79], v3, {srd(S_WS)}, s58 offen offset:1536 sc1")
    a("s_barrier")
    for i in range(8): a(f"v_cvt_pk_bf16_f32 v{80+i}, v{ACCQ+2*i}, v{ACCQ+2*i+1}")
    for i in range(8):
        a(f"v_lshlrev_b32 v{ACCQ+2*i}, 16, v{80+i}\nv_and_b32 v{ACCQ+2*i+1}, 0xffff0000, v{80+i}")
    for i in range(16): a(f"v_mul_f32 v{ACCQ+i}, s60, v{ACCQ+i}")
    for i in range(8): a(f"v_cvt_pk_bf16_f32 v{80+i}, v{ACCQ+2*i}, v{ACCQ+2*i+1}")
    a(f"buffer_store_dwordx4 v[80:83], v2, {srd(S_WS)}, s56 offen sc1")
    a(f"buffer_store_dwordx4 v[84:87], v2, {srd(S_WS)}, s57 offen sc1")

Q8, K8, V8 = 64, 72, 80
def a_local_front():
    a(f"""
    s_lshl_b32 s55, s7, 1
    s_add_u32 s55, s55, s53
    s_lshl_b32 s56, s6, 4
    s_add_u32 s56, s56, s55
    s_mul_i32 s57, s53, 12800
    s_mul_i32 s58, s52, 2560
    s_add_u32 s57, s57, s58
    v_and_b32 v2, 31, v1
    v_lshrrev_b32 v3, 5, v1
    v_mul_u32_u24 v4, 80, v2
    v_mul_u32_u24 v5, 6400, v3
    v_add_u32 v4, v4, v5
    v_add_u32 v4, s57, v4
    v_and_b32 v5, 15, v1
    v_lshlrev_b32 v5, 4, v5
    v_lshlrev_b32 v6, 8, v3
    v_add_u32 v5, v5, v6
    s_lshl_b32 s58, s56, 11
    s_add_u32 s58, s58, {WS_HALO}
    s_lshl_b32 s59, s56, 7
    s_add_u32 s59, s59, {HF}
    s_lshl_b32 s60, s53, 2
    s_add_u32 s60, s60, {SYNC+112}
    """)
    for dst, acc in ((K8, ACCK), (V8, ACCV)):
        for i in range(8): a(f"v_cvt_pk_bf16_f32 v{dst+i}, v{acc+2*i}, v{acc+2*i+1}")
    for dst in (K8, V8):
        a("s_nop 0")
        for t in range(4): a(f"v_permlane32_swap_b32 v{dst+t}, v{dst+4+t}")
    for i in range(4): a(f"ds_write_b128 v4, {vr(K8+4*i,4)} offset:{1280+16*i}")
    LNH = a.newlabel("nohs"); LHD = a.newlabel("hsd")
    a(f"s_cmp_lg_u32 s52, 1\ns_cbranch_scc1 {LNH}")
    a(f"s_mov_b64 exec, s[{MHI}:{MHI+1}]")
    for i in range(4): a(f"buffer_store_dwordx4 {vr(K8+4*i,4)}, v5, {srd(S_WS)}, s58 offen offset:{512*i} sc1")
    a(f"s_mov_b64 exec, -1\ns_branch {LHD}")
    a.label(LNH)
    a("s_waitcnt lgkmcnt(0)")
    lds_set(60, 0, 6, 7)
    a.label(LHD)
    for i in range(8): a(f"v_cvt_pk_bf16_f32 v{Q8+i}, v{ACCQ+2*i}, v{ACCQ+2*i+1}")
    a("s_nop 0")
    for t in range(4): a(f"v_permlane32_swap_b32 v{Q8+t}, v{Q8+4+t}")

def a_local_back():
    KB = 88; LG = 144
    PLO, PHI, OACC = 16, 24, 32
    LZ = a.newlabel("hz"); LD = a.newlabel("hd"); LN0 = a.newlabel("nohl"); LN1 = a.newlabel("hl1")
    a(f"s_cmp_lg_u32 s52, 0\ns_cbranch_scc1 {LN1}")
    a(f"s_cmp_eq_u32 s54, 0\ns_cbranch_scc1 {LZ}")
    a(f"s_sub_u32 s59, s59, 2048\ns_sub_u32 s58, s58, {16*2048}\nv_mov_b32 v7, 0")
    poll(7, 59, 6, 8)
    a(f"s_mov_b64 exec, s[{MLO}:{MLO+1}]")
    for i in range(4): a(f"buffer_load_dwordx4 {vr(KB+4*i,4)}, v5, {srd(S_WS)}, s58 offen offset:{512*i} sc1")
    a(f"s_waitcnt vmcnt(0)\ns_branch {LD}")
    a.label(LZ)
    a(f"s_mov_b64 exec, s[{MLO}:{MLO+1}]")
    for i in range(16): a(f"v_mov_b32 v{KB+i}, 0")
    a.label(LD)
    for i in range(4): a(f"ds_write_b128 v4, {vr(KB+4*i,4)} offset:{16*i}")
    a(f"s_mov_b64 exec, -1\ns_waitcnt lgkmcnt(0)\ns_branch {LN0}")
    a.label(LN1)
    a("v_mov_b32 v7, s60")
    lds_wait(7, 0, 6)
    a.label(LN0)
    for w in range(1, 8):
        a(f"ds_read_b128 {vr(KB+8*(w-1),4)}, v4 offset:{1280-160*w}")
        a(f"ds_read_b128 {vr(KB+8*(w-1)+4,4)}, v4 offset:{1280-160*w+16}")
    kreg = lambda w, i: (K8 + i) if w == 0 else (KB + 8 * (w - 1) + i)
    for i in range(8): a(f"v_dot2_f32_bf16 v{LG}, v{Q8+i}, v{kreg(0,i)}, {'0' if i==0 else f'v{LG}'}")
    for w in range(1, 8):
        a(f"s_waitcnt lgkmcnt({2*(7-w)})")
        for i in range(8): a(f"v_dot2_f32_bf16 v{LG+w}, v{Q8+i}, v{kreg(w,i)}, {'0' if i==0 else f'v{LG+w}'}")
    for w in range(1, 8):
        a(f"ds_read_b128 {vr(KB+8*(w-1),4)}, v4 offset:{1280-160*w+32}")
        a(f"ds_read_b128 {vr(KB+8*(w-1)+4,4)}, v4 offset:{1280-160*w+48}")
    for i in range(4): a(f"v_cvt_pk_bf16_f32 v{152+i}, v{LG+2*i}, v{LG+2*i+1}")
    for i in range(4): a(f"v_lshlrev_b32 v{LG+2*i}, 16, v{152+i}\nv_and_b32 v{LG+2*i+1}, 0xffff0000, v{152+i}")
    LM = a.newlabel("nomask")
    a(f"s_cmp_lg_u32 s54, 0\ns_cbranch_scc1 {LM}\nv_mov_b32 v6, 0xf149f2ca")
    for w in range(1, 8):
        a(f"v_cmp_gt_u32 vcc, {2*w}, v2\ns_nop 1\nv_cndmask_b32 v{LG+w}, v{LG+w}, v6, vcc")
    a.label(LM)
    a(f"""
    v_max3_f32 v6, v{LG}, v{LG+1}, v{LG+2}
    v_max3_f32 v7, v{LG+3}, v{LG+4}, v{LG+5}
    v_max3_f32 v6, v6, v{LG+6}, v{LG+7}
    v_max_f32 v6, v6, v7
    s_mov_b32 s60, {f2u(QSCALE)}
    """)
    for w in range(8): a(f"v_sub_f32 v{LG+w}, v{LG+w}, v6")
    for w in range(8): a(f"v_mul_f32 v{LG+w}, s60, v{LG+w}")
    for w in range(8): a(f"v_exp_f32 v{LG+w}, v{LG+w}")
    a(f"""
    v_add_f32 v6, v{LG}, v{LG+1}
    v_add_f32 v7, v{LG+2}, v{LG+3}
    v_add_f32 v8, v{LG+4}, v{LG+5}
    v_add_f32 v9, v{LG+6}, v{LG+7}
    v_add_f32 v6, v6, v7
    v_add_f32 v8, v8, v9
    v_add_f32 v6, v6, v8
    v_rcp_f32 v6, v6
    s_nop 0
    """)
    for w in range(8): a(f"v_mul_f32 v{LG+w}, v{LG+w}, v6")
    for w in range(8): a(f"v_cvt_pk_bf16_f32 v{PLO+w}, v{LG+w}, 0\nv_cvt_pk_bf16_f32 v{PHI+w}, 0, v{LG+w}")
    vreg = lambda w, i: (V8 + i) if w == 0 else (KB + 8 * (w - 1) + i)
    for w in range(8):
        if w >= 1: a(f"s_waitcnt lgkmcnt({2*(7-w)})")
        for i in range(8):
            c0 = "0" if w == 0 else f"v{OACC+2*i}"
            c1 = "0" if w == 0 else f"v{OACC+2*i+1}"
            a(f"v_dot2_f32_bf16 v{OACC+2*i}, v{vreg(w,i)}, v{PLO+w}, {c0}")
            a(f"v_dot2_f32_bf16 v{OACC+2*i+1}, v{vreg(w,i)}, v{PHI+w}, {c1}")
    a(f"s_lshl_b32 s58, s51, 2\ns_add_u32 s58, s58, {SYNC+96}")
    lds_set(58, 0, 6, 7)
    a(f"""
    s_lshl_b32 s58, s54, 15
    s_lshl_b32 s59, s55, 11
    s_add_u32 s58, s58, s59
    s_add_u32 s58, s58, {WS_OA}
    v_lshlrev_b32 v5, 4, v2
    v_lshlrev_b32 v6, 10, v3
    v_add_u32 v5, v5, v6
    """)
    for i in range(8): a(f"v_cvt_pk_bf16_f32 v{64+i}, v{OACC+2*i}, v{OACC+2*i+1}")
    a(f"buffer_store_dwordx4 v[64:67], v5, {srd(S_WS)}, s58 offen sc1")
    a(f"buffer_store_dwordx4 v[68:71], v5, {srd(S_WS)}, s58 offen offset:512 sc1")
    a(f"""
    s_lshl_b32 s59, s54, 11
    s_lshl_b32 s60, s55, 7
    s_add_u32 s59, s59, s60
    s_add_u32 s59, s59, {FA}
    s_waitcnt vmcnt(0)
    """)
    set_flag(59, 6, 7)

WO = 40
OACC2 = 16
def op_setup():
    a(f"""
    s_lshl_b32 s61, s4, 3
    s_and_b32 s50, s5, 7
    s_add_u32 s61, s61, s50
    s_lshr_b32 s62, s5, 3
    s_lshl_b32 s62, s62, 8
    s_lshl_b32 s50, s51, 6
    s_add_u32 s62, s62, s50
    s_mul_i32 s63, s51, {AW}
    v_lshrrev_b32 v14, 2, v1
    v_lshlrev_b32 v14, 10, v14
    v_and_b32 v15, 3, v1
    v_lshlrev_b32 v15, 4, v15
    v_add_u32 v14, v14, v15
    v_lshrrev_b32 v15, 5, v1
    v_lshlrev_b32 v15, 8, v15
    v_and_b32 v2, 12, v1
    v_lshlrev_b32 v2, 4, v2
    v_add_u32 v15, v15, v2
    v_and_b32 v2, 16, v1
    v_lshlrev_b32 v2, 1, v2
    v_add_u32 v15, v15, v2
    v_and_b32 v2, 3, v1
    v_lshlrev_b32 v2, 3, v2
    v_add_u32 v15, v15, v2
    v_add_u32 v15, s63, v15
    """)

def wo_preload(swo):
    NS = 7
    def dma(s):
        a(f"s_add_u32 m0, s63, {(s%NS)*1024}\ns_add_u32 s50, s62, {s*16384}")
        a(f"buffer_load_dwordx4 v14, {srd(swo)}, s50 offen lds")
    for s in range(NS): dma(s)
    for s in range(32):
        issued = min(32, s + NS - 1 if s > 0 else NS)
        a(f"s_waitcnt vmcnt({issued - 1 - s})")
        a(f"ds_read_b64_tr_b16 {vr(WO+4*s,2)}, v15 offset:{(s%NS)*1024}")
        a(f"ds_read_b64_tr_b16 {vr(WO+4*s+2,2)}, v15 offset:{(s%NS)*1024+512}")
        if s >= 1 and s - 1 + NS < 32:
            a("s_waitcnt lgkmcnt(2)")
            dma(s - 1 + NS)
    a("s_waitcnt lgkmcnt(0)")

def op_addr(colbase, va, vb):
    a(f"""
    v_and_b32 v{va}, 31, v1
    v_lshlrev_b32 v{va}, 11, v{va}
    v_lshrrev_b32 v{vb}, 5, v1
    v_lshlrev_b32 v{vb}, 4, v{vb}
    v_add_u32 v{va}, v{va}, v{vb}
    s_lshl_b32 s55, s61, 16
    s_add_u32 s55, s55, s62
    s_add_u32 s55, s55, {colbase*2}
    """)

def op_store(va):
    a.nop(12)
    for i in range(8): a(f"v_cvt_pk_bf16_f32 v{32+i}, v{OACC2+2*i}, v{OACC2+2*i+1}")
    a("s_nop 1")
    a("v_permlane32_swap_b32 v32, v34\nv_permlane32_swap_b32 v33, v35\nv_permlane32_swap_b32 v36, v38\nv_permlane32_swap_b32 v37, v39")
    a(f"buffer_store_dwordx4 v[32:35], v{va}, {srd(S_OUT)}, s55 offen")
    a(f"buffer_store_dwordx4 v[36:39], v{va}, {srd(S_OUT)}, s55 offen offset:32")

BUFS = [2, 6, 10, 32, 36]
def outproj_a():
    a(f"v_and_b32 v2, 15, v1\nv_lshlrev_b32 v2, 7, v2\ns_lshl_b32 s56, s61, 11\ns_add_u32 s56, s56, {FA}")
    poll(2, 56, 3, 16)
    stamp(5)
    a(f"v_lshlrev_b32 v0, 4, v1\ns_lshl_b32 s56, s61, 15\ns_add_u32 s56, s56, {WS_OA}")
    def ld(s):
        a(f"s_add_u32 s57, s56, {(s>>2)*4096}")
        a(f"buffer_load_dwordx4 {vr(BUFS[s%5],4)}, v0, {srd(S_WS)}, s57 offen offset:{(s&3)*1024} sc1")
    for s in range(5): ld(s)
    for s in range(32):
        a(f"s_waitcnt vmcnt({min(4, 31-s)})")
        a(f"{MF} {vr(OACC2,16)}, {vr(WO+4*s,4)}, {vr(BUFS[s%5],4)}, {'0' if s==0 else vr(OACC2,16)}")
        if s + 5 < 32: ld(s + 5)
    op_addr(0, 2, 3)
    op_store(2)

def outproj_b():
    op_addr(512, 14, 15)
    a(f"""
    v_lshlrev_b32 v0, 4, v1
    v_add_u32 v15, {KVB}, v0
    s_lshl_b32 s58, s61, 15
    s_add_u32 s58, s58, {WS_OB}
    s_lshl_b32 s57, s51, 12
    s_add_u32 s58, s58, s57
    s_add_u32 s59, s58, 16384
    s_add_u32 s57, s57, {KVB}
    """)
    LNP = a.newlabel("nopoll")
    a(f"s_cmp_lg_u32 s51, 0\ns_cbranch_scc1 {LNP}")
    a(f"v_and_b32 v2, 31, v1\nv_lshlrev_b32 v2, 7, v2\ns_lshl_b32 s56, s61, 12\ns_add_u32 s56, s56, {FB2}")
    a(f"v_and_b32 v5, 7, v1\nv_lshlrev_b32 v5, 2, v5\nv_add_u32 v5, {SYNC+64}, v5")
    L = a.newlabel("xfw"); D = a.newlabel("xfd")
    a("s_mov_b32 s50, 0x80000")
    a.label(L)
    a(f"""
    ds_read_b32 v3, v5
    s_waitcnt lgkmcnt(0)
    v_cmp_ne_u32 vcc, s{TAG}, v3
    s_nop 1
    s_cmp_eq_u64 vcc, 0
    s_cbranch_scc1 {D}
    s_sleep 4
    s_sub_u32 s50, s50, 1
    s_cmp_lg_u32 s50, 0
    s_cbranch_scc1 {L}
    """)
    a.label(D)
    stamp(8)
    poll2(2, 56, 3)
    a.label(LNP)
    a("s_barrier")
    stamp(9)
    a("s_mov_b32 m0, s57\ns_nop 0")
    for i in range(4): a(f"buffer_load_dwordx4 v0, {srd(S_WS)}, s58 offen offset:{i*1024} sc1 lds")
    a("s_add_u32 m0, s57, 16384\ns_nop 0")
    for i in range(4): a(f"buffer_load_dwordx4 v0, {srd(S_WS)}, s59 offen offset:{i*1024} sc1 lds")
    a("s_waitcnt vmcnt(4)\ns_barrier")
    for s in range(5): a(f"ds_read_b128 {vr(BUFS[s],4)}, v15 offset:{s*1024}")
    for s in range(32):
        if s == 11: a("s_waitcnt vmcnt(0)\ns_barrier")
        a(f"s_waitcnt lgkmcnt({min(4, 31-s)})")
        a(f"{MF} {vr(OACC2,16)}, {vr(WO+4*s,4)}, {vr(BUFS[s%5],4)}, {'0' if s==0 else vr(OACC2,16)}")
        if s + 5 < 32: a(f"ds_read_b128 {vr(BUFS[s%5],4)}, v15 offset:{(s+5)*1024}")
    if ORA:
        LO = a.newlabel("ora")
        a(f"s_cmp_lg_u32 s2, 37\ns_cbranch_scc1 {LO}\ns_memrealtime s[92:93]\ns_waitcnt lgkmcnt(0)\ns_sub_u32 s92, s92, s90\ns_cmp_lt_u32 s92, {ORA[0]*100}\ns_cbranch_scc1 {LO}")
        a.nop(12)
        a(f"v_mov_b32 v{OACC2}, 0x7fc00000")
        a.label(LO)
    op_store(14)

QF, NEG, OA_, SB = [2, 120], [16, 124], [32, 140], [48, 64]
PA, PB = 80, 84
KF = [96, 100]
VF = [[104, 108], [112, 116]]
VKA, VVA, VSY = 6, 7, 8
VK, VV, VKN, VVN = 13, 14, 92, 93

def att_ids():
    a(f"""
    s_lshl_b32 s58, s4, 2
    s_and_b32 s50, s5, 3
    s_add_u32 s58, s58, s50
    s_lshr_b32 s59, s5, 2
    s_lshl_b32 s59, s59, 3
    s_and_b32 s50, s3, 3
    s_lshl_b32 s50, s50, 1
    s_add_u32 s59, s59, s50
    s_lshr_b32 s60, s3, 2
    v_lshlrev_b32 v{VKA}, 4, v1
    """)

def q_load():
    a(f"""
    s_lshl_b32 s56, s58, 16
    s_lshl_b32 s57, s59, 10
    s_add_u32 s56, s56, s57
    buffer_load_dwordx4 {vr(QF[0],4)}, v{VKA}, {srd(S_WS)}, s56 offen sc1
    buffer_load_dwordx4 {vr(QF[1],4)}, v{VKA}, {srd(S_WS)}, s56 offen offset:1024 sc1
    """)

def kv_dma(vlane16, shead, swave, first_kb, n):
    a(f"""
    s_lshl_b32 s56, s{shead}, 17
    s_mul_i32 s57, s{swave}, {n*1024}
    s_add_u32 s57, s57, {first_kb*1024}
    s_add_u32 s56, s56, s57
    s_add_u32 s56, s56, {WS_KV}
    """)
    for i in range(n):
        if i % 4 == 0: a(f"s_add_u32 m0, s57, {KVB + i*1024}\ns_add_u32 s55, s56, {i*1024}")
        a(f"buffer_load_dwordx4 v{vlane16}, {srd(S_WS)}, s55 offen offset:{(i%4)*1024} sc1 lds")

def rowmax(S):
    a(f"v_max3_f32 v11, v{S}, v{S+1}, v{S+2}")
    for i in range(3, 15, 2): a(f"v_max3_f32 v11, v11, v{S+i}, v{S+i+1}")
    a(f"v_max_f32 v11, v11, v{S+15}")

def finish_negm(N):
    a(f"""
    v_mov_b32 v12, v11
    s_nop 1
    v_permlane32_swap_b32 v11, v12
    s_nop 1
    v_max_f32 v11, v11, v12
    v_sub_f32 v{N}, 0, v11
    v_sub_f32 v{N+1}, 0, v11
    """)
    for i in range(2, 16, 2): a(f"v_pk_mov_b32 v[{N+i}:{N+i+1}], v[{N}:{N+1}], v[{N}:{N+1}]")

def att_pre():
    a(f"""
    v_lshrrev_b32 v{VVA}, 5, v1
    v_lshlrev_b32 v{VVA}, 8, v{VVA}
    v_and_b32 v9, 15, v1
    v_lshlrev_b32 v9, 4, v9
    v_add_u32 v{VVA}, v{VVA}, v9
    v_add_u32 v{VVA}, {KVB+1024}, v{VVA}
    v_and_b32 v{VSY}, 3, v1
    v_lshlrev_b32 v{VSY}, 2, v{VSY}
    v_add_u32 v{VSY}, {SYNC}, v{VSY}
    s_lshl_b32 s50, s60, 13
    v_add_u32 v15, {KVB}, v{VKA}
    v_add_u32 v{VK}, s50, v15
    v_add_u32 v{VV}, s50, v{VVA}
    v_add_u32 v{VKN}, 16384, v{VK}
    v_add_u32 v{VVN}, 16384, v{VV}
    """)
    for r in range(104, 120): a(f"v_mov_b32 v{r}, 0")
    a("s_mov_b32 exec_lo, 0x110000\ns_mov_b32 exec_hi, 0x110000")
    for r in range(104, 120): a(f"v_mov_b32 v{r}, 0x3f803f80")
    a("s_mov_b64 exec, -1")
    for q in range(2):
        for i in range(16): a(f"v_mov_b32 v{OA_[q]+i}, 0")

def attention():
    for i in range(4): a(f"v_mov_b32 v{PB+i}, 0")
    a(f"""
    ds_read_b128 {vr(88,4)}, v15
    ds_read_b128 {vr(KF[0],4)}, v{VK}
    ds_read_b128 {vr(KF[1],4)}, v{VK} offset:2048
    s_mov_b64 exec, s[{MLO}:{MLO+1}]
    ds_read_b128 {vr(VF[0][0],4)}, v{VV}
    ds_read_b128 {vr(VF[0][1],4)}, v{VV} offset:512
    s_mov_b64 exec, -1
    s_waitcnt vmcnt(0) lgkmcnt(4)
    {MF} {vr(SB[0],16)}, {vr(88,4)}, {vr(QF[0],4)}, 0
    {MF} {vr(SB[1],16)}, {vr(88,4)}, {vr(QF[1],4)}, 0
    """)
    a.nop(11)
    for q in range(2):
        rowmax(SB[q]); finish_negm(NEG[q])
    if "noprio" not in OPT: a("s_setprio 2")
    a(f"s_mov_b32 s62, 0\ns_waitcnt lgkmcnt(3)\n{MF} {vr(SB[0],16)}, {vr(KF[0],4)}, {vr(QF[0],4)}, {vr(NEG[0],16)}")
    stamp(7)
    cstamp(9, True)
    a.nop(6)
    LOOP = a.newlabel("att_loop"); LS1 = a.newlabel("att_s1"); LS2 = a.newlabel("att_s2"); LS3 = a.newlabel("att_s3"); LB = a.newlabel("att_body")
    a(".p2align 6")
    a.label(LOOP)
    a(f"s_cmp_eq_u32 s62, 1\ns_cbranch_scc1 {LS1}\ns_cmp_eq_u32 s62, 4\ns_cbranch_scc1 {LS2}\ns_cmp_eq_u32 s62, 7\ns_cbranch_scc1 {LS3}")
    a.label(LB)
    kaddr = lambda u: f"v{VK} offset:{u*2048}" if u < 4 else f"v{VKN} offset:{(u-4)*2048}"
    vaddr = lambda u, o: f"v{VV} offset:{u*2048+o}" if u < 4 else f"v{VVN} offset:{(u-4)*2048+o}"
    for tl in range(4):
        kb = tl & 1
        for q in range(2):
            S = SB[q]; Sn = SB[q ^ 1]
            e = lambda i: f"v_exp_f32 v{S+i}, v{S+i}"
            c = lambda i: f"v_cvt_pk_bf16_f32 v{PA+i}, v{S+2*i}, v{S+2*i+1}"
            last = q == 1; first = q == 0
            nk = KF[kb ^ 1] if last else KF[kb]
            pv = VF[kb ^ 1] if first else VF[kb]
            if last: a("s_waitcnt lgkmcnt(2)")
            a(f"{MF} {vr(Sn,16)}, {vr(nk,4)}, {vr(QF[q^1],4)}, {vr(NEG[q^1],16)}")
            if last: a(f"ds_read_b128 {vr(KF[kb],4)}, {kaddr(tl+2)}")
            for i in range(4): a(e(i))
            a(f"{MF} {vr(OA_[q^1],16)}, {vr(pv[1],4)}, {vr(PB,4)}, {vr(OA_[q^1],16)}")
            if first:
                a(f"s_mov_b64 exec, s[{MLO}:{MLO+1}]")
                a(f"ds_read_b128 {vr(VF[kb^1][0],4)}, {vaddr(tl+1,0)}")
                a(f"ds_read_b128 {vr(VF[kb^1][1],4)}, {vaddr(tl+1,512)}")
                a("s_mov_b64 exec, -1")
            for x in [c(0), e(4), e(5), c(1), e(6), e(7), c(2), e(8), c(3), e(9), e(10)]: a(x)
            if first: a("s_waitcnt lgkmcnt(3)")
            a(f"{MF} {vr(OA_[q],16)}, {vr(VF[kb][0],4)}, {vr(PA,4)}, {vr(OA_[q],16)}")
            for x in [e(11), c(4), e(12), e(13), c(5), e(14), e(15), c(6), c(7)]: a(x)
    a(f"""
    v_mov_b32 v{VK}, v{VKN}
    v_mov_b32 v{VV}, v{VVN}
    v_add_u32 v{VKN}, 16384, v{VKN}
    v_add_u32 v{VVN}, 16384, v{VVN}
    s_add_u32 s62, s62, 1
    s_cmp_lt_u32 s62, 8
    s_cbranch_scc1 {LOOP}
    {MF} {vr(OA_[1],16)}, {vr(VF[1][1],4)}, {vr(PB,4)}, {vr(OA_[1],16)}
    """)
    stamp(8)
    cstamp(9, False)
    lds_wait(VSY, 32, 10)
    LK1 = a.newlabel("kh1"); LKD = a.newlabel("khd")
    a(f"""
    s_mul_i32 s56, s3, 2304
    s_xor_b32 s57, s3, 4
    s_mul_i32 s57, s57, 2304
    v_add_u32 v10, s56, v{VKA}
    v_add_u32 v11, s57, v{VKA}
    v_lshlrev_b32 v12, 2, v1
    v_add_u32 v9, s57, v12
    v_add_u32 v12, s56, v12
    s_lshl_b32 s56, s3, 2
    s_add_u32 s56, s56, {SYNC+64}
    s_xor_b32 s57, s56, 16
    s_add_u32 s59, s59, s60
    s_cmp_eq_u32 s60, 0
    s_cbranch_scc0 {LK1}
    ds_write_b128 v10, {vr(OA_[1],4)}
    ds_write_b128 v10, {vr(OA_[1]+4,4)} offset:1024
    ds_write_b32 v12, v{OA_[1]+8} offset:2048
    s_branch {LKD}
    """)
    a.label(LK1)
    a(f"""
    ds_write_b128 v10, {vr(OA_[0],4)}
    ds_write_b128 v10, {vr(OA_[0]+4,4)} offset:1024
    ds_write_b32 v12, v{OA_[0]+8} offset:2048
    s_nop 0
    """)
    for i in range(9): a(f"v_mov_b32 v{OA_[0]+i}, v{OA_[1]+i}")
    for i in range(4): a(f"v_mov_b32 v{QF[0]+i}, v{QF[1]+i}")
    a.label(LKD)
    a("s_waitcnt lgkmcnt(0)")
    lds_set(56, 0, 13, 14)
    a("v_mov_b32 v14, s57")
    a(f"s_lshl_b32 s56, s59, 15\ns_lshl_b32 s57, s58, 10\ns_add_u32 s56, s56, s57\ns_add_u32 s56, s56, {WS_OB}")
    a(f"s_lshl_b32 s55, s59, 12\ns_lshl_b32 s57, s58, 7\ns_add_u32 s55, s55, s57\ns_add_u32 s55, s55, {FB2}")
    lds_wait(14, 0, 13)
    O = OA_[0]
    a(f"""
    ds_read_b128 {vr(48,4)}, v11
    ds_read_b128 {vr(52,4)}, v11 offset:1024
    ds_read_b32 v56, v9 offset:2048
    v_mov_b32 v10, {f2u(2.0**60)}
    s_waitcnt lgkmcnt(0)
    """)
    for i in range(9): a(f"v_add_f32 v{O+i}, v{O+i}, v{48+i}")
    LOK = a.newlabel("att_ok"); LFB = a.newlabel("att_fb")
    a(f"v_fma_f32 v11, v{O}, 0, v{O+8}")
    for i in range(1, 8): a(f"v_fma_f32 v11, v{O+i}, 0, v11")
    a(f"v_cmp_nlt_f32 vcc, v11, v10")
    a(f"s_nop 1\ns_cmp_eq_u64 vcc, 0\ns_cbranch_scc0 {LFB}")
    a.label(LOK)
    a(f"v_rcp_f32 v10, v{O+8}\ns_nop 0")
    for i in range(8): a(f"v_mul_f32 v{O+i}, v{O+i}, v10")
    for i in range(4): a(f"v_cvt_pk_bf16_f32 v{PA+i}, v{O+2*i}, v{O+2*i+1}")
    a(f"buffer_store_dwordx4 {vr(PA,4)}, v{VKA}, {srd(S_WS)}, s56 offen sc1\ns_waitcnt vmcnt(0)")
    set_flag(55, 10, 11)
    dump_stamps()
    a("s_endpgm")
    a.label(LS1)
    lds_wait(VSY, 0, 10)
    a(f"s_branch {LB}")
    a.label(LS2)
    lds_wait(VSY, 16, 10)
    if "noprio" not in OPT: a("s_setprio 1")
    a(f"s_branch {LB}")
    a.label(LS3)
    if "noprio" not in OPT: a("s_setprio 0")
    a(f"v_mov_b32 v{VKN}, v{VK}\nv_mov_b32 v{VVN}, v{VV}\ns_branch {LB}")
    a.label(LFB)
    LM = a.newlabel("att_mx"); LP = a.newlabel("att_p2")
    S = SB[0]
    a(f"v_mov_b32 v13, v15\nv_mov_b32 v9, 0xff800000\ns_mov_b32 s62, 0")
    a.label(LM)
    a(f"ds_read_b128 {vr(KF[0],4)}, v13\ns_waitcnt lgkmcnt(0)")
    a(f"{MF} {vr(S,16)}, {vr(KF[0],4)}, {vr(QF[0],4)}, 0")
    a.nop(12)
    rowmax(S)
    a(f"""
    v_max_f32 v9, v9, v11
    v_add_u32 v13, 2048, v13
    s_add_u32 s62, s62, 1
    s_cmp_lt_u32 s62, 64
    s_cbranch_scc1 {LM}
    v_mov_b32 v11, v9
    """)
    finish_negm(NEG[0])
    for i in range(16): a(f"v_mov_b32 v{O+i}, 0")
    a(f"v_mov_b32 v13, v15\nv_mov_b32 v14, v{VVA}\ns_mov_b32 s62, 0")
    a.label(LP)
    a(f"""
    ds_read_b128 {vr(KF[0],4)}, v13
    s_mov_b64 exec, s[{MLO}:{MLO+1}]
    ds_read_b128 {vr(VF[0][0],4)}, v14
    ds_read_b128 {vr(VF[0][1],4)}, v14 offset:512
    s_mov_b64 exec, -1
    s_waitcnt lgkmcnt(0)
    {MF} {vr(S,16)}, {vr(KF[0],4)}, {vr(QF[0],4)}, {vr(NEG[0],16)}
    """)
    a.nop(12)
    for i in range(16): a(f"v_exp_f32 v{S+i}, v{S+i}")
    a("s_nop 0")
    for i in range(8): a(f"v_cvt_pk_bf16_f32 v{PA+i}, v{S+2*i}, v{S+2*i+1}")
    a(f"""
    v_add_u32 v13, 2048, v13
    v_add_u32 v14, 2048, v14
    {MF} {vr(O,16)}, {vr(VF[0][0],4)}, {vr(PA,4)}, {vr(O,16)}
    {MF} {vr(O,16)}, {vr(VF[0][1],4)}, {vr(PB,4)}, {vr(O,16)}
    s_add_u32 s62, s62, 1
    s_cmp_lt_u32 s62, 64
    s_cbranch_scc1 {LP}
    """)
    a.nop(12)
    a(f"s_branch {LOK}")

a('.amdgcn_target "amdgcn-amd-amdhsa--gfx950"\n.text')
k = NAME + "_kernel"
prologue(k)
LG1 = a.newlabel("g1"); LG2 = a.newlabel("g2"); LATT = a.newlabel("att"); LG0 = a.newlabel("g0"); LQW = a.newlabel("qwait")
a(f"s_cmp_lt_u32 s3, 4\ns_cbranch_scc1 {LG0}\ns_cmp_ge_u32 s3, 8\ns_cbranch_scc1 {LG2}")
loader()
att_ids()
att_pre()
a("s_barrier")
if YX:
    dump_stamps(); a("s_endpgm")
a.label(LQW)
a(f"v_mov_b32 v10, {SYNC+120}")
lds_wait(10, 0, 11)
stamp(5)
q_load()
a(f"v_mov_b32 v10, {SYNC+48}")
lds_wait(10, 0, 11)
stamp(6)
a(f"s_branch {LATT}")
a.label(LG0)
publish_tag()
a("s_mov_b32 s51, s3")
gemm_setup()
b_addr()
a("s_barrier")
stamp(1)
cstamp(10, True)
gemm_main(0, True)
stamp(2)
cstamp(10, False)
b_epilogue()
att_ids()
a(f"""
s_lshl_b32 s61, s7, 12
s_lshl_b32 s57, s6, 7
s_add_u32 s61, s61, s57
s_lshl_b32 s57, s3, 2
s_add_u32 s61, s61, s57
s_add_u32 s61, s61, {FB1}
s_lshl_b32 s62, s4, 12
s_add_u32 s62, s62, {FB1}
s_mov_b32 s63, 0
v_lshrrev_b32 v10, 1, v1
v_lshlrev_b32 v10, 7, v10
v_and_b32 v11, 1, v1
v_lshlrev_b32 v11, 3, v11
v_add_u32 v10, v10, v11
""")
def pload():
    a(f"buffer_load_dwordx2 v[90:91], v10, {srd(S_WS)}, s62 offen sc1")
def pcheck(lfail):
    a(f"v_cmp_ne_u32 vcc, s{TAG}, v90\nv_cmp_ne_u32 s[56:57], s{TAG}, v91\ns_nop 1\ns_or_b64 vcc, vcc, s[56:57]\ns_cmp_eq_u64 vcc, 0\ns_cbranch_scc0 {lfail}")
def kv_first():
    stamp(5)
    a("s_mov_b32 s55, 0")
    kv_dma(VKA, 58, 55, 0, 32)
    q_load()
    a("s_mov_b32 s63, 2")
def tick(kv_ok, may_poll=True):
    if "y4" in OPT: return
    LE = a.newlabel("tk"); L1 = a.newlabel("tk1"); LP = a.newlabel("tkp")
    a(f"""
    s_getreg_b32 s50, hwreg(HW_REG_IB_STS, 0, 4)
    s_cmp_lg_u32 s50, 0
    s_cbranch_scc1 {LE}
    s_cmp_eq_u32 s63, 2
    s_cbranch_scc1 {LE}
    s_cmp_eq_u32 s63, 1
    s_cbranch_scc1 {L1}
    """)
    set_flag(61, 11, 12)
    stamp(3)
    a(f"s_cmp_eq_u32 s3, 0\ns_cselect_b32 s63, 1, 2\ns_cbranch_scc1 {LP}\ns_branch {LE}")
    a.label(L1)
    if kv_ok:
        pcheck(LP)
        kv_first()
        a(f"s_branch {LE}")
    a.label(LP)
    if may_poll: pload()
    else: a("v_mov_b32 v90, 0")
    a.label(LE)
a("s_barrier")
att_pre()
tick(False, False)
for r in range(11, 16):
    a("s_barrier")
    tick(r >= 14, r >= 13)
a("s_barrier")
stamp(4)
if YX:
    dump_stamps(); a("s_endpgm")
LD0 = a.newlabel("fin0"); LD1 = a.newlabel("fin1"); LDP = a.newlabel("finp"); LDF = a.newlabel("finf")
a(f"s_cmp_lg_u32 s63, 0\ns_cbranch_scc1 {LD0}\ns_waitcnt vmcnt(0)")
set_flag(61, 11, 12)
a(f"s_cmp_lg_u32 s3, 0\ns_cbranch_scc1 {LQW}\ns_mov_b32 s63, 1")
pload()
a.label(LD0)
a(f"s_cmp_lg_u32 s3, 0\ns_cbranch_scc1 {LQW}")
a(f"s_cmp_eq_u32 s63, 2\ns_cbranch_scc1 {LD1}\ns_mov_b32 s54, {POLL_LIMIT}")
a.label(LDP)
a("s_waitcnt vmcnt(0)")
pcheck(LDF)
kv_first()
a(f"s_branch {LD1}")
a.label(LDF)
pload()
a(f"s_sub_u32 s54, s54, 1\ns_cmp_lg_u32 s54, 0\ns_cbranch_scc1 {LDP}")
a.label(LD1)
a(f"s_mov_b32 s56, {SYNC}")
lds_set(56, 120, 10, 11)
a("s_waitcnt vmcnt(0)")
lds_set(56, 48, 10, 11)
stamp(6)
a.label(LATT)
attention()
a.label(LG2)
a("s_sub_u32 s51, s3, 8\ns_setprio 3")
gemm_setup()
for _ in range(9): a("s_barrier")
stamp(1)
gemm_main(8, False)
stamp(2)
if YX:
    dump_stamps(); a("s_endpgm")
a("s_waitcnt vmcnt(0)")
tag_from(9, 10)
a_local_front()
a(f"""
s_lshl_b32 s61, s4, 2
s_and_b32 s50, s5, 3
s_add_u32 s61, s61, s50
v_lshlrev_b32 v10, 4, v1
s_lshl_b32 s62, s51, 2
s_add_u32 s62, s62, {SYNC}
v_and_b32 v11, 3, v1
v_lshlrev_b32 v11, 2, v11
v_add_u32 v11, {SYNC}, v11
s_mov_b32 s63, s55
""")
a(f"v_mov_b32 v13, {SYNC+48}")
lds_wait(13, 0, 12)
kv_dma(10, 61, 51, 32, 12)
kv_dma(10, 61, 51, 80, 12)
LHF = a.newlabel("nohf")
a(f"s_cmp_lg_u32 s52, 1\ns_cbranch_scc1 {LHF}\ns_waitcnt vmcnt(24)")
set_flag(59, 12, 13)
a.label(LHF)
a("s_waitcnt vmcnt(12)")
lds_set(62, 0, 12, 13)
a("s_waitcnt vmcnt(0)\ns_mov_b32 s55, s63")
lds_set(62, 16, 12, 13)
stamp(10)
a_local_back()
stamp(3)
lds_wait(11, 96, 12)
op_setup()
wo_preload(S_AWO)
stamp(4)
outproj_a()
stamp(6)
wo_preload(S_BWO)
a(f"s_lshl_b32 s56, s51, 2\ns_add_u32 s56, s56, {SYNC}")
lds_set(56, 32, 2, 3)
stamp(7)
outproj_b()
dump_stamps()
a("s_endpgm")
a.label("L_exit")
a("s_endpgm")

hdr = open(f"cdna_kernels/{NAME}.s.ref").read().split("; Override")[0]
hdr += f"; @launch grid=(256,1,1) block=(768,1,1) lds={LDS_BYTES}\n"
tail = f'''.section .rodata,"a"
.p2align 6
.amdhsa_kernel {k}
  .amdhsa_next_free_vgpr 168
  .amdhsa_next_free_sgpr 96
  .amdhsa_accum_offset 168
  .amdhsa_group_segment_fixed_size 0
  .amdhsa_kernarg_size 72
  .amdhsa_user_sgpr_count 2
  .amdhsa_user_sgpr_kernarg_segment_ptr 1
  .amdhsa_system_sgpr_workgroup_id_x 1
.end_amdhsa_kernel
'''
if "y1" in OPT:
    a.lines = [l for l in a.lines if not (l.startswith("buffer_store_dwordx4 v[") and "sc1" in l)]
probs = check(a.lines)
for p in probs: print(p)
open(OUT, "w").write(hdr + a.text() + tail)
print("wrote", OUT, len(a.lines), "lines;", len(probs), "hazards")
```

```python
import sys, math, struct
from asmlib import *

NAME = "concat_heads__sliding_local_dilated__softmax_full_mha__prompt"
OUT = sys.argv[1] if len(sys.argv) > 1 else f"cdna_kernels/{NAME}.s"
OPT = set(sys.argv[2:])

WS_Q = 0
WS_KV = 2 << 20
WS_OB = 6 << 20
WS_OA = 8 << 20
WS_HALO = 10 << 20
WS_FLAG = 12 << 20
FB1 = WS_FLAG
FB2 = WS_FLAG + (128 << 10)
FA = WS_FLAG + (384 << 10)
HF = WS_FLAG + (512 << 10)
WS_STAMP = 14 << 20
WS_SIZE = 16 << 20

SLOT = 32768
AREG = 0
AW = 7680
SYNC = 30720
KVB = 32768
LDS_BYTES = 163840

S_AX, S_AW, S_AWO, S_BX, S_BW, S_BWO, S_OUT, S_DBG, S_WS = 8, 12, 16, 20, 24, 28, 32, 36, 40
def srd(b): return f"s[{b}:{b+3}]"
TAG, ROT, MLO, MHI = 44, 45, 46, 48
QSCALE = 0.25 * math.log2(math.e)
def f2u(x): return struct.unpack("<I", struct.pack("<f", x))[0]
MF = "v_mfma_f32_32x32x16_bf16"
POLL_LIMIT = 30000

a = Asm()
ORA = [int(x[4:]) for x in OPT if x.startswith("ora=")]
YX = any(x in OPT for x in ("y0", "y1", "y2", "y3"))
STAMP = "stamp" in OPT
def stamp(i):
    if STAMP: a(f"s_memrealtime s[82:83]\ns_waitcnt lgkmcnt(0)\ns_mov_b32 s{84+i}, s82")
def cstamp(i, first):
    if STAMP:
        a("s_memtime s[82:83]\ns_waitcnt lgkmcnt(0)")
        a(f"s_mov_b32 s{84+i}, s82" if first else f"s_sub_u32 s{84+i}, s82, s{84+i}")
def dump_stamps():
    if STAMP:
        stamp(11)
        a(f"s_mul_i32 s82, s2, 12\ns_add_u32 s82, s82, s3\ns_lshl_b32 s82, s82, 6\ns_add_u32 s82, s82, {WS_STAMP}\nv_mov_b32 v1, 0\ns_mov_b64 exec, 1")
        for i in range(12): a(f"v_mov_b32 v{2+i}, s{84+i}")
        for i in range(3): a(f"buffer_store_dwordx4 v[{2+4*i}:{5+4*i}], v1, {srd(S_WS)}, s82 offen offset:{16*i}")

def prologue(kname):
    a(f".globl {kname}\n.p2align 8\n.type {kname},@function")
    a.label(kname)
    a(f"""
    s_cmp_ge_u32 s2, 256
    s_cbranch_scc1 L_exit
    s_load_dwordx16 s[64:79], s[0:1], 0
    s_load_dwordx2 s[80:81], s[0:1], 64
    v_lshrrev_b32 v2, 6, v0
    v_and_b32 v1, 63, v0
    s_and_b32 s4, s2, 7
    v_readfirstlane_b32 s3, v2
    s_lshr_b32 s5, s2, 3
    s_and_b32 s6, s4, 3
    s_lshl_b32 s6, s6, 3
    s_and_b32 s50, s5, 7
    s_add_u32 s6, s6, s50
    s_and_b32 s7, s4, 4
    s_lshr_b32 s50, s5, 3
    s_add_u32 s7, s7, s50
    s_lshl_b32 s50, s7, 1
    s_add_u32 s{ROT}, s6, s50
    s_and_b32 s{ROT}, s{ROT}, 7
    s_mov_b32 s{MLO}, 0xffff
    s_mov_b32 s{MLO+1}, 0xffff
    s_mov_b32 s{MHI}, 0xffff0000
    s_mov_b32 s{MHI+1}, 0xffff0000
    """)
    order = [S_AX, S_AW, S_AWO, S_BX, S_BW, S_BWO, S_OUT, S_DBG, S_WS]
    sizes = [2 << 20, 512 * 1536 * 2, 512 * 512 * 2, 2 << 20, 512 * 1536 * 2, 512 * 512 * 2, 4 << 20, 256, WS_SIZE]
    for b, sz in zip(order, sizes): a(f"s_mov_b32 s{b+2}, {sz}\ns_mov_b32 s{b+3}, 0x20000")
    a("s_waitcnt lgkmcnt(0)")
    for i, b in enumerate(order): a(f"s_mov_b64 s[{b}:{b+1}], s[{64+2*i}:{65+2*i}]")
    if STAMP:
        for i in range(12): a(f"s_mov_b32 s{84+i}, 0")
    stamp(0)
    if ORA: a("s_memrealtime s[90:91]\ns_waitcnt lgkmcnt(0)")

def publish_tag():
    L = a.newlabel("notag")
    a(f"""
    s_or_b32 s50, s2, s3
    s_cmp_lg_u32 s50, 0
    s_cbranch_scc1 {L}
    s_memrealtime s[52:53]
    v_mov_b32 v3, 0
    s_waitcnt lgkmcnt(0)
    s_or_b32 s52, s52, 1
    v_mov_b32 v2, s52
    s_mov_b64 exec, 1
    buffer_store_dword v2, v3, {srd(S_DBG)}, 0 offen sc1
    s_mov_b64 exec, -1
    """)
    a.label(L)

def tag_from(v, vz):
    L = a.newlabel("gt"); D = a.newlabel("gtd")
    a(f"s_mov_b32 s50, {POLL_LIMIT}")
    a.label(L)
    a(f"""
    v_readfirstlane_b32 s{TAG}, v{v}
    s_nop 1
    s_cmp_lg_u32 s{TAG}, 0
    s_cbranch_scc1 {D}
    s_sleep 4
    buffer_load_dword v{v}, v{vz}, {srd(S_DBG)}, 0 offen sc1
    s_sub_u32 s50, s50, 1
    s_cmp_lg_u32 s50, 0
    s_waitcnt vmcnt(0)
    s_cbranch_scc1 {L}
    """)
    a.label(D)

def poll(voff, soff, vt, slp):
    L = a.newlabel("pl"); D = a.newlabel("pld")
    a(f"s_mov_b32 s50, {POLL_LIMIT}")
    a.label(L)
    a(f"""
    buffer_load_dword v{vt}, v{voff}, {srd(S_WS)}, s{soff} offen sc1
    s_waitcnt vmcnt(0)
    v_cmp_ne_u32 vcc, s{TAG}, v{vt}
    s_nop 1
    s_cmp_eq_u64 vcc, 0
    s_cbranch_scc1 {D}
    s_sleep {slp}
    s_sub_u32 s50, s50, 1
    s_cmp_lg_u32 s50, 0
    s_cbranch_scc1 {L}
    """)
    a.label(D)

def poll2(voff, soff, vt):
    L = a.newlabel("pl"); D = a.newlabel("pld")
    ld = lambda v: f"buffer_load_dword v{v}, v{voff}, {srd(S_WS)}, s{soff} offen sc1"
    a(f"s_mov_b32 s50, {POLL_LIMIT}\n{ld(vt)}\ns_sleep 6")
    a.label(L)
    for k in range(2):
        a(f"""
        {ld(vt + (k ^ 1))}
        s_waitcnt vmcnt(1)
        v_cmp_ne_u32 vcc, s{TAG}, v{vt + k}
        s_nop 1
        s_cmp_eq_u64 vcc, 0
        s_cbranch_scc1 {D}
        """)
    a(f"s_sub_u32 s50, s50, 1\ns_cmp_lg_u32 s50, 0\ns_cbranch_scc1 {L}")
    a.label(D)

def lds_wait(vaddr, off, vt):
    L = a.newlabel("lw"); D = a.newlabel("lwd")
    a("s_mov_b32 s50, 0x80000")
    a.label(L)
    a(f"""
    ds_read_b32 v{vt}, v{vaddr} offset:{off}
    s_waitcnt lgkmcnt(0)
    v_cmp_ne_u32 vcc, s{TAG}, v{vt}
    s_nop 1
    s_cmp_eq_u64 vcc, 0
    s_cbranch_scc1 {D}
    s_sleep 1
    s_sub_u32 s50, s50, 1
    s_cmp_lg_u32 s50, 0
    s_cbranch_scc1 {L}
    """)
    a.label(D)

def lds_set(saddr, off, vt, va):
    a(f"""
    v_mov_b32 v{vt}, s{TAG}
    v_mov_b32 v{va}, s{saddr}
    s_mov_b64 exec, 1
    ds_write_b32 v{va}, v{vt} offset:{off}
    s_mov_b64 exec, -1
    """)

def set_flag(soff, vt, vz):
    a(f"""
    v_mov_b32 v{vt}, s{TAG}
    v_mov_b32 v{vz}, 0
    s_mov_b64 exec, 1
    buffer_store_dword v{vt}, v{vz}, {srd(S_WS)}, s{soff} offen sc1
    s_mov_b64 exec, -1
    """)

def loader():
    a(f"""
    s_sub_u32 s51, s3, 4
    v_lshrrev_b32 v14, 3, v1
    v_and_b32 v15, 7, v1
    v_lshlrev_b32 v16, 1, v14
    v_and_b32 v16, 4, v16
    v_xor_b32 v16, v15, v16
    v_lshlrev_b32 v16, 4, v16
    v_mul_u32_u24 v13, 3072, v14
    v_add_u32 v13, v13, v16
    s_and_b32 s50, s51, 1
    s_lshl_b32 s50, s50, 2
    v_lshrrev_b32 v16, 4, v1
    v_add_u32 v16, s50, v16
    v_xor_b32 v15, v15, v16
    v_lshlrev_b32 v15, 4, v15
    v_lshlrev_b32 v14, 10, v14
    v_add_u32 v12, v14, v15
    s_lshl_b32 s52, s51, 10
    s_lshl_b32 s53, s6, 16
    s_lshl_b32 s50, s51, 13
    s_add_u32 s53, s53, s50
    s_mul_i32 s54, s51, 24576
    s_lshl_b32 s55, s7, 7
    s_add_u32 s54, s54, s55
    s_mul_i32 s55, s51, 3072
    s_add_u32 s55, s55, 8192
    v_mov_b32 v17, 0
    """)
    q = []
    def cload(c):
        sx, sw = (S_BX, S_BW) if c < 8 else (S_AX, S_AW)
        sl = (c % 5) * SLOT
        a(f"""
        s_add_u32 s56, s{ROT}, {c & 7}
        s_and_b32 s56, s56, 7
        s_lshl_b32 s57, s56, 7
        s_add_u32 s57, s57, s53
        s_mul_i32 s56, s56, {64*3072}
        s_add_u32 s56, s56, s54
        """)
        for i in range(2):
            a(f"s_add_u32 m0, s52, {sl + i*4096}\ns_add_u32 s58, s57, {i*32768}")
            a(f"buffer_load_dwordx4 v12, {srd(sx)}, s58 offen lds")
        for hh in range(2):
            a(f"s_add_u32 m0, s55, {sl + hh*4*3072}\ns_add_u32 s58, s56, {hh*32*3072}")
            for p in range(3):
                a(f"buffer_load_dwordx4 v13, {srd(sw)}, s58 offen offset:{p*1024} lds")
        q.extend([c] * 8)
    NPRE = 2 if "pre2" in OPT else 1 if "pre1" in OPT else 3
    for c in range(NPRE): cload(c)
    stamp(1)
    nxt = NPRE
    for c in range(16):
        last = max(i for i, e in enumerate(q) if e == c)
        a(f"s_waitcnt vmcnt({len(q) - 1 - last})\ns_barrier")
        k = 0
        while nxt <= c + 3 and nxt < 16 and k < 2:
            cload(nxt); nxt += 1; k += 1
        if c == 6:
            a(f"buffer_load_dword v16, v17, {srd(S_DBG)}, 0 offen sc1"); q.append(-1)
    tag_from(16, 17)

ACCQ, ACCK, ACCV = 16, 32, 48
FR = [64, 80, 96]
XA, WA = 112, 124

def gemm_setup():
    a(f"""
    s_and_b32 s52, s51, 1
    s_lshr_b32 s53, s51, 1
    v_and_b32 v2, 31, v1
    v_lshrrev_b32 v3, 5, v1
    v_and_b32 v4, 15, v1
    s_lshl_b32 s50, s52, 12
    v_lshlrev_b32 v5, 7, v2
    v_add_u32 v5, s50, v5
    v_lshrrev_b32 v7, 1, v4
    """)
    for ss in range(4):
        a(f"""
        v_add_u32 v6, {2*ss}, v3
        v_xor_b32 v6, v6, v7
        v_lshlrev_b32 v6, 4, v6
        v_add_u32 v{XA+ss}, v5, v6
        v_add_u32 v{XA+4+ss}, {2*SLOT}, v{XA+ss}
        v_add_u32 v{XA+8+ss}, {4*SLOT}, v{XA+ss}
        """)
    a(f"""
    v_mul_u32_u24 v6, 3072, v3
    v_lshrrev_b32 v7, 2, v4
    v_lshlrev_b32 v8, 7, v7
    v_add_u32 v6, v6, v8
    v_lshrrev_b32 v7, 1, v7
    v_xor_b32 v7, s53, v7
    v_lshlrev_b32 v7, 6, v7
    v_add_u32 v6, v6, v7
    v_and_b32 v7, 16, v1
    v_lshlrev_b32 v7, 1, v7
    v_add_u32 v6, v6, v7
    v_and_b32 v7, 3, v1
    v_lshlrev_b32 v7, 3, v7
    v_add_u32 v6, v6, v7
    v_add_u32 v{WA}, 8192, v6
    v_add_u32 v{WA+1}, {8192+2*SLOT}, v6
    v_add_u32 v{WA+2}, {8192+4*SLOT}, v6
    v_mov_b32 v10, 0
    s_lshl_b32 s54, s6, 1
    s_add_u32 s54, s54, s52
    """)

def gemm_main(c0, vtrans):
    def reads(n, f):
        c = c0 + (n >> 2); ss = n & 3
        slot = c % 5
        hi = slot >> 1
        off = (slot & 1) * SLOT
        r = [f"ds_read_b128 {vr(f,4)}, v{XA+4*hi+ss} offset:{off}"]
        for p in range(3):
            r.append(f"ds_read_b64_tr_b16 {vr(f+4+4*p,2)}, v{WA+hi} offset:{off+ss*6144+p*1024}")
            r.append(f"ds_read_b64_tr_b16 {vr(f+6+4*p,2)}, v{WA+hi} offset:{off+ss*6144+p*1024+512}")
        return r
    def mfmas(f, first):
        c = lambda r: "0" if first else vr(r, 16)
        m = [f"{MF} {vr(ACCK,16)}, {vr(f+8,4)}, {vr(f,4)}, {c(ACCK)}"]
        if vtrans: m.append(f"{MF} {vr(ACCV,16)}, {vr(f,4)}, {vr(f+12,4)}, {c(ACCV)}")
        else: m.append(f"{MF} {vr(ACCV,16)}, {vr(f+12,4)}, {vr(f,4)}, {c(ACCV)}")
        m.append(f"{MF} {vr(ACCQ,16)}, {vr(f+4,4)}, {vr(f,4)}, {c(ACCQ)}")
        return m
    for x in reads(0, FR[0]) + reads(1, FR[1]): a(x)
    for n in range(32):
        n2 = n + 2
        m = mfmas(FR[n % 3], n == 0)
        a(f"s_waitcnt lgkmcnt({7 if n < 31 else 0})")
        if n == 31 and c0 == 8: a("s_barrier")
        r = reads(n2, FR[n2 % 3]) if n2 < 32 else []
        if "y2" in OPT: m = ["s_nop 0"] * 3
        if "y3" in OPT: m = ["s_nop 0"] * 3; r = []
        a(m[0])
        if n == 12: a(f"buffer_load_dword v9, v10, {srd(S_DBG)}, 0 offen sc1")
        if (n2 & 3) == 0 and (n2 < 32 or (n2 == 32 and c0 == 0)): a("s_barrier")
        for x in r[0:3]: a(x)
        a(m[1])
        for x in r[3:5]: a(x)
        a(m[2])
        for x in r[5:7]: a(x)

def b_addr():
    a(f"""
    s_lshl_b32 s55, s7, 2
    s_lshl_b32 s56, s53, 1
    s_add_u32 s55, s55, s56
    s_lshl_b32 s56, s55, 16
    s_lshl_b32 s57, s54, 10
    s_add_u32 s56, s56, s57
    s_add_u32 s57, s56, 65536
    s_lshl_b32 s58, s55, 17
    s_lshl_b32 s59, s54, 11
    s_add_u32 s58, s58, s59
    s_add_u32 s58, s58, {WS_KV}
    s_add_u32 s59, s58, 131072
    v_lshlrev_b32 v2, 4, v1
    v_and_b32 v3, 16, v1
    v_lshlrev_b32 v3, 13, v3
    v_lshrrev_b32 v4, 5, v1
    v_lshlrev_b32 v4, 8, v4
    v_add_u32 v3, v3, v4
    v_and_b32 v4, 15, v1
    v_lshlrev_b32 v4, 4, v4
    v_add_u32 v3, v3, v4
    s_mov_b32 s60, {f2u(QSCALE)}
    """)

def b_epilogue():
    a("s_waitcnt vmcnt(0)")
    tag_from(9, 10)
    a.nop(3)
    for i in range(8): a(f"v_cvt_pk_bf16_f32 v{64+i}, v{ACCK+2*i}, v{ACCK+2*i+1}")
    a(f"buffer_store_dwordx4 v[64:67], v2, {srd(S_WS)}, s58 offen sc1")
    a(f"buffer_store_dwordx4 v[68:71], v2, {srd(S_WS)}, s59 offen sc1")
    for i in range(8): a(f"v_cvt_pk_bf16_f32 v{72+i}, v{ACCV+2*i}, v{ACCV+2*i+1}")
    a(f"buffer_store_dwordx4 v[72:75], v3, {srd(S_WS)}, s58 offen offset:1024 sc1")
    a(f"buffer_store_dwordx4 v[76:79], v3, {srd(S_WS)}, s58 offen offset:1536 sc1")
    if "q2" in OPT:
        for i in range(8): a(f"v_cvt_pk_bf16_f32 v{80+i}, v{ACCQ+2*i}, v{ACCQ+2*i+1}")
        for i in range(8):
            a(f"v_lshlrev_b32 v{ACCQ+2*i}, 16, v{80+i}\nv_and_b32 v{ACCQ+2*i+1}, 0xffff0000, v{80+i}")
    for i in range(16): a(f"v_mul_f32 v{ACCQ+i}, s60, v{ACCQ+i}")
    for i in range(8): a(f"v_cvt_pk_bf16_f32 v{80+i}, v{ACCQ+2*i}, v{ACCQ+2*i+1}")
    a(f"buffer_store_dwordx4 v[80:83], v2, {srd(S_WS)}, s56 offen sc1")
    a(f"buffer_store_dwordx4 v[84:87], v2, {srd(S_WS)}, s57 offen sc1")
    a("s_barrier")

Q8, K8, V8 = 64, 72, 80
def a_local_front():
    a(f"""
    s_lshl_b32 s55, s7, 1
    s_add_u32 s55, s55, s53
    s_lshl_b32 s56, s6, 4
    s_add_u32 s56, s56, s55
    s_mul_i32 s57, s53, 12800
    s_mul_i32 s58, s52, 2560
    s_add_u32 s57, s57, s58
    v_and_b32 v2, 31, v1
    v_lshrrev_b32 v3, 5, v1
    v_mul_u32_u24 v4, 80, v2
    v_mul_u32_u24 v5, 6400, v3
    v_add_u32 v4, v4, v5
    v_add_u32 v4, s57, v4
    v_and_b32 v5, 15, v1
    v_lshlrev_b32 v5, 4, v5
    v_lshlrev_b32 v6, 8, v3
    v_add_u32 v5, v5, v6
    s_lshl_b32 s58, s56, 11
    s_add_u32 s58, s58, {WS_HALO}
    s_lshl_b32 s59, s56, 7
    s_add_u32 s59, s59, {HF}
    s_lshl_b32 s60, s53, 2
    s_add_u32 s60, s60, {SYNC+112}
    """)
    for dst, acc in ((K8, ACCK), (V8, ACCV)):
        for i in range(8): a(f"v_cvt_pk_bf16_f32 v{dst+i}, v{acc+2*i}, v{acc+2*i+1}")
    for dst in (K8, V8):
        a("s_nop 0")
        for t in range(4): a(f"v_permlane32_swap_b32 v{dst+t}, v{dst+4+t}")
    for i in range(4): a(f"ds_write_b128 v4, {vr(K8+4*i,4)} offset:{1280+16*i}")
    LNH = a.newlabel("nohs"); LHD = a.newlabel("hsd")
    a(f"s_cmp_lg_u32 s52, 1\ns_cbranch_scc1 {LNH}")
    a(f"s_mov_b64 exec, s[{MHI}:{MHI+1}]")
    for i in range(4): a(f"buffer_store_dwordx4 {vr(K8+4*i,4)}, v5, {srd(S_WS)}, s58 offen offset:{512*i} sc1")
    a(f"s_mov_b64 exec, -1\ns_branch {LHD}")
    a.label(LNH)
    a("s_waitcnt lgkmcnt(0)")
    lds_set(60, 0, 6, 7)
    a.label(LHD)
    for i in range(8): a(f"v_cvt_pk_bf16_f32 v{Q8+i}, v{ACCQ+2*i}, v{ACCQ+2*i+1}")
    a("s_nop 0")
    for t in range(4): a(f"v_permlane32_swap_b32 v{Q8+t}, v{Q8+4+t}")

def a_local_back():
    KB = 88; LG = 144
    PLO, PHI, OACC = 16, 24, 32
    LZ = a.newlabel("hz"); LD = a.newlabel("hd"); LN0 = a.newlabel("nohl"); LN1 = a.newlabel("hl1")
    a(f"s_cmp_lg_u32 s52, 0\ns_cbranch_scc1 {LN1}")
    a(f"s_cmp_eq_u32 s54, 0\ns_cbranch_scc1 {LZ}")
    a(f"s_sub_u32 s59, s59, 2048\ns_sub_u32 s58, s58, {16*2048}\nv_mov_b32 v7, 0")
    poll(7, 59, 6, 8)
    a(f"s_mov_b64 exec, s[{MLO}:{MLO+1}]")
    for i in range(4): a(f"buffer_load_dwordx4 {vr(KB+4*i,4)}, v5, {srd(S_WS)}, s58 offen offset:{512*i} sc1")
    a(f"s_waitcnt vmcnt(0)\ns_branch {LD}")
    a.label(LZ)
    a(f"s_mov_b64 exec, s[{MLO}:{MLO+1}]")
    for i in range(16): a(f"v_mov_b32 v{KB+i}, 0")
    a.label(LD)
    for i in range(4): a(f"ds_write_b128 v4, {vr(KB+4*i,4)} offset:{16*i}")
    a(f"s_mov_b64 exec, -1\ns_waitcnt lgkmcnt(0)\ns_branch {LN0}")
    a.label(LN1)
    a("v_mov_b32 v7, s60")
    lds_wait(7, 0, 6)
    a.label(LN0)
    for w in range(1, 8):
        a(f"ds_read_b128 {vr(KB+8*(w-1),4)}, v4 offset:{1280-160*w}")
        a(f"ds_read_b128 {vr(KB+8*(w-1)+4,4)}, v4 offset:{1280-160*w+16}")
    kreg = lambda w, i: (K8 + i) if w == 0 else (KB + 8 * (w - 1) + i)
    for i in range(8): a(f"v_dot2_f32_bf16 v{LG}, v{Q8+i}, v{kreg(0,i)}, {'0' if i==0 else f'v{LG}'}")
    for w in range(1, 8):
        a(f"s_waitcnt lgkmcnt({2*(7-w)})")
        for i in range(8): a(f"v_dot2_f32_bf16 v{LG+w}, v{Q8+i}, v{kreg(w,i)}, {'0' if i==0 else f'v{LG+w}'}")
    for w in range(1, 8):
        a(f"ds_read_b128 {vr(KB+8*(w-1),4)}, v4 offset:{1280-160*w+32}")
        a(f"ds_read_b128 {vr(KB+8*(w-1)+4,4)}, v4 offset:{1280-160*w+48}")
    if "g1kv" in OPT:
        LHF2 = a.newlabel("nohf")
        a(f"s_cmp_lg_u32 s52, 1\ns_cbranch_scc1 {LHF2}\ns_waitcnt vmcnt(0)")
        set_flag(59, 12, 13)
        a.label(LHF2)
    for i in range(4): a(f"v_cvt_pk_bf16_f32 v{152+i}, v{LG+2*i}, v{LG+2*i+1}")
    for i in range(4): a(f"v_lshlrev_b32 v{LG+2*i}, 16, v{152+i}\nv_and_b32 v{LG+2*i+1}, 0xffff0000, v{152+i}")
    LM = a.newlabel("nomask")
    a(f"s_cmp_lg_u32 s54, 0\ns_cbranch_scc1 {LM}\nv_mov_b32 v6, 0xf149f2ca")
    for w in range(1, 8):
        a(f"v_cmp_gt_u32 vcc, {2*w}, v2\ns_nop 1\nv_cndmask_b32 v{LG+w}, v{LG+w}, v6, vcc")
    a.label(LM)
    a(f"""
    v_max3_f32 v6, v{LG}, v{LG+1}, v{LG+2}
    v_max3_f32 v7, v{LG+3}, v{LG+4}, v{LG+5}
    v_max3_f32 v6, v6, v{LG+6}, v{LG+7}
    v_max_f32 v6, v6, v7
    s_mov_b32 s60, {f2u(QSCALE)}
    """)
    for w in range(8): a(f"v_sub_f32 v{LG+w}, v{LG+w}, v6")
    for w in range(8): a(f"v_mul_f32 v{LG+w}, s60, v{LG+w}")
    for w in range(8): a(f"v_exp_f32 v{LG+w}, v{LG+w}")
    a(f"""
    v_add_f32 v6, v{LG}, v{LG+1}
    v_add_f32 v7, v{LG+2}, v{LG+3}
    v_add_f32 v8, v{LG+4}, v{LG+5}
    v_add_f32 v9, v{LG+6}, v{LG+7}
    v_add_f32 v6, v6, v7
    v_add_f32 v8, v8, v9
    v_add_f32 v6, v6, v8
    v_rcp_f32 v6, v6
    s_nop 0
    """)
    for w in range(8): a(f"v_mul_f32 v{LG+w}, v{LG+w}, v6")
    for w in range(8): a(f"v_cvt_pk_bf16_f32 v{PLO+w}, v{LG+w}, 0\nv_cvt_pk_bf16_f32 v{PHI+w}, 0, v{LG+w}")
    vreg = lambda w, i: (V8 + i) if w == 0 else (KB + 8 * (w - 1) + i)
    for w in range(8):
        if w >= 1: a(f"s_waitcnt lgkmcnt({2*(7-w)})")
        for i in range(8):
            c0 = "0" if w == 0 else f"v{OACC+2*i}"
            c1 = "0" if w == 0 else f"v{OACC+2*i+1}"
            a(f"v_dot2_f32_bf16 v{OACC+2*i}, v{vreg(w,i)}, v{PLO+w}, {c0}")
            a(f"v_dot2_f32_bf16 v{OACC+2*i+1}, v{vreg(w,i)}, v{PHI+w}, {c1}")
    a(f"s_lshl_b32 s58, s51, 2\ns_add_u32 s58, s58, {SYNC+96}")
    lds_set(58, 0, 6, 7)
    a(f"""
    s_lshl_b32 s58, s54, 15
    s_lshl_b32 s59, s55, 11
    s_add_u32 s58, s58, s59
    s_add_u32 s58, s58, {WS_OA}
    v_lshlrev_b32 v5, 4, v2
    v_lshlrev_b32 v6, 10, v3
    v_add_u32 v5, v5, v6
    """)
    for i in range(8): a(f"v_cvt_pk_bf16_f32 v{64+i}, v{OACC+2*i}, v{OACC+2*i+1}")
    a(f"buffer_store_dwordx4 v[64:67], v5, {srd(S_WS)}, s58 offen sc1")
    a(f"buffer_store_dwordx4 v[68:71], v5, {srd(S_WS)}, s58 offen offset:512 sc1")
    a(f"""
    s_lshl_b32 s59, s54, 11
    s_lshl_b32 s60, s55, 7
    s_add_u32 s59, s59, s60
    s_add_u32 s59, s59, {FA}
    s_waitcnt vmcnt(0)
    """)
    set_flag(59, 6, 7)

WO = 40
OACC2 = 16
def op_setup():
    a(f"""
    s_lshl_b32 s61, s4, 3
    s_and_b32 s50, s5, 7
    s_add_u32 s61, s61, s50
    s_lshr_b32 s62, s5, 3
    s_lshl_b32 s62, s62, 8
    s_lshl_b32 s50, s51, 6
    s_add_u32 s62, s62, s50
    s_mul_i32 s63, s51, {AW}
    v_lshrrev_b32 v14, 2, v1
    v_lshlrev_b32 v14, 10, v14
    v_and_b32 v15, 3, v1
    v_lshlrev_b32 v15, 4, v15
    v_add_u32 v14, v14, v15
    v_lshrrev_b32 v15, 5, v1
    v_lshlrev_b32 v15, 8, v15
    v_and_b32 v2, 12, v1
    v_lshlrev_b32 v2, 4, v2
    v_add_u32 v15, v15, v2
    v_and_b32 v2, 16, v1
    v_lshlrev_b32 v2, 1, v2
    v_add_u32 v15, v15, v2
    v_and_b32 v2, 3, v1
    v_lshlrev_b32 v2, 3, v2
    v_add_u32 v15, v15, v2
    v_add_u32 v15, s63, v15
    """)

def wo_preload(swo):
    NS = 7
    def dma(s):
        a(f"s_add_u32 m0, s63, {(s%NS)*1024}\ns_add_u32 s50, s62, {s*16384}")
        a(f"buffer_load_dwordx4 v14, {srd(swo)}, s50 offen lds")
    for s in range(NS): dma(s)
    for s in range(32):
        issued = min(32, s + NS - 1 if s > 0 else NS)
        a(f"s_waitcnt vmcnt({issued - 1 - s})")
        a(f"ds_read_b64_tr_b16 {vr(WO+4*s,2)}, v15 offset:{(s%NS)*1024}")
        a(f"ds_read_b64_tr_b16 {vr(WO+4*s+2,2)}, v15 offset:{(s%NS)*1024+512}")
        if s >= 1 and s - 1 + NS < 32:
            a("s_waitcnt lgkmcnt(2)")
            dma(s - 1 + NS)
    a("s_waitcnt lgkmcnt(0)")

def op_addr(colbase, va, vb):
    a(f"""
    v_and_b32 v{va}, 31, v1
    v_lshlrev_b32 v{va}, 11, v{va}
    v_lshrrev_b32 v{vb}, 5, v1
    v_lshlrev_b32 v{vb}, 4, v{vb}
    v_add_u32 v{va}, v{va}, v{vb}
    s_lshl_b32 s55, s61, 16
    s_add_u32 s55, s55, s62
    s_add_u32 s55, s55, {colbase*2}
    """)

def op_store(va):
    a.nop(12)
    for i in range(8): a(f"v_cvt_pk_bf16_f32 v{32+i}, v{OACC2+2*i}, v{OACC2+2*i+1}")
    a("s_nop 1")
    a("v_permlane32_swap_b32 v32, v34\nv_permlane32_swap_b32 v33, v35\nv_permlane32_swap_b32 v36, v38\nv_permlane32_swap_b32 v37, v39")
    a(f"buffer_store_dwordx4 v[32:35], v{va}, {srd(S_OUT)}, s55 offen")
    a(f"buffer_store_dwordx4 v[36:39], v{va}, {srd(S_OUT)}, s55 offen offset:32")

BUFS = [2, 6, 10, 32, 36]
def outproj_a():
    a(f"v_and_b32 v2, 15, v1\nv_lshlrev_b32 v2, 7, v2\ns_lshl_b32 s56, s61, 11\ns_add_u32 s56, s56, {FA}")
    poll(2, 56, 3, 16)
    stamp(5)
    a(f"v_lshlrev_b32 v0, 4, v1\ns_lshl_b32 s56, s61, 15\ns_add_u32 s56, s56, {WS_OA}")
    def ld(s):
        a(f"s_add_u32 s57, s56, {(s>>2)*4096}")
        a(f"buffer_load_dwordx4 {vr(BUFS[s%5],4)}, v0, {srd(S_WS)}, s57 offen offset:{(s&3)*1024} sc1")
    for s in range(5): ld(s)
    for s in range(32):
        a(f"s_waitcnt vmcnt({min(4, 31-s)})")
        a(f"{MF} {vr(OACC2,16)}, {vr(WO+4*s,4)}, {vr(BUFS[s%5],4)}, {'0' if s==0 else vr(OACC2,16)}")
        if s + 5 < 32: ld(s + 5)
    op_addr(0, 2, 3)
    op_store(2)

def outproj_b():
    op_addr(512, 14, 15)
    a(f"""
    v_lshlrev_b32 v0, 4, v1
    v_add_u32 v15, {KVB}, v0
    s_lshl_b32 s58, s61, 15
    s_add_u32 s58, s58, {WS_OB}
    s_lshl_b32 s57, s51, 12
    s_add_u32 s58, s58, s57
    s_add_u32 s59, s58, 16384
    s_add_u32 s57, s57, {KVB}
    """)
    LNP = a.newlabel("nopoll")
    a(f"s_cmp_lg_u32 s51, 0\ns_cbranch_scc1 {LNP}")
    a(f"v_and_b32 v2, 31, v1\nv_lshlrev_b32 v2, 7, v2\ns_lshl_b32 s56, s61, 12\ns_add_u32 s56, s56, {FB2}")
    a(f"v_and_b32 v5, 7, v1\nv_lshlrev_b32 v5, 2, v5\nv_add_u32 v5, {SYNC+64}, v5")
    L = a.newlabel("xfw"); D = a.newlabel("xfd")
    a("s_mov_b32 s50, 0x80000")
    a.label(L)
    a(f"""
    ds_read_b32 v3, v5
    s_waitcnt lgkmcnt(0)
    v_cmp_ne_u32 vcc, s{TAG}, v3
    s_nop 1
    s_cmp_eq_u64 vcc, 0
    s_cbranch_scc1 {D}
    s_sleep 4
    s_sub_u32 s50, s50, 1
    s_cmp_lg_u32 s50, 0
    s_cbranch_scc1 {L}
    """)
    a.label(D)
    stamp(8)
    poll2(2, 56, 3)
    a.label(LNP)
    a("s_barrier")
    stamp(9)
    a("s_mov_b32 m0, s57\ns_nop 0")
    for i in range(4): a(f"buffer_load_dwordx4 v0, {srd(S_WS)}, s58 offen offset:{i*1024} sc1 lds")
    a("s_add_u32 m0, s57, 16384\ns_nop 0")
    for i in range(4): a(f"buffer_load_dwordx4 v0, {srd(S_WS)}, s59 offen offset:{i*1024} sc1 lds")
    a("s_waitcnt vmcnt(4)\ns_barrier")
    for s in range(5): a(f"ds_read_b128 {vr(BUFS[s],4)}, v15 offset:{s*1024}")
    for s in range(32):
        if s == 11: a("s_waitcnt vmcnt(0)\ns_barrier")
        a(f"s_waitcnt lgkmcnt({min(4, 31-s)})")
        a(f"{MF} {vr(OACC2,16)}, {vr(WO+4*s,4)}, {vr(BUFS[s%5],4)}, {'0' if s==0 else vr(OACC2,16)}")
        if s + 5 < 32: a(f"ds_read_b128 {vr(BUFS[s%5],4)}, v15 offset:{(s+5)*1024}")
    if ORA:
        LO = a.newlabel("ora")
        a(f"s_cmp_lg_u32 s2, 37\ns_cbranch_scc1 {LO}\ns_memrealtime s[92:93]\ns_waitcnt lgkmcnt(0)\ns_sub_u32 s92, s92, s90\ns_cmp_lt_u32 s92, {ORA[0]*100}\ns_cbranch_scc1 {LO}")
        a.nop(12)
        a(f"v_mov_b32 v{OACC2}, 0x7fc00000")
        a.label(LO)
    op_store(14)

QF, NEG, OA_, SB = [2, 120], [16, 124], [32, 140], [48, 64]
PA, PB = 80, 84
KF = [96, 100]
VF = [[104, 108], [112, 116]]
VKA, VVA, VSY = 6, 7, 8
VK, VV, VKN, VVN = 13, 14, 92, 93

def att_ids():
    a(f"""
    s_lshl_b32 s58, s4, 2
    s_and_b32 s50, s5, 3
    s_add_u32 s58, s58, s50
    s_lshr_b32 s59, s5, 2
    s_lshl_b32 s59, s59, 3
    s_and_b32 s50, s3, 3
    s_lshl_b32 s50, s50, 1
    s_add_u32 s59, s59, s50
    s_lshr_b32 s60, s3, 2
    v_lshlrev_b32 v{VKA}, 4, v1
    """)

def q_load():
    a(f"""
    s_lshl_b32 s56, s58, 16
    s_lshl_b32 s57, s59, 10
    s_add_u32 s56, s56, s57
    buffer_load_dwordx4 {vr(QF[0],4)}, v{VKA}, {srd(S_WS)}, s56 offen sc1
    buffer_load_dwordx4 {vr(QF[1],4)}, v{VKA}, {srd(S_WS)}, s56 offen offset:1024 sc1
    """)

def kv_dma(vlane16, shead, swave, first_kb, n):
    a(f"""
    s_lshl_b32 s56, s{shead}, 17
    s_mul_i32 s57, s{swave}, {n*1024}
    s_add_u32 s57, s57, {first_kb*1024}
    s_add_u32 s56, s56, s57
    s_add_u32 s56, s56, {WS_KV}
    """)
    for i in range(n):
        if i % 4 == 0: a(f"s_add_u32 m0, s57, {KVB + i*1024}\ns_add_u32 s55, s56, {i*1024}")
        a(f"buffer_load_dwordx4 v{vlane16}, {srd(S_WS)}, s55 offen offset:{(i%4)*1024} sc1 lds")

def rowmax(S):
    a(f"v_max3_f32 v11, v{S}, v{S+1}, v{S+2}")
    for i in range(3, 15, 2): a(f"v_max3_f32 v11, v11, v{S+i}, v{S+i+1}")
    a(f"v_max_f32 v11, v11, v{S+15}")

def finish_negm(N):
    a(f"""
    v_mov_b32 v12, v11
    s_nop 1
    v_permlane32_swap_b32 v11, v12
    s_nop 1
    v_max_f32 v11, v11, v12
    v_sub_f32 v{N}, 0, v11
    v_sub_f32 v{N+1}, 0, v11
    """)
    for i in range(2, 16, 2): a(f"v_pk_mov_b32 v[{N+i}:{N+i+1}], v[{N}:{N+1}], v[{N}:{N+1}]")

def att_pre():
    a(f"""
    v_lshrrev_b32 v{VVA}, 5, v1
    v_lshlrev_b32 v{VVA}, 8, v{VVA}
    v_and_b32 v9, 15, v1
    v_lshlrev_b32 v9, 4, v9
    v_add_u32 v{VVA}, v{VVA}, v9
    v_add_u32 v{VVA}, {KVB+1024}, v{VVA}
    v_and_b32 v{VSY}, 3, v1
    v_lshlrev_b32 v{VSY}, 2, v{VSY}
    v_add_u32 v{VSY}, {SYNC}, v{VSY}
    s_lshl_b32 s50, s60, 13
    v_add_u32 v15, {KVB}, v{VKA}
    v_add_u32 v{VK}, s50, v15
    v_add_u32 v{VV}, s50, v{VVA}
    v_add_u32 v{VKN}, 16384, v{VK}
    v_add_u32 v{VVN}, 16384, v{VV}
    """)
    for r in range(104, 120): a(f"v_mov_b32 v{r}, 0")
    a("s_mov_b32 exec_lo, 0x110000\ns_mov_b32 exec_hi, 0x110000")
    for r in range(104, 120): a(f"v_mov_b32 v{r}, 0x3f803f80")
    a("s_mov_b64 exec, -1")
    for q in range(2):
        for i in range(16): a(f"v_mov_b32 v{OA_[q]+i}, 0")

def attention():
    for i in range(4): a(f"v_mov_b32 v{PB+i}, 0")
    a(f"""
    ds_read_b128 {vr(88,4)}, v15
    ds_read_b128 {vr(KF[0],4)}, v{VK}
    ds_read_b128 {vr(KF[1],4)}, v{VK} offset:2048
    s_mov_b64 exec, s[{MLO}:{MLO+1}]
    ds_read_b128 {vr(VF[0][0],4)}, v{VV}
    ds_read_b128 {vr(VF[0][1],4)}, v{VV} offset:512
    s_mov_b64 exec, -1
    s_waitcnt vmcnt(0) lgkmcnt(4)
    {MF} {vr(SB[0],16)}, {vr(88,4)}, {vr(QF[0],4)}, 0
    {MF} {vr(SB[1],16)}, {vr(88,4)}, {vr(QF[1],4)}, 0
    """)
    a.nop(11)
    for q in range(2):
        rowmax(SB[q]); finish_negm(NEG[q])
    if "noprio" not in OPT: a("s_setprio 2")
    a(f"s_mov_b32 s62, 0\ns_waitcnt lgkmcnt(3)\n{MF} {vr(SB[0],16)}, {vr(KF[0],4)}, {vr(QF[0],4)}, {vr(NEG[0],16)}")
    stamp(7)
    cstamp(9, True)
    a.nop(6)
    LOOP = a.newlabel("att_loop"); LS1 = a.newlabel("att_s1"); LS2 = a.newlabel("att_s2"); LS3 = a.newlabel("att_s3"); LB = a.newlabel("att_body")
    a(".p2align 6")
    a.label(LOOP)
    a(f"s_cmp_eq_u32 s62, 1\ns_cbranch_scc1 {LS1}\ns_cmp_eq_u32 s62, 4\ns_cbranch_scc1 {LS2}\ns_cmp_eq_u32 s62, 7\ns_cbranch_scc1 {LS3}")
    a.label(LB)
    kaddr = lambda u: f"v{VK} offset:{u*2048}" if u < 4 else f"v{VKN} offset:{(u-4)*2048}"
    vaddr = lambda u, o: f"v{VV} offset:{u*2048+o}" if u < 4 else f"v{VVN} offset:{(u-4)*2048+o}"
    for tl in range(4):
        kb = tl & 1
        for q in range(2):
            S = SB[q]; Sn = SB[q ^ 1]
            e = lambda i: f"v_exp_f32 v{S+i}, v{S+i}"
            c = lambda i: f"v_cvt_pk_bf16_f32 v{PA+i}, v{S+2*i}, v{S+2*i+1}"
            last = q == 1; first = q == 0
            nk = KF[kb ^ 1] if last else KF[kb]
            pv = VF[kb ^ 1] if first else VF[kb]
            if last: a("s_waitcnt lgkmcnt(2)")
            a(f"{MF} {vr(Sn,16)}, {vr(nk,4)}, {vr(QF[q^1],4)}, {vr(NEG[q^1],16)}")
            if last: a(f"ds_read_b128 {vr(KF[kb],4)}, {kaddr(tl+2)}")
            for i in range(4): a(e(i))
            a(f"{MF} {vr(OA_[q^1],16)}, {vr(pv[1],4)}, {vr(PB,4)}, {vr(OA_[q^1],16)}")
            if first:
                a(f"s_mov_b64 exec, s[{MLO}:{MLO+1}]")
                a(f"ds_read_b128 {vr(VF[kb^1][0],4)}, {vaddr(tl+1,0)}")
                a(f"ds_read_b128 {vr(VF[kb^1][1],4)}, {vaddr(tl+1,512)}")
                a("s_mov_b64 exec, -1")
            for x in [c(0), e(4), e(5), c(1), e(6), e(7), c(2), e(8), c(3), e(9), e(10)]: a(x)
            if first: a("s_waitcnt lgkmcnt(3)")
            a(f"{MF} {vr(OA_[q],16)}, {vr(VF[kb][0],4)}, {vr(PA,4)}, {vr(OA_[q],16)}")
            for x in [e(11), c(4), e(12), e(13), c(5), e(14), e(15), c(6), c(7)]: a(x)
    a(f"""
    v_mov_b32 v{VK}, v{VKN}
    v_mov_b32 v{VV}, v{VVN}
    v_add_u32 v{VKN}, 16384, v{VKN}
    v_add_u32 v{VVN}, 16384, v{VVN}
    s_add_u32 s62, s62, 1
    s_cmp_lt_u32 s62, 8
    s_cbranch_scc1 {LOOP}
    {MF} {vr(OA_[1],16)}, {vr(VF[1][1],4)}, {vr(PB,4)}, {vr(OA_[1],16)}
    """)
    stamp(8)
    cstamp(9, False)
    lds_wait(VSY, 32, 10)
    LK1 = a.newlabel("kh1"); LKD = a.newlabel("khd")
    a(f"""
    s_mul_i32 s56, s3, 2304
    s_xor_b32 s57, s3, 4
    s_mul_i32 s57, s57, 2304
    v_add_u32 v10, s56, v{VKA}
    v_add_u32 v11, s57, v{VKA}
    v_lshlrev_b32 v12, 2, v1
    v_add_u32 v9, s57, v12
    v_add_u32 v12, s56, v12
    s_lshl_b32 s56, s3, 2
    s_add_u32 s56, s56, {SYNC+64}
    s_xor_b32 s57, s56, 16
    s_add_u32 s59, s59, s60
    s_cmp_eq_u32 s60, 0
    s_cbranch_scc0 {LK1}
    ds_write_b128 v10, {vr(OA_[1],4)}
    ds_write_b128 v10, {vr(OA_[1]+4,4)} offset:1024
    ds_write_b32 v12, v{OA_[1]+8} offset:2048
    s_branch {LKD}
    """)
    a.label(LK1)
    a(f"""
    ds_write_b128 v10, {vr(OA_[0],4)}
    ds_write_b128 v10, {vr(OA_[0]+4,4)} offset:1024
    ds_write_b32 v12, v{OA_[0]+8} offset:2048
    s_nop 0
    """)
    for i in range(9): a(f"v_mov_b32 v{OA_[0]+i}, v{OA_[1]+i}")
    for i in range(4): a(f"v_mov_b32 v{QF[0]+i}, v{QF[1]+i}")
    a.label(LKD)
    a("s_waitcnt lgkmcnt(0)")
    lds_set(56, 0, 13, 14)
    a("v_mov_b32 v14, s57")
    a(f"s_lshl_b32 s56, s59, 15\ns_lshl_b32 s57, s58, 10\ns_add_u32 s56, s56, s57\ns_add_u32 s56, s56, {WS_OB}")
    a(f"s_lshl_b32 s55, s59, 12\ns_lshl_b32 s57, s58, 7\ns_add_u32 s55, s55, s57\ns_add_u32 s55, s55, {FB2}")
    lds_wait(14, 0, 13)
    O = OA_[0]
    a(f"""
    ds_read_b128 {vr(48,4)}, v11
    ds_read_b128 {vr(52,4)}, v11 offset:1024
    ds_read_b32 v56, v9 offset:2048
    v_mov_b32 v10, {f2u(2.0**60)}
    s_waitcnt lgkmcnt(0)
    """)
    for i in range(9): a(f"v_add_f32 v{O+i}, v{O+i}, v{48+i}")
    LOK = a.newlabel("att_ok"); LFB = a.newlabel("att_fb")
    a(f"v_fma_f32 v11, v{O}, 0, v{O+8}")
    for i in range(1, 8): a(f"v_fma_f32 v11, v{O+i}, 0, v11")
    a(f"v_cmp_nlt_f32 vcc, v11, v10")
    a(f"s_nop 1\ns_cmp_eq_u64 vcc, 0\ns_cbranch_scc0 {LFB}")
    a.label(LOK)
    a(f"v_rcp_f32 v10, v{O+8}\ns_nop 0")
    for i in range(8): a(f"v_mul_f32 v{O+i}, v{O+i}, v10")
    for i in range(4): a(f"v_cvt_pk_bf16_f32 v{PA+i}, v{O+2*i}, v{O+2*i+1}")
    a(f"buffer_store_dwordx4 {vr(PA,4)}, v{VKA}, {srd(S_WS)}, s56 offen sc1\ns_waitcnt vmcnt(0)")
    set_flag(55, 10, 11)
    dump_stamps()
    a("s_endpgm")
    a.label(LS1)
    lds_wait(VSY, 0, 10)
    a(f"s_branch {LB}")
    a.label(LS2)
    lds_wait(VSY, 16, 10)
    if "noprio" not in OPT: a("s_setprio 1")
    a(f"s_branch {LB}")
    a.label(LS3)
    if "noprio" not in OPT: a("s_setprio 0")
    a(f"v_mov_b32 v{VKN}, v{VK}\nv_mov_b32 v{VVN}, v{VV}\ns_branch {LB}")
    a.label(LFB)
    LM = a.newlabel("att_mx"); LP = a.newlabel("att_p2")
    S = SB[0]
    a(f"v_mov_b32 v13, v15\nv_mov_b32 v9, 0xff800000\ns_mov_b32 s62, 0")
    a.label(LM)
    a(f"ds_read_b128 {vr(KF[0],4)}, v13\ns_waitcnt lgkmcnt(0)")
    a(f"{MF} {vr(S,16)}, {vr(KF[0],4)}, {vr(QF[0],4)}, 0")
    a.nop(12)
    rowmax(S)
    a(f"""
    v_max_f32 v9, v9, v11
    v_add_u32 v13, 2048, v13
    s_add_u32 s62, s62, 1
    s_cmp_lt_u32 s62, 64
    s_cbranch_scc1 {LM}
    v_mov_b32 v11, v9
    """)
    finish_negm(NEG[0])
    for i in range(16): a(f"v_mov_b32 v{O+i}, 0")
    a(f"v_mov_b32 v13, v15\nv_mov_b32 v14, v{VVA}\ns_mov_b32 s62, 0")
    a.label(LP)
    a(f"""
    ds_read_b128 {vr(KF[0],4)}, v13
    s_mov_b64 exec, s[{MLO}:{MLO+1}]
    ds_read_b128 {vr(VF[0][0],4)}, v14
    ds_read_b128 {vr(VF[0][1],4)}, v14 offset:512
    s_mov_b64 exec, -1
    s_waitcnt lgkmcnt(0)
    {MF} {vr(S,16)}, {vr(KF[0],4)}, {vr(QF[0],4)}, {vr(NEG[0],16)}
    """)
    a.nop(12)
    for i in range(16): a(f"v_exp_f32 v{S+i}, v{S+i}")
    a("s_nop 0")
    for i in range(8): a(f"v_cvt_pk_bf16_f32 v{PA+i}, v{S+2*i}, v{S+2*i+1}")
    a(f"""
    v_add_u32 v13, 2048, v13
    v_add_u32 v14, 2048, v14
    {MF} {vr(O,16)}, {vr(VF[0][0],4)}, {vr(PA,4)}, {vr(O,16)}
    {MF} {vr(O,16)}, {vr(VF[0][1],4)}, {vr(PB,4)}, {vr(O,16)}
    s_add_u32 s62, s62, 1
    s_cmp_lt_u32 s62, 64
    s_cbranch_scc1 {LP}
    """)
    a.nop(12)
    a(f"s_branch {LOK}")

a('.amdgcn_target "amdgcn-amd-amdhsa--gfx950"\n.text')
k = NAME + "_kernel"
prologue(k)
LG1 = a.newlabel("g1"); LG2 = a.newlabel("g2"); LATT = a.newlabel("att"); LG0 = a.newlabel("g0"); LQW = a.newlabel("qwait")
a(f"s_cmp_lt_u32 s3, 4\ns_cbranch_scc1 {LG0}\ns_cmp_ge_u32 s3, 8\ns_cbranch_scc1 {LG2}")
loader()
att_ids()
att_pre()
a("s_barrier")
if YX:
    dump_stamps(); a("s_endpgm")
a.label(LQW)
a(f"v_mov_b32 v10, {SYNC+120}")
lds_wait(10, 0, 11)
stamp(5)
q_load()
a(f"v_mov_b32 v10, {SYNC+48}")
lds_wait(10, 0, 11)
if "g1kv" in OPT:
    a(f"s_cmp_lt_u32 s3, 4\ns_cbranch_scc1 {LATT}\ns_lshl_b32 s62, s51, 2\ns_add_u32 s62, s62, {SYNC}")
    kv_dma(VKA, 58, 51, 32, 12)
    kv_dma(VKA, 58, 51, 80, 12)
    a("s_waitcnt vmcnt(12)")
    lds_set(62, 0, 10, 11)
    a("s_waitcnt vmcnt(0)")
    lds_set(62, 16, 10, 11)
stamp(6)
a(f"s_branch {LATT}")
a.label(LG0)
publish_tag()
a("s_mov_b32 s51, s3")
gemm_setup()
b_addr()
a("s_barrier")
stamp(1)
cstamp(10, True)
gemm_main(0, True)
stamp(2)
cstamp(10, False)
b_epilogue()
att_ids()
a(f"""
s_lshl_b32 s61, s7, 12
s_lshl_b32 s57, s6, 7
s_add_u32 s61, s61, s57
s_lshl_b32 s57, s3, 2
s_add_u32 s61, s61, s57
s_add_u32 s61, s61, {FB1}
s_lshl_b32 s62, s4, 12
s_add_u32 s62, s62, {FB1}
s_mov_b32 s63, 0
v_lshrrev_b32 v10, 1, v1
v_lshlrev_b32 v10, 7, v10
v_and_b32 v11, 1, v1
v_lshlrev_b32 v11, 3, v11
v_add_u32 v10, v10, v11
""")
def pload():
    a(f"buffer_load_dwordx2 v[90:91], v10, {srd(S_WS)}, s62 offen sc1")
def pcheck(lfail):
    a(f"v_cmp_ne_u32 vcc, s{TAG}, v90\nv_cmp_ne_u32 s[56:57], s{TAG}, v91\ns_nop 1\ns_or_b64 vcc, vcc, s[56:57]\ns_cmp_eq_u64 vcc, 0\ns_cbranch_scc0 {lfail}")
def kv_first():
    stamp(5)
    a("s_mov_b32 s55, 0")
    kv_dma(VKA, 58, 55, 0, 32)
    q_load()
    a("s_mov_b32 s63, 2")
def tick(kv_ok, may_poll, spins):
    LT = a.newlabel("tt"); LE = a.newlabel("tk"); L1 = a.newlabel("tk1"); LP = a.newlabel("tkp"); LW = a.newlabel("tkw")
    a(f"s_mov_b32 s54, {spins}")
    a.label(LT)
    a(f"""
    s_cmp_eq_u32 s63, 2
    s_cbranch_scc1 {LE}
    s_getreg_b32 s50, hwreg(HW_REG_IB_STS, 0, 4)
    s_cmp_lg_u32 s50, 0
    s_cbranch_scc1 {LW}
    s_cmp_eq_u32 s63, 1
    s_cbranch_scc1 {L1}
    """)
    set_flag(61, 11, 12)
    stamp(3)
    a(f"s_cmp_eq_u32 s3, 0\ns_cselect_b32 s63, 1, 2\ns_cbranch_scc1 {LP}\ns_branch {LE}")
    a.label(L1)
    if kv_ok:
        pcheck(LP)
        kv_first()
        a(f"s_branch {LE}")
    a.label(LP)
    if may_poll: pload()
    else: a(f"v_mov_b32 v90, 0\ns_branch {LE}")
    a.label(LW)
    a(f"s_sleep 1\ns_sub_u32 s54, s54, 1\ns_cmp_lg_u32 s54, 0\ns_cbranch_scc1 {LT}")
    a.label(LE)
SP = [int(x[3:]) for x in OPT if x.startswith("sp=")]
SP = SP[0] if SP else 2
att_pre()
a("s_barrier")
tick(False, False, SP)
for r in range(11, 16):
    a("s_barrier")
    tick(r >= 13, r >= 12, SP)
a("s_barrier")
stamp(4)
if YX:
    dump_stamps(); a("s_endpgm")
LD0 = a.newlabel("fin0"); LD1 = a.newlabel("fin1"); LDP = a.newlabel("finp"); LDF = a.newlabel("finf")
a(f"s_cmp_lg_u32 s63, 0\ns_cbranch_scc1 {LD0}\ns_waitcnt vmcnt(0)")
set_flag(61, 11, 12)
a(f"s_cmp_lg_u32 s3, 0\ns_cbranch_scc1 {LQW}\ns_mov_b32 s63, 1")
pload()
a.label(LD0)
a(f"s_cmp_lg_u32 s3, 0\ns_cbranch_scc1 {LQW}")
a(f"s_cmp_eq_u32 s63, 2\ns_cbranch_scc1 {LD1}\ns_mov_b32 s54, {POLL_LIMIT}")
a.label(LDP)
a("s_waitcnt vmcnt(0)")
pcheck(LDF)
kv_first()
a(f"s_branch {LD1}")
a.label(LDF)
pload()
a(f"s_sub_u32 s54, s54, 1\ns_cmp_lg_u32 s54, 0\ns_cbranch_scc1 {LDP}")
a.label(LD1)
a(f"s_mov_b32 s56, {SYNC}")
lds_set(56, 120, 10, 11)
a("s_waitcnt vmcnt(0)")
lds_set(56, 48, 10, 11)
stamp(6)
a.label(LATT)
attention()
a.label(LG2)
a("s_sub_u32 s51, s3, 8\ns_setprio 3")
gemm_setup()
for _ in range(9): a("s_barrier")
stamp(1)
gemm_main(8, False)
stamp(2)
if YX:
    dump_stamps(); a("s_endpgm")
a("s_waitcnt vmcnt(0)")
tag_from(9, 10)
a_local_front()
if "g1kv" not in OPT:
    a(f"""
s_lshl_b32 s61, s4, 2
s_and_b32 s50, s5, 3
s_add_u32 s61, s61, s50
v_lshlrev_b32 v10, 4, v1
s_lshl_b32 s62, s51, 2
s_add_u32 s62, s62, {SYNC}
v_and_b32 v11, 3, v1
v_lshlrev_b32 v11, 2, v11
v_add_u32 v11, {SYNC}, v11
s_mov_b32 s63, s55
""")
    a(f"v_mov_b32 v13, {SYNC+48}")
    lds_wait(13, 0, 12)
    kv_dma(10, 61, 51, 32, 12)
    kv_dma(10, 61, 51, 80, 12)
    LHF = a.newlabel("nohf")
    a(f"s_cmp_lg_u32 s52, 1\ns_cbranch_scc1 {LHF}\ns_waitcnt vmcnt(24)")
    set_flag(59, 12, 13)
    a.label(LHF)
    a("s_waitcnt vmcnt(12)")
    lds_set(62, 0, 12, 13)
    a("s_waitcnt vmcnt(0)\ns_mov_b32 s55, s63")
    lds_set(62, 16, 12, 13)
else:
    a(f"v_and_b32 v11, 3, v1\nv_lshlrev_b32 v11, 2, v11\nv_add_u32 v11, {SYNC}, v11")
stamp(10)
a_local_back()
stamp(3)
lds_wait(11, 96, 12)
op_setup()
wo_preload(S_AWO)
stamp(4)
outproj_a()
stamp(6)
wo_preload(S_BWO)
a(f"s_lshl_b32 s56, s51, 2\ns_add_u32 s56, s56, {SYNC}")
lds_set(56, 32, 2, 3)
stamp(7)
outproj_b()
dump_stamps()
a("s_endpgm")
a.label("L_exit")
a("s_endpgm")

hdr = open(f"cdna_kernels/{NAME}.s.ref").read().split("; Override")[0]
hdr += f"; @launch grid=(256,1,1) block=(768,1,1) lds={LDS_BYTES}\n"
tail = f'''.section .rodata,"a"
.p2align 6
.amdhsa_kernel {k}
  .amdhsa_next_free_vgpr 168
  .amdhsa_next_free_sgpr 96
  .amdhsa_accum_offset 168
  .amdhsa_group_segment_fixed_size 0
  .amdhsa_kernarg_size 72
  .amdhsa_user_sgpr_count 2
  .amdhsa_user_sgpr_kernarg_segment_ptr 1
  .amdhsa_system_sgpr_workgroup_id_x 1
.end_amdhsa_kernel
'''
if "y1" in OPT:
    a.lines = [l for l in a.lines if not (l.startswith("buffer_store_dwordx4 v[") and "sc1" in l)]
probs = check(a.lines)
for p in probs: print(p)
open(OUT, "w").write(hdr + a.text() + tail)
print("wrote", OUT, len(a.lines), "lines;", len(probs), "hazards")
```

```python
import sys, math, struct
from asmlib import *

NAME = "concat_heads__sliding_local_dilated__softmax_full_mha__prompt"
OUT = sys.argv[1] if len(sys.argv) > 1 else f"cdna_kernels/{NAME}.s"
OPT = set(sys.argv[2:])

WS_Q = 0
WS_KV = 2 << 20
WS_OB = 6 << 20
WS_OA = 8 << 20
WS_HALO = 10 << 20
WS_FLAG = 12 << 20
FB1 = WS_FLAG
FB2 = WS_FLAG + (128 << 10)
FA = WS_FLAG + (384 << 10)
HF = WS_FLAG + (512 << 10)
WS_STAMP = 14 << 20
WS_SIZE = 16 << 20

SLOT = 32768
AREG = 0
AW = 7680
SYNC = 30720
KVB = 32768
LDS_BYTES = 163840

S_AX, S_AW, S_AWO, S_BX, S_BW, S_BWO, S_OUT, S_DBG, S_WS = 8, 12, 16, 20, 24, 28, 32, 36, 40
def srd(b): return f"s[{b}:{b+3}]"
TAG, ROT, MLO, MHI = 44, 45, 46, 48
QSCALE = 0.25 * math.log2(math.e)
def f2u(x): return struct.unpack("<I", struct.pack("<f", x))[0]
MF = "v_mfma_f32_32x32x16_bf16"
POLL_LIMIT = 30000

a = Asm()
ORA = [int(x[4:]) for x in OPT if x.startswith("ora=")]
YX = any(x in OPT for x in ("y0", "y1", "y2", "y3"))
STAMP = "stamp" in OPT
def stamp(i):
    if STAMP: a(f"s_memrealtime s[82:83]\ns_waitcnt lgkmcnt(0)\ns_mov_b32 s{84+i}, s82")
def cstamp(i, first):
    if STAMP:
        a("s_memtime s[82:83]\ns_waitcnt lgkmcnt(0)")
        a(f"s_mov_b32 s{84+i}, s82" if first else f"s_sub_u32 s{84+i}, s82, s{84+i}")
def dump_stamps():
    if STAMP:
        stamp(11)
        a(f"s_mul_i32 s82, s2, 12\ns_add_u32 s82, s82, s3\ns_lshl_b32 s82, s82, 6\ns_add_u32 s82, s82, {WS_STAMP}\nv_mov_b32 v1, 0\ns_mov_b64 exec, 1")
        for i in range(12): a(f"v_mov_b32 v{2+i}, s{84+i}")
        for i in range(3): a(f"buffer_store_dwordx4 v[{2+4*i}:{5+4*i}], v1, {srd(S_WS)}, s82 offen offset:{16*i}")

def prologue(kname):
    a(f".globl {kname}\n.p2align 8\n.type {kname},@function")
    a.label(kname)
    a(f"""
    s_cmp_ge_u32 s2, 256
    s_cbranch_scc1 L_exit
    s_load_dwordx16 s[64:79], s[0:1], 0
    s_load_dwordx2 s[80:81], s[0:1], 64
    v_lshrrev_b32 v2, 6, v0
    v_and_b32 v1, 63, v0
    s_and_b32 s4, s2, 7
    v_readfirstlane_b32 s3, v2
    s_lshr_b32 s5, s2, 3
    s_and_b32 s6, s4, 3
    s_lshl_b32 s6, s6, 3
    s_and_b32 s50, s5, 7
    s_add_u32 s6, s6, s50
    s_and_b32 s7, s4, 4
    s_lshr_b32 s50, s5, 3
    s_add_u32 s7, s7, s50
    s_lshl_b32 s50, s7, 1
    s_add_u32 s{ROT}, s6, s50
    s_and_b32 s{ROT}, s{ROT}, 7
    s_mov_b32 s{MLO}, 0xffff
    s_mov_b32 s{MLO+1}, 0xffff
    s_mov_b32 s{MHI}, 0xffff0000
    s_mov_b32 s{MHI+1}, 0xffff0000
    """)
    order = [S_AX, S_AW, S_AWO, S_BX, S_BW, S_BWO, S_OUT, S_DBG, S_WS]
    sizes = [2 << 20, 512 * 1536 * 2, 512 * 512 * 2, 2 << 20, 512 * 1536 * 2, 512 * 512 * 2, 4 << 20, 256, WS_SIZE]
    for b, sz in zip(order, sizes): a(f"s_mov_b32 s{b+2}, {sz}\ns_mov_b32 s{b+3}, 0x20000")
    a("s_waitcnt lgkmcnt(0)")
    for i, b in enumerate(order): a(f"s_mov_b64 s[{b}:{b+1}], s[{64+2*i}:{65+2*i}]")
    if STAMP:
        for i in range(12): a(f"s_mov_b32 s{84+i}, 0")
    stamp(0)
    if ORA: a("s_memrealtime s[90:91]\ns_waitcnt lgkmcnt(0)")

def publish_tag():
    L = a.newlabel("notag")
    a(f"""
    s_or_b32 s50, s2, s3
    s_cmp_lg_u32 s50, 0
    s_cbranch_scc1 {L}
    s_memrealtime s[52:53]
    v_mov_b32 v3, 0
    s_waitcnt lgkmcnt(0)
    s_or_b32 s52, s52, 1
    v_mov_b32 v2, s52
    s_mov_b64 exec, 1
    buffer_store_dword v2, v3, {srd(S_DBG)}, 0 offen sc1
    s_mov_b64 exec, -1
    """)
    a.label(L)

def tag_from(v, vz):
    L = a.newlabel("gt"); D = a.newlabel("gtd")
    a(f"s_mov_b32 s50, {POLL_LIMIT}")
    a.label(L)
    a(f"""
    v_readfirstlane_b32 s{TAG}, v{v}
    s_nop 1
    s_cmp_lg_u32 s{TAG}, 0
    s_cbranch_scc1 {D}
    s_sleep 4
    buffer_load_dword v{v}, v{vz}, {srd(S_DBG)}, 0 offen sc1
    s_sub_u32 s50, s50, 1
    s_cmp_lg_u32 s50, 0
    s_waitcnt vmcnt(0)
    s_cbranch_scc1 {L}
    """)
    a.label(D)

def poll(voff, soff, vt, slp):
    L = a.newlabel("pl"); D = a.newlabel("pld")
    a(f"s_mov_b32 s50, {POLL_LIMIT}")
    a.label(L)
    a(f"""
    buffer_load_dword v{vt}, v{voff}, {srd(S_WS)}, s{soff} offen sc1
    s_waitcnt vmcnt(0)
    v_cmp_ne_u32 vcc, s{TAG}, v{vt}
    s_nop 1
    s_cmp_eq_u64 vcc, 0
    s_cbranch_scc1 {D}
    s_sleep {slp}
    s_sub_u32 s50, s50, 1
    s_cmp_lg_u32 s50, 0
    s_cbranch_scc1 {L}
    """)
    a.label(D)

def poll2(voff, soff, vt):
    L = a.newlabel("pl"); D = a.newlabel("pld")
    ld = lambda v: f"buffer_load_dword v{v}, v{voff}, {srd(S_WS)}, s{soff} offen sc1"
    a(f"s_mov_b32 s50, {POLL_LIMIT}\n{ld(vt)}\ns_sleep 6")
    a.label(L)
    for k in range(2):
        a(f"""
        {ld(vt + (k ^ 1))}
        s_waitcnt vmcnt(1)
        v_cmp_ne_u32 vcc, s{TAG}, v{vt + k}
        s_nop 1
        s_cmp_eq_u64 vcc, 0
        s_cbranch_scc1 {D}
        """)
    a(f"s_sub_u32 s50, s50, 1\ns_cmp_lg_u32 s50, 0\ns_cbranch_scc1 {L}")
    a.label(D)

def lds_wait(vaddr, off, vt):
    L = a.newlabel("lw"); D = a.newlabel("lwd")
    a("s_mov_b32 s50, 0x80000")
    a.label(L)
    a(f"""
    ds_read_b32 v{vt}, v{vaddr} offset:{off}
    s_waitcnt lgkmcnt(0)
    v_cmp_ne_u32 vcc, s{TAG}, v{vt}
    s_nop 1
    s_cmp_eq_u64 vcc, 0
    s_cbranch_scc1 {D}
    s_sleep 1
    s_sub_u32 s50, s50, 1
    s_cmp_lg_u32 s50, 0
    s_cbranch_scc1 {L}
    """)
    a.label(D)

def lds_set(saddr, off, vt, va):
    a(f"""
    v_mov_b32 v{vt}, s{TAG}
    v_mov_b32 v{va}, s{saddr}
    s_mov_b64 exec, 1
    ds_write_b32 v{va}, v{vt} offset:{off}
    s_mov_b64 exec, -1
    """)

def set_flag(soff, vt, vz):
    a(f"""
    v_mov_b32 v{vt}, s{TAG}
    v_mov_b32 v{vz}, 0
    s_mov_b64 exec, 1
    buffer_store_dword v{vt}, v{vz}, {srd(S_WS)}, s{soff} offen sc1
    s_mov_b64 exec, -1
    """)

def loader():
    a(f"""
    s_sub_u32 s51, s3, 4
    v_lshrrev_b32 v14, 3, v1
    v_and_b32 v15, 7, v1
    v_lshlrev_b32 v16, 1, v14
    v_and_b32 v16, 4, v16
    v_xor_b32 v16, v15, v16
    v_lshlrev_b32 v16, 4, v16
    v_mul_u32_u24 v13, 3072, v14
    v_add_u32 v13, v13, v16
    s_and_b32 s50, s51, 1
    s_lshl_b32 s50, s50, 2
    v_lshrrev_b32 v16, 4, v1
    v_add_u32 v16, s50, v16
    v_xor_b32 v15, v15, v16
    v_lshlrev_b32 v15, 4, v15
    v_lshlrev_b32 v14, 10, v14
    v_add_u32 v12, v14, v15
    s_lshl_b32 s52, s51, 10
    s_lshl_b32 s53, s6, 16
    s_lshl_b32 s50, s51, 13
    s_add_u32 s53, s53, s50
    s_mul_i32 s54, s51, 24576
    s_lshl_b32 s55, s7, 7
    s_add_u32 s54, s54, s55
    s_mul_i32 s55, s51, 3072
    s_add_u32 s55, s55, 8192
    v_mov_b32 v17, 0
    """)
    q = []
    def cload(c):
        sx, sw = (S_BX, S_BW) if c < 8 else (S_AX, S_AW)
        sl = (c % 5) * SLOT
        a(f"""
        s_add_u32 s56, s{ROT}, {c & 7}
        s_and_b32 s56, s56, 7
        s_lshl_b32 s57, s56, 7
        s_add_u32 s57, s57, s53
        s_mul_i32 s56, s56, {64*3072}
        s_add_u32 s56, s56, s54
        """)
        for i in range(2):
            a(f"s_add_u32 m0, s52, {sl + i*4096}\ns_add_u32 s58, s57, {i*32768}")
            a(f"buffer_load_dwordx4 v12, {srd(sx)}, s58 offen lds")
        for hh in range(2):
            a(f"s_add_u32 m0, s55, {sl + hh*4*3072}\ns_add_u32 s58, s56, {hh*32*3072}")
            for p in range(3):
                a(f"buffer_load_dwordx4 v13, {srd(sw)}, s58 offen offset:{p*1024} lds")
        q.extend([c] * 8)
    NPRE = 2 if "pre2" in OPT else 1 if "pre1" in OPT else 3
    for c in range(NPRE): cload(c)
    stamp(1)
    nxt = NPRE
    for c in range(16):
        last = max(i for i, e in enumerate(q) if e == c)
        a(f"s_waitcnt vmcnt({len(q) - 1 - last})\ns_barrier")
        k = 0
        while nxt <= c + 3 and nxt < 16 and k < 2:
            cload(nxt); nxt += 1; k += 1
        if c == 6:
            a(f"buffer_load_dword v16, v17, {srd(S_DBG)}, 0 offen sc1"); q.append(-1)
    tag_from(16, 17)

ACCQ, ACCK, ACCV = 16, 32, 48
FR = [64, 80, 96]
XA, WA = 112, 124

def gemm_setup():
    a(f"""
    s_and_b32 s52, s51, 1
    s_lshr_b32 s53, s51, 1
    v_and_b32 v2, 31, v1
    v_lshrrev_b32 v3, 5, v1
    v_and_b32 v4, 15, v1
    s_lshl_b32 s50, s52, 12
    v_lshlrev_b32 v5, 7, v2
    v_add_u32 v5, s50, v5
    v_lshrrev_b32 v7, 1, v4
    """)
    for ss in range(4):
        a(f"""
        v_add_u32 v6, {2*ss}, v3
        v_xor_b32 v6, v6, v7
        v_lshlrev_b32 v6, 4, v6
        v_add_u32 v{XA+ss}, v5, v6
        v_add_u32 v{XA+4+ss}, {2*SLOT}, v{XA+ss}
        v_add_u32 v{XA+8+ss}, {4*SLOT}, v{XA+ss}
        """)
    a(f"""
    v_mul_u32_u24 v6, 3072, v3
    v_lshrrev_b32 v7, 2, v4
    v_lshlrev_b32 v8, 7, v7
    v_add_u32 v6, v6, v8
    v_lshrrev_b32 v7, 1, v7
    v_xor_b32 v7, s53, v7
    v_lshlrev_b32 v7, 6, v7
    v_add_u32 v6, v6, v7
    v_and_b32 v7, 16, v1
    v_lshlrev_b32 v7, 1, v7
    v_add_u32 v6, v6, v7
    v_and_b32 v7, 3, v1
    v_lshlrev_b32 v7, 3, v7
    v_add_u32 v6, v6, v7
    v_add_u32 v{WA}, 8192, v6
    v_add_u32 v{WA+1}, {8192+2*SLOT}, v6
    v_add_u32 v{WA+2}, {8192+4*SLOT}, v6
    v_mov_b32 v10, 0
    s_lshl_b32 s54, s6, 1
    s_add_u32 s54, s54, s52
    """)

def gemm_main(c0, vtrans):
    def reads(n, f):
        c = c0 + (n >> 2); ss = n & 3
        slot = c % 5
        hi = slot >> 1
        off = (slot & 1) * SLOT
        r = [f"ds_read_b128 {vr(f,4)}, v{XA+4*hi+ss} offset:{off}"]
        for p in range(3):
            r.append(f"ds_read_b64_tr_b16 {vr(f+4+4*p,2)}, v{WA+hi} offset:{off+ss*6144+p*1024}")
            r.append(f"ds_read_b64_tr_b16 {vr(f+6+4*p,2)}, v{WA+hi} offset:{off+ss*6144+p*1024+512}")
        return r
    def mfmas(f, first):
        c = lambda r: "0" if first else vr(r, 16)
        m = [f"{MF} {vr(ACCK,16)}, {vr(f+8,4)}, {vr(f,4)}, {c(ACCK)}"]
        if vtrans: m.append(f"{MF} {vr(ACCV,16)}, {vr(f,4)}, {vr(f+12,4)}, {c(ACCV)}")
        else: m.append(f"{MF} {vr(ACCV,16)}, {vr(f+12,4)}, {vr(f,4)}, {c(ACCV)}")
        m.append(f"{MF} {vr(ACCQ,16)}, {vr(f+4,4)}, {vr(f,4)}, {c(ACCQ)}")
        return m
    for x in reads(0, FR[0]) + reads(1, FR[1]): a(x)
    for n in range(32):
        n2 = n + 2
        m = mfmas(FR[n % 3], n == 0)
        a(f"s_waitcnt lgkmcnt({7 if n < 31 else 0})")
        if n == 31 and c0 == 8: a("s_barrier")
        r = reads(n2, FR[n2 % 3]) if n2 < 32 else []
        if "y2" in OPT: m = ["s_nop 0"] * 3
        if "y3" in OPT: m = ["s_nop 0"] * 3; r = []
        a(m[0])
        if n == 12: a(f"buffer_load_dword v9, v10, {srd(S_DBG)}, 0 offen sc1")
        if (n2 & 3) == 0 and (n2 < 32 or (n2 == 32 and c0 == 0)): a("s_barrier")
        for x in r[0:3]: a(x)
        a(m[1])
        for x in r[3:5]: a(x)
        a(m[2])
        for x in r[5:7]: a(x)

def b_addr():
    a(f"""
    s_lshl_b32 s55, s7, 2
    s_lshl_b32 s56, s53, 1
    s_add_u32 s55, s55, s56
    s_lshl_b32 s56, s55, 16
    s_lshl_b32 s57, s54, 10
    s_add_u32 s56, s56, s57
    s_add_u32 s57, s56, 65536
    s_lshl_b32 s58, s55, 17
    s_lshl_b32 s59, s54, 11
    s_add_u32 s58, s58, s59
    s_add_u32 s58, s58, {WS_KV}
    s_add_u32 s59, s58, 131072
    v_lshlrev_b32 v2, 4, v1
    v_and_b32 v3, 16, v1
    v_lshlrev_b32 v3, 13, v3
    v_lshrrev_b32 v4, 5, v1
    v_lshlrev_b32 v4, 8, v4
    v_add_u32 v3, v3, v4
    v_and_b32 v4, 15, v1
    v_lshlrev_b32 v4, 4, v4
    v_add_u32 v3, v3, v4
    s_mov_b32 s60, {f2u(QSCALE)}
    """)

def b_epilogue():
    a("s_waitcnt vmcnt(0)")
    tag_from(9, 10)
    a.nop(3)
    for i in range(8): a(f"v_cvt_pk_bf16_f32 v{64+i}, v{ACCK+2*i}, v{ACCK+2*i+1}")
    a(f"buffer_store_dwordx4 v[64:67], v2, {srd(S_WS)}, s58 offen sc1")
    a(f"buffer_store_dwordx4 v[68:71], v2, {srd(S_WS)}, s59 offen sc1")
    for i in range(8): a(f"v_cvt_pk_bf16_f32 v{72+i}, v{ACCV+2*i}, v{ACCV+2*i+1}")
    a(f"buffer_store_dwordx4 v[72:75], v3, {srd(S_WS)}, s58 offen offset:1024 sc1")
    a(f"buffer_store_dwordx4 v[76:79], v3, {srd(S_WS)}, s58 offen offset:1536 sc1")
    if "q2" in OPT:
        for i in range(8): a(f"v_cvt_pk_bf16_f32 v{80+i}, v{ACCQ+2*i}, v{ACCQ+2*i+1}")
        for i in range(8):
            a(f"v_lshlrev_b32 v{ACCQ+2*i}, 16, v{80+i}\nv_and_b32 v{ACCQ+2*i+1}, 0xffff0000, v{80+i}")
    for i in range(16): a(f"v_mul_f32 v{ACCQ+i}, s60, v{ACCQ+i}")
    for i in range(8): a(f"v_cvt_pk_bf16_f32 v{80+i}, v{ACCQ+2*i}, v{ACCQ+2*i+1}")
    a(f"buffer_store_dwordx4 v[80:83], v2, {srd(S_WS)}, s56 offen sc1")
    a(f"buffer_store_dwordx4 v[84:87], v2, {srd(S_WS)}, s57 offen sc1")
    a("s_barrier")

Q8, K8, V8, KP, VP = 64, 72, 80, 88, 96
PADR = 128
VSW, VSR, VPR, VL16 = 136, 137, 138, 139
def a_local_setup():
    a(f"""
    s_mul_i32 s57, s51, {AW}
    v_and_b32 v2, 31, v1
    v_lshrrev_b32 v3, 5, v1
    v_lshlrev_b32 v4, 4, v3
    v_mul_u32_u24 v5, 208, v2
    v_add_u32 v5, v5, v4
    v_add_u32 v{VSW}, s57, v5
    v_mul_u32_u24 v5, 212, v2
    v_add_u32 v5, 8, v5
    v_add_u32 v{VSR}, s57, v5
    v_mul_u32_u24 v5, 112, v2
    v_add_u32 v5, s57, v5
    v_add_u32 v{VPR}, v5, v4
    v_mul_u32_u24 v6, 3584, v3
    v_add_u32 v5, v5, v6
    v_lshlrev_b32 v{VL16}, 4, v1
    """)
    for i in range(8):
        a(f"""
        v_add_u32 v6, {2 + 2*i}, v2
        v_lshrrev_b32 v7, 4, v6
        v_lshlrev_b32 v7, 5, v7
        v_and_b32 v8, 4, v6
        v_lshlrev_b32 v8, 2, v8
        v_add_u32 v7, v7, v8
        v_and_b32 v8, 8, v6
        v_add_u32 v7, v7, v8
        v_and_b32 v8, 3, v6
        v_lshlrev_b32 v8, 1, v8
        v_add_u32 v7, v7, v8
        v_add_u32 v{PADR+i}, v5, v7
        """)
    a(f"""
    s_lshl_b32 s55, s7, 1
    s_add_u32 s55, s55, s53
    s_lshl_b32 s56, s6, 4
    s_add_u32 s56, s56, s55
    s_lshl_b32 s58, s56, 12
    s_add_u32 s58, s58, {WS_HALO}
    s_lshl_b32 s59, s56, 7
    s_add_u32 s59, s59, {HF}
    s_lshl_b32 s60, s53, 2
    s_add_u32 s60, s60, {SYNC+112}
    """)

def a_local_front():
    a.nop(4)
    for dst, acc in ((K8, ACCK), (V8, ACCV)):
        for i in range(8): a(f"v_cvt_pk_bf16_f32 v{dst+i}, v{acc+2*i}, v{acc+2*i+1}")
    LNH = a.newlabel("nohs"); LHD = a.newlabel("hsd")
    a(f"s_cmp_lg_u32 s52, 1\ns_cbranch_scc1 {LNH}")
    for i, r in enumerate((K8, K8 + 4, V8 + 4)):
        a(f"buffer_store_dwordx4 {vr(r,4)}, v{VL16}, {srd(S_WS)}, s58 offen offset:{1024*i} sc1")
    a(f"s_branch {LHD}")
    a.label(LNH)
    a(f"s_add_u32 s50, s57, {AW}\nv_add_u32 v4, s50, v{VL16}")
    for i, r in enumerate((K8, K8 + 4, V8 + 4)):
        a(f"ds_write_b128 v4, {vr(r,4)} offset:{1024*i}")
    a("s_waitcnt lgkmcnt(0)")
    lds_set(60, 0, 6, 7)
    a.label(LHD)
    for i in range(8): a(f"v_cvt_pk_bf16_f32 v{Q8+i}, v{ACCQ+2*i}, v{ACCQ+2*i+1}")

def a_local_back():
    LG = 100; PF = 108
    SO, SPV = 16, 32
    LZ = a.newlabel("hz"); LN0 = a.newlabel("nohl"); LN1 = a.newlabel("hl1")
    a(f"s_cmp_lg_u32 s52, 0\ns_cbranch_scc1 {LN1}")
    a(f"s_cmp_eq_u32 s54, 0\ns_cbranch_scc1 {LZ}")
    a(f"s_sub_u32 s59, s59, 2048\ns_sub_u32 s58, s58, {16*4096}\nv_mov_b32 v7, 0")
    poll(7, 59, 6, 8)
    for i in range(3): a(f"buffer_load_dwordx4 {vr(KP+4*i,4)}, v{VL16}, {srd(S_WS)}, s58 offen offset:{1024*i} sc1")
    a(f"s_waitcnt vmcnt(0)\ns_branch {LN0}")
    a.label(LZ)
    for i in range(12): a(f"v_mov_b32 v{KP+i}, 0")
    a(f"s_branch {LN0}")
    a.label(LN1)
    a(f"v_mov_b32 v7, s60\nv_add_u32 v4, s57, v{VL16}")
    lds_wait(7, 0, 6)
    for i in range(3): a(f"ds_read_b128 {vr(KP+4*i,4)}, v4 offset:{1024*i}")
    a("s_waitcnt lgkmcnt(0)")
    a.label(LN0)
    a("s_nop 1")
    for hh in range(2):
        a(f"{MF} {vr(SO,16)}, {vr(K8+4*hh,4)}, {vr(Q8+4*hh,4)}, 0")
        a(f"{MF} {vr(SPV,16)}, {vr(KP+4*hh,4)}, {vr(Q8+4*hh,4)}, 0")
        a.nop(11)
        for g in range(4): a(f"ds_write_b128 v{VSW}, {vr(SO+4*g,4)} offset:{64+32*g}")
        for g in range(2, 4): a(f"ds_write_b128 v{VSW}, {vr(SPV+4*g,4)} offset:{32*(g-2)}")
        a("s_mov_b32 exec_hi, 0" if hh == 0 else "s_mov_b32 exec_lo, 0")
        for k in range(4): a(f"ds_read2_b32 {vr(LG+2*k,2)}, v{VSR} offset0:{4*k} offset1:{4*k+2}")
        a("s_mov_b64 exec, -1")
        if hh == 0: a("s_waitcnt lgkmcnt(4)")
    for i in range(4): a(f"v_mov_b32 v{PF+i}, 0")
    a(f"v_add_u32 v4, s57, v{VL16}")
    for i in range(7): a(f"ds_write_b128 v4, {vr(PF,4)} offset:{1024*i}")
    a("s_waitcnt lgkmcnt(7)")
    for i in range(4): a(f"v_cvt_pk_bf16_f32 v{120+i}, v{LG+2*i}, v{LG+2*i+1}")
    for i in range(4): a(f"v_lshlrev_b32 v{LG+2*i}, 16, v{120+i}\nv_and_b32 v{LG+2*i+1}, 0xffff0000, v{120+i}")
    LM = a.newlabel("nomask")
    a(f"s_cmp_lg_u32 s54, 0\ns_cbranch_scc1 {LM}\nv_mov_b32 v6, 0xf149f2ca\nv_and_b32 v2, 31, v1")
    for w in range(1, 8):
        a(f"v_cmp_gt_u32 vcc, {2*w}, v2\ns_nop 1\nv_cndmask_b32 v{LG+7-w}, v{LG+7-w}, v6, vcc")
    a.label(LM)
    a(f"""
    v_max3_f32 v6, v{LG}, v{LG+1}, v{LG+2}
    v_max3_f32 v7, v{LG+3}, v{LG+4}, v{LG+5}
    v_max3_f32 v6, v6, v{LG+6}, v{LG+7}
    v_max_f32 v6, v6, v7
    s_mov_b32 s60, {f2u(QSCALE)}
    """)
    for w in range(8): a(f"v_sub_f32 v{LG+w}, v{LG+w}, v6")
    for w in range(8): a(f"v_mul_f32 v{LG+w}, s60, v{LG+w}")
    for w in range(8): a(f"v_exp_f32 v{LG+w}, v{LG+w}")
    a(f"""
    v_add_f32 v6, v{LG}, v{LG+1}
    v_add_f32 v7, v{LG+2}, v{LG+3}
    v_add_f32 v8, v{LG+4}, v{LG+5}
    v_add_f32 v9, v{LG+6}, v{LG+7}
    v_add_f32 v6, v6, v7
    v_add_f32 v8, v8, v9
    v_add_f32 v6, v6, v8
    v_rcp_f32 v6, v6
    s_nop 0
    """)
    for w in range(8): a(f"v_mul_f32 v{LG+w}, v{LG+w}, v6")
    for i in range(4): a(f"v_cvt_pk_bf16_f32 v{120+i}, v{LG+2*i}, v{LG+2*i+1}")
    for i in range(4):
        a(f"ds_write_b16 v{PADR+2*i}, v{120+i}\nds_write_b16_d16_hi v{PADR+2*i+1}, v{120+i}")
    PF2 = [108, 48]
    for hh in range(2):
        for u in range(3): a(f"ds_read_b128 {vr(PF2[hh]+4*u,4)}, v{VPR} offset:{hh*3584+32*u}")
    a(f"""
    s_lshl_b32 s58, s54, 15
    s_lshl_b32 s59, s55, 11
    s_add_u32 s58, s58, s59
    s_add_u32 s58, s58, {WS_OA}
    s_lshl_b32 s59, s54, 11
    s_lshl_b32 s60, s55, 7
    s_add_u32 s59, s59, s60
    s_add_u32 s59, s59, {FA}
    s_lshl_b32 s60, s51, 2
    s_add_u32 s60, s60, {SYNC+96}
    """)
    va = [VP, V8, V8 + 4]
    for hh in range(2):
        a(f"s_waitcnt lgkmcnt({3 if hh == 0 else 0})")
        acc = (SO, SPV)[hh]
        for u in range(3):
            a(f"{MF} {vr(acc,16)}, {vr(va[u],4)}, {vr(PF2[hh]+4*u,4)}, {'0' if u == 0 else vr(acc,16)}")
    lds_set(60, 0, 6, 7)
    a.nop(4)
    for i in range(4): a(f"v_cvt_pk_bf16_f32 v{64+i}, v{SO+2*i}, v{SO+2*i+1}")
    a(f"buffer_store_dwordx4 v[64:67], v{VL16}, {srd(S_WS)}, s58 offen sc1")
    for i in range(4): a(f"v_cvt_pk_bf16_f32 v{68+i}, v{SPV+8+2*i}, v{SPV+8+2*i+1}")
    a(f"buffer_store_dwordx4 v[68:71], v{VL16}, {srd(S_WS)}, s58 offen offset:1024 sc1")
    a("s_waitcnt vmcnt(0)")
    set_flag(59, 6, 7)

WO = 40
OACC2 = 16
def op_setup():
    a(f"""
    s_lshl_b32 s61, s4, 3
    s_and_b32 s50, s5, 7
    s_add_u32 s61, s61, s50
    s_lshr_b32 s62, s5, 3
    s_lshl_b32 s62, s62, 8
    s_lshl_b32 s50, s51, 6
    s_add_u32 s62, s62, s50
    s_mul_i32 s63, s51, {AW}
    v_lshrrev_b32 v14, 2, v1
    v_lshlrev_b32 v14, 10, v14
    v_and_b32 v15, 3, v1
    v_lshlrev_b32 v15, 4, v15
    v_add_u32 v14, v14, v15
    v_lshrrev_b32 v15, 5, v1
    v_lshlrev_b32 v15, 8, v15
    v_and_b32 v2, 12, v1
    v_lshlrev_b32 v2, 4, v2
    v_add_u32 v15, v15, v2
    v_and_b32 v2, 16, v1
    v_lshlrev_b32 v2, 1, v2
    v_add_u32 v15, v15, v2
    v_and_b32 v2, 3, v1
    v_lshlrev_b32 v2, 3, v2
    v_add_u32 v15, v15, v2
    v_add_u32 v15, s63, v15
    """)

def wo_preload(swo):
    NS = 7
    def dma(s):
        a(f"s_add_u32 m0, s63, {(s%NS)*1024}\ns_add_u32 s50, s62, {s*16384}")
        a(f"buffer_load_dwordx4 v14, {srd(swo)}, s50 offen lds")
    for s in range(NS): dma(s)
    for s in range(32):
        issued = min(32, s + NS - 1 if s > 0 else NS)
        a(f"s_waitcnt vmcnt({issued - 1 - s})")
        a(f"ds_read_b64_tr_b16 {vr(WO+4*s,2)}, v15 offset:{(s%NS)*1024}")
        a(f"ds_read_b64_tr_b16 {vr(WO+4*s+2,2)}, v15 offset:{(s%NS)*1024+512}")
        if s >= 1 and s - 1 + NS < 32:
            a("s_waitcnt lgkmcnt(2)")
            dma(s - 1 + NS)
    a("s_waitcnt lgkmcnt(0)")

def op_addr(colbase, va, vb):
    a(f"""
    v_and_b32 v{va}, 31, v1
    v_lshlrev_b32 v{va}, 11, v{va}
    v_lshrrev_b32 v{vb}, 5, v1
    v_lshlrev_b32 v{vb}, 4, v{vb}
    v_add_u32 v{va}, v{va}, v{vb}
    s_lshl_b32 s55, s61, 16
    s_add_u32 s55, s55, s62
    s_add_u32 s55, s55, {colbase*2}
    """)

def op_store(va):
    a.nop(12)
    for i in range(8): a(f"v_cvt_pk_bf16_f32 v{32+i}, v{OACC2+2*i}, v{OACC2+2*i+1}")
    a("s_nop 1")
    a("v_permlane32_swap_b32 v32, v34\nv_permlane32_swap_b32 v33, v35\nv_permlane32_swap_b32 v36, v38\nv_permlane32_swap_b32 v37, v39")
    a(f"buffer_store_dwordx4 v[32:35], v{va}, {srd(S_OUT)}, s55 offen")
    a(f"buffer_store_dwordx4 v[36:39], v{va}, {srd(S_OUT)}, s55 offen offset:32")

BUFS = [2, 6, 10, 32, 36]
def outproj_a():
    a(f"v_and_b32 v2, 15, v1\nv_lshlrev_b32 v2, 7, v2\ns_lshl_b32 s56, s61, 11\ns_add_u32 s56, s56, {FA}")
    poll(2, 56, 3, 16)
    stamp(5)
    if "oadma" not in OPT:
        a(f"v_lshlrev_b32 v0, 4, v1\ns_lshl_b32 s56, s61, 15\ns_add_u32 s56, s56, {WS_OA}")
        def ld(s):
            a(f"s_add_u32 s57, s56, {(s>>2)*4096}")
            a(f"buffer_load_dwordx4 {vr(BUFS[s%5],4)}, v0, {srd(S_WS)}, s57 offen offset:{(s&3)*1024} sc1")
        for s in range(5): ld(s)
        for s in range(32):
            a(f"s_waitcnt vmcnt({min(4, 31-s)})")
            a(f"{MF} {vr(OACC2,16)}, {vr(WO+4*s,4)}, {vr(BUFS[s%5],4)}, {'0' if s==0 else vr(OACC2,16)}")
            if s + 5 < 32: ld(s + 5)
    else:
        NS = 7
        a(f"v_lshlrev_b32 v0, 4, v1\nv_add_u32 v13, s63, v0\ns_lshl_b32 s56, s61, 15\ns_add_u32 s56, s56, {WS_OA}")
        def dma(s):
            a(f"s_add_u32 m0, s63, {(s%NS)*1024}\ns_add_u32 s57, s56, {s*1024}")
            a(f"buffer_load_dwordx4 v0, {srd(S_WS)}, s57 offen sc1 lds")
        B3 = [2, 6, 32]
        for s in range(NS): dma(s)
        for s in range(34):
            if s < 32:
                issued = min(32, NS + max(0, s - 1))
                a(f"s_waitcnt vmcnt({issued - 1 - s})")
                a(f"ds_read_b128 {vr(B3[s%3],4)}, v13 offset:{(s%NS)*1024}")
            if s >= 1 and s - 1 < 32:
                t = s - 1
                a(f"s_waitcnt lgkmcnt({1 if s < 32 else 0})")
                if t + NS < 32: dma(t + NS)
                a(f"{MF} {vr(OACC2,16)}, {vr(WO+4*t,4)}, {vr(B3[t%3],4)}, {'0' if t==0 else vr(OACC2,16)}")
    op_addr(0, 2, 3)
    op_store(2)

def outproj_b():
    if "tail0" in OPT: return outproj_b0()
    op_addr(512, 14, 15)
    a(f"""
    v_lshlrev_b32 v0, 4, v1
    v_add_u32 v15, {KVB}, v0
    s_lshl_b32 s58, s61, 15
    s_add_u32 s58, s58, {WS_OB}
    s_lshl_b32 s57, s51, 13
    s_add_u32 s58, s58, s57
    s_add_u32 s59, s58, 4096
    s_add_u32 s57, s57, {KVB}
    v_and_b32 v2, 7, v1
    v_lshlrev_b32 v2, 7, v2
    s_lshl_b32 s56, s61, 12
    s_lshl_b32 s60, s51, 10
    s_add_u32 s56, s56, s60
    s_add_u32 s56, s56, {FB2}
    v_and_b32 v13, 3, v1
    v_lshlrev_b32 v13, 2, v13
    v_add_u32 v13, {SYNC+128}, v13
    s_lshl_b32 s60, s51, 2
    s_add_u32 s60, s60, {SYNC+128}
    s_barrier
    """)
    stamp(8)
    poll2(2, 56, 3)
    stamp(9)
    a("s_mov_b32 m0, s57\ns_nop 0")
    for i in range(4): a(f"buffer_load_dwordx4 v0, {srd(S_WS)}, s58 offen offset:{i*1024} sc1 lds")
    a("s_add_u32 m0, s57, 4096\ns_nop 0")
    for i in range(4): a(f"buffer_load_dwordx4 v0, {srd(S_WS)}, s59 offen offset:{i*1024} sc1 lds")
    a("s_mov_b32 s57, 0\ns_waitcnt vmcnt(0)")
    lds_set(60, 0, 10, 11)
    def gate(g):
        L = a.newlabel("gt"); D = a.newlabel("gtd")
        a(f"s_bitcmp1_b32 s57, {g}\ns_cbranch_scc1 {D}\ns_mov_b32 s50, 0x200000")
        a.label(L)
        a(f"""
        ds_read_b32 v12, v13
        s_waitcnt lgkmcnt(0)
        v_cmp_eq_u32 vcc, s{TAG}, v12
        s_nop 1
        s_mov_b32 s57, vcc_lo
        s_bitcmp1_b32 s57, {g}
        s_cbranch_scc1 {D}
        s_sub_u32 s50, s50, 1
        s_cmp_lg_u32 s50, 0
        s_cbranch_scc1 {L}
        """)
        a.label(D)
    B4 = [2, 6, 32, 36]
    gate(0)
    for s in range(4): a(f"ds_read_b128 {vr(B4[s],4)}, v15 offset:{s*1024}")
    for s in range(32):
        if s % 8 == 4 and s + 4 < 32: gate(s // 8 + 1)
        a(f"s_waitcnt lgkmcnt({min(3, 31-s)})")
        a(f"{MF} {vr(OACC2,16)}, {vr(WO+4*s,4)}, {vr(B4[s%4],4)}, {'0' if s==0 else vr(OACC2,16)}")
        if s + 4 < 32: a(f"ds_read_b128 {vr(B4[s%4],4)}, v15 offset:{(s+4)*1024}")
    op_store(14)

def outproj_b0():
    op_addr(512, 14, 15)
    a(f"""
    v_lshlrev_b32 v0, 4, v1
    v_add_u32 v15, {KVB}, v0
    s_lshl_b32 s58, s61, 15
    s_add_u32 s58, s58, {WS_OB}
    s_lshl_b32 s57, s51, 12
    s_add_u32 s58, s58, s57
    s_add_u32 s59, s58, 16384
    s_add_u32 s57, s57, {KVB}
    """)
    LNP = a.newlabel("nopoll")
    a(f"s_cmp_lg_u32 s51, 0\ns_cbranch_scc1 {LNP}")
    a(f"v_and_b32 v2, 31, v1\nv_lshlrev_b32 v2, 7, v2\ns_lshl_b32 s56, s61, 12\ns_add_u32 s56, s56, {FB2}")
    a(f"v_and_b32 v5, 7, v1\nv_lshlrev_b32 v5, 2, v5\nv_add_u32 v5, {SYNC+64}, v5")
    L = a.newlabel("xfw"); D = a.newlabel("xfd")
    a("s_mov_b32 s50, 0x80000")
    a.label(L)
    a(f"""
    ds_read_b32 v3, v5
    s_waitcnt lgkmcnt(0)
    v_cmp_ne_u32 vcc, s{TAG}, v3
    s_nop 1
    s_cmp_eq_u64 vcc, 0
    s_cbranch_scc1 {D}
    s_sleep 4
    s_sub_u32 s50, s50, 1
    s_cmp_lg_u32 s50, 0
    s_cbranch_scc1 {L}
    """)
    a.label(D)
    stamp(8)
    poll2(2, 56, 3)
    a.label(LNP)
    a("s_barrier")
    stamp(9)
    a("s_mov_b32 m0, s57\ns_nop 0")
    for i in range(4): a(f"buffer_load_dwordx4 v0, {srd(S_WS)}, s58 offen offset:{i*1024} sc1 lds")
    a("s_add_u32 m0, s57, 16384\ns_nop 0")
    for i in range(4): a(f"buffer_load_dwordx4 v0, {srd(S_WS)}, s59 offen offset:{i*1024} sc1 lds")
    a("s_waitcnt vmcnt(4)\ns_barrier")
    for s in range(5): a(f"ds_read_b128 {vr(BUFS[s],4)}, v15 offset:{s*1024}")
    for s in range(32):
        if s == 11: a("s_waitcnt vmcnt(0)\ns_barrier")
        a(f"s_waitcnt lgkmcnt({min(4, 31-s)})")
        a(f"{MF} {vr(OACC2,16)}, {vr(WO+4*s,4)}, {vr(BUFS[s%5],4)}, {'0' if s==0 else vr(OACC2,16)}")
        if s + 5 < 32: a(f"ds_read_b128 {vr(BUFS[s%5],4)}, v15 offset:{(s+5)*1024}")
    if ORA:
        LO = a.newlabel("ora")
        a(f"s_cmp_lg_u32 s2, 37\ns_cbranch_scc1 {LO}\ns_memrealtime s[92:93]\ns_waitcnt lgkmcnt(0)\ns_sub_u32 s92, s92, s90\ns_cmp_lt_u32 s92, {ORA[0]*100}\ns_cbranch_scc1 {LO}")
        a.nop(12)
        a(f"v_mov_b32 v{OACC2}, 0x7fc00000")
        a.label(LO)
    op_store(14)

QF, NEG, OA_, SB = [2, 120], [16, 124], [32, 140], [48, 64]
PA, PB = 80, 84
KF = [96, 100]
VF = [[104, 108], [112, 116]]
VKA, VVA, VSY = 6, 7, 8
VK, VV, VKN, VVN = 13, 14, 92, 93

def att_ids():
    a(f"""
    s_lshl_b32 s58, s4, 2
    s_and_b32 s50, s5, 3
    s_add_u32 s58, s58, s50
    s_lshr_b32 s59, s5, 2
    s_lshl_b32 s59, s59, 3
    s_and_b32 s50, s3, 3
    s_lshl_b32 s50, s50, 1
    s_add_u32 s59, s59, s50
    s_lshr_b32 s60, s3, 2
    v_lshlrev_b32 v{VKA}, 4, v1
    """)

def q_load():
    a(f"""
    s_lshl_b32 s56, s58, 16
    s_lshl_b32 s57, s59, 10
    s_add_u32 s56, s56, s57
    buffer_load_dwordx4 {vr(QF[0],4)}, v{VKA}, {srd(S_WS)}, s56 offen sc1
    buffer_load_dwordx4 {vr(QF[1],4)}, v{VKA}, {srd(S_WS)}, s56 offen offset:1024 sc1
    """)

def kv_dma(vlane16, shead, swave, first_kb, n):
    a(f"""
    s_lshl_b32 s56, s{shead}, 17
    s_mul_i32 s57, s{swave}, {n*1024}
    s_add_u32 s57, s57, {first_kb*1024}
    s_add_u32 s56, s56, s57
    s_add_u32 s56, s56, {WS_KV}
    """)
    for i in range(n):
        if i % 4 == 0: a(f"s_add_u32 m0, s57, {KVB + i*1024}\ns_add_u32 s55, s56, {i*1024}")
        a(f"buffer_load_dwordx4 v{vlane16}, {srd(S_WS)}, s55 offen offset:{(i%4)*1024} sc1 lds")

def rowmax(S):
    a(f"v_max3_f32 v11, v{S}, v{S+1}, v{S+2}")
    for i in range(3, 15, 2): a(f"v_max3_f32 v11, v11, v{S+i}, v{S+i+1}")
    a(f"v_max_f32 v11, v11, v{S+15}")

def finish_negm(N):
    a(f"""
    v_mov_b32 v12, v11
    s_nop 1
    v_permlane32_swap_b32 v11, v12
    s_nop 1
    v_max_f32 v11, v11, v12
    v_sub_f32 v{N}, 0, v11
    v_sub_f32 v{N+1}, 0, v11
    """)
    for i in range(2, 16, 2): a(f"v_pk_mov_b32 v[{N+i}:{N+i+1}], v[{N}:{N+1}], v[{N}:{N+1}]")

def att_pre():
    a(f"""
    v_lshrrev_b32 v{VVA}, 5, v1
    v_lshlrev_b32 v{VVA}, 8, v{VVA}
    v_and_b32 v9, 15, v1
    v_lshlrev_b32 v9, 4, v9
    v_add_u32 v{VVA}, v{VVA}, v9
    v_add_u32 v{VVA}, {KVB+1024}, v{VVA}
    v_and_b32 v{VSY}, 3, v1
    v_lshlrev_b32 v{VSY}, 2, v{VSY}
    v_add_u32 v{VSY}, {SYNC}, v{VSY}
    s_lshl_b32 s50, s60, 13
    v_add_u32 v15, {KVB}, v{VKA}
    v_add_u32 v{VK}, s50, v15
    v_add_u32 v{VV}, s50, v{VVA}
    v_add_u32 v{VKN}, 16384, v{VK}
    v_add_u32 v{VVN}, 16384, v{VV}
    """)
    for r in range(104, 120): a(f"v_mov_b32 v{r}, 0")
    a("s_mov_b32 exec_lo, 0x110000\ns_mov_b32 exec_hi, 0x110000")
    for r in range(104, 120): a(f"v_mov_b32 v{r}, 0x3f803f80")
    a("s_mov_b64 exec, -1")
    for q in range(2):
        for i in range(16): a(f"v_mov_b32 v{OA_[q]+i}, 0")

def attention():
    for i in range(4): a(f"v_mov_b32 v{PB+i}, 0")
    a(f"""
    ds_read_b128 {vr(88,4)}, v15
    ds_read_b128 {vr(KF[0],4)}, v{VK}
    ds_read_b128 {vr(KF[1],4)}, v{VK} offset:2048
    s_mov_b64 exec, s[{MLO}:{MLO+1}]
    ds_read_b128 {vr(VF[0][0],4)}, v{VV}
    ds_read_b128 {vr(VF[0][1],4)}, v{VV} offset:512
    s_mov_b64 exec, -1
    s_waitcnt vmcnt(0) lgkmcnt(4)
    {MF} {vr(SB[0],16)}, {vr(88,4)}, {vr(QF[0],4)}, 0
    {MF} {vr(SB[1],16)}, {vr(88,4)}, {vr(QF[1],4)}, 0
    """)
    a.nop(11)
    for q in range(2):
        rowmax(SB[q]); finish_negm(NEG[q])
    if "noprio" not in OPT: a("s_setprio 2")
    a(f"s_mov_b32 s62, 0\ns_waitcnt lgkmcnt(3)\n{MF} {vr(SB[0],16)}, {vr(KF[0],4)}, {vr(QF[0],4)}, {vr(NEG[0],16)}")
    stamp(7)
    cstamp(9, True)
    a.nop(6)
    LOOP = a.newlabel("att_loop"); LS1 = a.newlabel("att_s1"); LS2 = a.newlabel("att_s2"); LS3 = a.newlabel("att_s3"); LB = a.newlabel("att_body")
    a(".p2align 6")
    a.label(LOOP)
    a(f"s_cmp_eq_u32 s62, 1\ns_cbranch_scc1 {LS1}\ns_cmp_eq_u32 s62, 4\ns_cbranch_scc1 {LS2}\ns_cmp_eq_u32 s62, 7\ns_cbranch_scc1 {LS3}")
    a.label(LB)
    kaddr = lambda u: f"v{VK} offset:{u*2048}" if u < 4 else f"v{VKN} offset:{(u-4)*2048}"
    vaddr = lambda u, o: f"v{VV} offset:{u*2048+o}" if u < 4 else f"v{VVN} offset:{(u-4)*2048+o}"
    for tl in range(4):
        kb = tl & 1
        for q in range(2):
            S = SB[q]; Sn = SB[q ^ 1]
            e = lambda i: f"v_exp_f32 v{S+i}, v{S+i}"
            c = lambda i: f"v_cvt_pk_bf16_f32 v{PA+i}, v{S+2*i}, v{S+2*i+1}"
            last = q == 1; first = q == 0
            nk = KF[kb ^ 1] if last else KF[kb]
            pv = VF[kb ^ 1] if first else VF[kb]
            if last: a("s_waitcnt lgkmcnt(2)")
            a(f"{MF} {vr(Sn,16)}, {vr(nk,4)}, {vr(QF[q^1],4)}, {vr(NEG[q^1],16)}")
            if last: a(f"ds_read_b128 {vr(KF[kb],4)}, {kaddr(tl+2)}")
            for i in range(4): a(e(i))
            a(f"{MF} {vr(OA_[q^1],16)}, {vr(pv[1],4)}, {vr(PB,4)}, {vr(OA_[q^1],16)}")
            if first:
                a(f"s_mov_b64 exec, s[{MLO}:{MLO+1}]")
                a(f"ds_read_b128 {vr(VF[kb^1][0],4)}, {vaddr(tl+1,0)}")
                a(f"ds_read_b128 {vr(VF[kb^1][1],4)}, {vaddr(tl+1,512)}")
                a("s_mov_b64 exec, -1")
            for x in [c(0), e(4), e(5), c(1), e(6), e(7), c(2), e(8), c(3), e(9), e(10)]: a(x)
            if first: a("s_waitcnt lgkmcnt(3)")
            a(f"{MF} {vr(OA_[q],16)}, {vr(VF[kb][0],4)}, {vr(PA,4)}, {vr(OA_[q],16)}")
            for x in [e(11), c(4), e(12), e(13), c(5), e(14), e(15), c(6), c(7)]: a(x)
    a(f"""
    v_mov_b32 v{VK}, v{VKN}
    v_mov_b32 v{VV}, v{VVN}
    v_add_u32 v{VKN}, 16384, v{VKN}
    v_add_u32 v{VVN}, 16384, v{VVN}
    s_add_u32 s62, s62, 1
    s_cmp_lt_u32 s62, 8
    s_cbranch_scc1 {LOOP}
    {MF} {vr(OA_[1],16)}, {vr(VF[1][1],4)}, {vr(PB,4)}, {vr(OA_[1],16)}
    """)
    stamp(8)
    cstamp(9, False)
    lds_wait(VSY, 32, 10)
    LK1 = a.newlabel("kh1"); LKD = a.newlabel("khd")
    a(f"""
    s_mul_i32 s56, s3, 2304
    s_xor_b32 s57, s3, 4
    s_mul_i32 s57, s57, 2304
    v_add_u32 v10, s56, v{VKA}
    v_add_u32 v11, s57, v{VKA}
    v_lshlrev_b32 v12, 2, v1
    v_add_u32 v9, s57, v12
    v_add_u32 v12, s56, v12
    s_lshl_b32 s56, s3, 2
    s_add_u32 s56, s56, {SYNC+64}
    s_xor_b32 s57, s56, 16
    s_add_u32 s59, s59, s60
    s_cmp_eq_u32 s60, 0
    s_cbranch_scc0 {LK1}
    ds_write_b128 v10, {vr(OA_[1],4)}
    ds_write_b128 v10, {vr(OA_[1]+4,4)} offset:1024
    ds_write_b32 v12, v{OA_[1]+8} offset:2048
    s_branch {LKD}
    """)
    a.label(LK1)
    a(f"""
    ds_write_b128 v10, {vr(OA_[0],4)}
    ds_write_b128 v10, {vr(OA_[0]+4,4)} offset:1024
    ds_write_b32 v12, v{OA_[0]+8} offset:2048
    s_nop 0
    """)
    for i in range(9): a(f"v_mov_b32 v{OA_[0]+i}, v{OA_[1]+i}")
    for i in range(4): a(f"v_mov_b32 v{QF[0]+i}, v{QF[1]+i}")
    a.label(LKD)
    a("s_waitcnt lgkmcnt(0)")
    lds_set(56, 0, 13, 14)
    a("v_mov_b32 v14, s57")
    a(f"s_lshl_b32 s56, s59, 15\ns_lshl_b32 s57, s58, 10\ns_add_u32 s56, s56, s57\ns_add_u32 s56, s56, {WS_OB}")
    a(f"s_lshl_b32 s55, s59, 12\ns_lshl_b32 s57, s58, 7\ns_add_u32 s55, s55, s57\ns_add_u32 s55, s55, {FB2}")
    lds_wait(14, 0, 13)
    O = OA_[0]
    a(f"""
    ds_read_b128 {vr(48,4)}, v11
    ds_read_b128 {vr(52,4)}, v11 offset:1024
    ds_read_b32 v56, v9 offset:2048
    v_mov_b32 v10, {f2u(2.0**60)}
    s_waitcnt lgkmcnt(0)
    """)
    for i in range(9): a(f"v_add_f32 v{O+i}, v{O+i}, v{48+i}")
    LOK = a.newlabel("att_ok"); LFB = a.newlabel("att_fb")
    a(f"v_fma_f32 v11, v{O}, 0, v{O+8}")
    for i in range(1, 8): a(f"v_fma_f32 v11, v{O+i}, 0, v11")
    a(f"v_cmp_nlt_f32 vcc, v11, v10")
    a(f"s_nop 1\ns_cmp_eq_u64 vcc, 0\ns_cbranch_scc0 {LFB}")
    a.label(LOK)
    a(f"v_rcp_f32 v10, v{O+8}\ns_nop 0")
    for i in range(8): a(f"v_mul_f32 v{O+i}, v{O+i}, v10")
    for i in range(4): a(f"v_cvt_pk_bf16_f32 v{PA+i}, v{O+2*i}, v{O+2*i+1}")
    a(f"buffer_store_dwordx4 {vr(PA,4)}, v{VKA}, {srd(S_WS)}, s56 offen sc1\ns_waitcnt vmcnt(0)")
    set_flag(55, 10, 11)
    dump_stamps()
    a("s_endpgm")
    a.label(LS1)
    lds_wait(VSY, 0, 10)
    a(f"s_branch {LB}")
    a.label(LS2)
    lds_wait(VSY, 16, 10)
    if "noprio" not in OPT: a("s_setprio 1")
    a(f"s_branch {LB}")
    a.label(LS3)
    if "noprio" not in OPT: a("s_setprio 0")
    a(f"v_mov_b32 v{VKN}, v{VK}\nv_mov_b32 v{VVN}, v{VV}\ns_branch {LB}")
    a.label(LFB)
    LM = a.newlabel("att_mx"); LP = a.newlabel("att_p2")
    S = SB[0]
    a(f"v_mov_b32 v13, v15\nv_mov_b32 v9, 0xff800000\ns_mov_b32 s62, 0")
    a.label(LM)
    a(f"ds_read_b128 {vr(KF[0],4)}, v13\ns_waitcnt lgkmcnt(0)")
    a(f"{MF} {vr(S,16)}, {vr(KF[0],4)}, {vr(QF[0],4)}, 0")
    a.nop(12)
    rowmax(S)
    a(f"""
    v_max_f32 v9, v9, v11
    v_add_u32 v13, 2048, v13
    s_add_u32 s62, s62, 1
    s_cmp_lt_u32 s62, 64
    s_cbranch_scc1 {LM}
    v_mov_b32 v11, v9
    """)
    finish_negm(NEG[0])
    for i in range(16): a(f"v_mov_b32 v{O+i}, 0")
    a(f"v_mov_b32 v13, v15\nv_mov_b32 v14, v{VVA}\ns_mov_b32 s62, 0")
    a.label(LP)
    a(f"""
    ds_read_b128 {vr(KF[0],4)}, v13
    s_mov_b64 exec, s[{MLO}:{MLO+1}]
    ds_read_b128 {vr(VF[0][0],4)}, v14
    ds_read_b128 {vr(VF[0][1],4)}, v14 offset:512
    s_mov_b64 exec, -1
    s_waitcnt lgkmcnt(0)
    {MF} {vr(S,16)}, {vr(KF[0],4)}, {vr(QF[0],4)}, {vr(NEG[0],16)}
    """)
    a.nop(12)
    for i in range(16): a(f"v_exp_f32 v{S+i}, v{S+i}")
    a("s_nop 0")
    for i in range(8): a(f"v_cvt_pk_bf16_f32 v{PA+i}, v{S+2*i}, v{S+2*i+1}")
    a(f"""
    v_add_u32 v13, 2048, v13
    v_add_u32 v14, 2048, v14
    {MF} {vr(O,16)}, {vr(VF[0][0],4)}, {vr(PA,4)}, {vr(O,16)}
    {MF} {vr(O,16)}, {vr(VF[0][1],4)}, {vr(PB,4)}, {vr(O,16)}
    s_add_u32 s62, s62, 1
    s_cmp_lt_u32 s62, 64
    s_cbranch_scc1 {LP}
    """)
    a.nop(12)
    a(f"s_branch {LOK}")

a('.amdgcn_target "amdgcn-amd-amdhsa--gfx950"\n.text')
k = NAME + "_kernel"
prologue(k)
LG1 = a.newlabel("g1"); LG2 = a.newlabel("g2"); LATT = a.newlabel("att"); LG0 = a.newlabel("g0"); LQW = a.newlabel("qwait")
a(f"s_cmp_lt_u32 s3, 4\ns_cbranch_scc1 {LG0}\ns_cmp_ge_u32 s3, 8\ns_cbranch_scc1 {LG2}")
loader()
att_ids()
att_pre()
a("s_barrier")
if YX:
    dump_stamps(); a("s_endpgm")
a.label(LQW)
a(f"v_mov_b32 v10, {SYNC+120}")
lds_wait(10, 0, 11)
stamp(5)
q_load()
a(f"v_mov_b32 v10, {SYNC+48}")
lds_wait(10, 0, 11)
if "g1kv" in OPT:
    a(f"s_cmp_lt_u32 s3, 4\ns_cbranch_scc1 {LATT}\ns_lshl_b32 s62, s51, 2\ns_add_u32 s62, s62, {SYNC}")
    kv_dma(VKA, 58, 51, 32, 12)
    kv_dma(VKA, 58, 51, 80, 12)
    a("s_waitcnt vmcnt(12)")
    lds_set(62, 0, 10, 11)
    a("s_waitcnt vmcnt(0)")
    lds_set(62, 16, 10, 11)
stamp(6)
a(f"s_branch {LATT}")
a.label(LG0)
publish_tag()
a("s_mov_b32 s51, s3")
gemm_setup()
b_addr()
a("s_barrier")
stamp(1)
cstamp(10, True)
gemm_main(0, True)
stamp(2)
cstamp(10, False)
b_epilogue()
att_ids()
a(f"""
s_lshl_b32 s61, s7, 12
s_lshl_b32 s57, s6, 7
s_add_u32 s61, s61, s57
s_lshl_b32 s57, s3, 2
s_add_u32 s61, s61, s57
s_add_u32 s61, s61, {FB1}
s_lshl_b32 s62, s4, 12
s_add_u32 s62, s62, {FB1}
s_mov_b32 s63, 0
v_lshrrev_b32 v10, 1, v1
v_lshlrev_b32 v10, 7, v10
v_and_b32 v11, 1, v1
v_lshlrev_b32 v11, 3, v11
v_add_u32 v10, v10, v11
""")
def pload():
    a(f"buffer_load_dwordx2 v[90:91], v10, {srd(S_WS)}, s62 offen sc1")
def pcheck(lfail):
    a(f"v_cmp_ne_u32 vcc, s{TAG}, v90\nv_cmp_ne_u32 s[56:57], s{TAG}, v91\ns_nop 1\ns_or_b64 vcc, vcc, s[56:57]\ns_cmp_eq_u64 vcc, 0\ns_cbranch_scc0 {lfail}")
def kv_first():
    stamp(5)
    a("s_mov_b32 s55, 0")
    kv_dma(VKA, 58, 55, 0, 32)
    q_load()
    a("s_mov_b32 s63, 2")
def tick(kv_ok, may_poll, spins):
    LT = a.newlabel("tt"); LE = a.newlabel("tk"); L1 = a.newlabel("tk1"); LP = a.newlabel("tkp"); LW = a.newlabel("tkw")
    a(f"s_mov_b32 s54, {spins}")
    a.label(LT)
    a(f"""
    s_cmp_eq_u32 s63, 2
    s_cbranch_scc1 {LE}
    s_getreg_b32 s50, hwreg(HW_REG_IB_STS, 0, 4)
    s_cmp_lg_u32 s50, 0
    s_cbranch_scc1 {LW}
    s_cmp_eq_u32 s63, 1
    s_cbranch_scc1 {L1}
    """)
    set_flag(61, 11, 12)
    stamp(3)
    a(f"s_cmp_eq_u32 s3, 0\ns_cselect_b32 s63, 1, 2\ns_cbranch_scc1 {LP}\ns_branch {LE}")
    a.label(L1)
    if kv_ok:
        pcheck(LP)
        kv_first()
        a(f"s_branch {LE}")
    a.label(LP)
    if may_poll: pload()
    else: a(f"v_mov_b32 v90, 0\ns_branch {LE}")
    a.label(LW)
    a(f"s_sleep 1\ns_sub_u32 s54, s54, 1\ns_cmp_lg_u32 s54, 0\ns_cbranch_scc1 {LT}")
    a.label(LE)
SP = [int(x[3:]) for x in OPT if x.startswith("sp=")]
SP = SP[0] if SP else 2
att_pre()
a("s_barrier")
tick(False, False, SP)
for r in range(11, 16):
    a("s_barrier")
    tick(r >= 13, r >= 12, SP)
a("s_barrier")
stamp(4)
if YX:
    dump_stamps(); a("s_endpgm")
LD0 = a.newlabel("fin0"); LD1 = a.newlabel("fin1"); LDP = a.newlabel("finp"); LDF = a.newlabel("finf")
a(f"s_cmp_lg_u32 s63, 0\ns_cbranch_scc1 {LD0}\ns_waitcnt vmcnt(0)")
set_flag(61, 11, 12)
a(f"s_cmp_lg_u32 s3, 0\ns_cbranch_scc1 {LQW}\ns_mov_b32 s63, 1")
pload()
a.label(LD0)
a(f"s_cmp_lg_u32 s3, 0\ns_cbranch_scc1 {LQW}")
a(f"s_cmp_eq_u32 s63, 2\ns_cbranch_scc1 {LD1}\ns_mov_b32 s54, {POLL_LIMIT}")
a.label(LDP)
a("s_waitcnt vmcnt(0)")
pcheck(LDF)
kv_first()
a(f"s_branch {LD1}")
a.label(LDF)
pload()
a(f"s_sub_u32 s54, s54, 1\ns_cmp_lg_u32 s54, 0\ns_cbranch_scc1 {LDP}")
a.label(LD1)
a(f"s_mov_b32 s56, {SYNC}")
lds_set(56, 120, 10, 11)
a("s_waitcnt vmcnt(0)")
lds_set(56, 48, 10, 11)
stamp(6)
a.label(LATT)
attention()
a.label(LG2)
a("s_sub_u32 s51, s3, 8\ns_setprio 3")
gemm_setup()
a_local_setup()
for _ in range(9): a("s_barrier")
stamp(1)
gemm_main(8, True)
stamp(2)
if YX:
    dump_stamps(); a("s_endpgm")
a("s_waitcnt vmcnt(0)")
tag_from(9, 10)
a_local_front()
if "g1kv" not in OPT:
    a(f"""
s_lshl_b32 s61, s4, 2
s_and_b32 s50, s5, 3
s_add_u32 s61, s61, s50
v_lshlrev_b32 v10, 4, v1
s_lshl_b32 s62, s51, 2
s_add_u32 s62, s62, {SYNC}
v_and_b32 v11, 3, v1
v_lshlrev_b32 v11, 2, v11
v_add_u32 v11, {SYNC}, v11
s_mov_b32 s63, s55
s_mov_b32 s53, s57
""")
    a(f"v_mov_b32 v13, {SYNC+48}")
    lds_wait(13, 0, 12)
    kv_dma(10, 61, 51, 32, 12)
    kv_dma(10, 61, 51, 80, 12)
    LHF = a.newlabel("nohf")
    a(f"s_cmp_lg_u32 s52, 1\ns_cbranch_scc1 {LHF}\ns_waitcnt vmcnt(24)")
    set_flag(59, 12, 13)
    a.label(LHF)
    a("s_waitcnt vmcnt(12)")
    lds_set(62, 0, 12, 13)
    a("s_waitcnt vmcnt(0)\ns_mov_b32 s55, s63\ns_mov_b32 s57, s53")
    lds_set(62, 16, 12, 13)
else:
    a(f"v_and_b32 v11, 3, v1\nv_lshlrev_b32 v11, 2, v11\nv_add_u32 v11, {SYNC}, v11")
stamp(10)
LSKIP = a.newlabel("skipA")
if "z1" in OPT:
    op_setup()
    a(f"s_branch {LSKIP}")
a_local_back()
stamp(3)
lds_wait(11, 96, 12)
op_setup()
if "z3" not in OPT: wo_preload(S_AWO)
stamp(4)
GP = [int(x[3:]) for x in OPT if x.startswith("gp=")]
if GP: a(f"s_setprio {GP[0]}")
if "z2" not in OPT: outproj_a()
if GP: a("s_setprio 3")
stamp(6)
if "z3" not in OPT: wo_preload(S_BWO)
a.label(LSKIP)
a(f"s_lshl_b32 s56, s51, 2\ns_add_u32 s56, s56, {SYNC}")
lds_set(56, 32, 2, 3)
stamp(7)
outproj_b()
dump_stamps()
a("s_endpgm")
a.label("L_exit")
a("s_endpgm")

hdr = open(f"cdna_kernels/{NAME}.s.ref").read().split("; Override")[0]
hdr += f"; @launch grid=(256,1,1) block=(768,1,1) lds={LDS_BYTES}\n"
tail = f'''.section .rodata,"a"
.p2align 6
.amdhsa_kernel {k}
  .amdhsa_next_free_vgpr 168
  .amdhsa_next_free_sgpr 96
  .amdhsa_accum_offset 168
  .amdhsa_group_segment_fixed_size 0
  .amdhsa_kernarg_size 72
  .amdhsa_user_sgpr_count 2
  .amdhsa_user_sgpr_kernarg_segment_ptr 1
  .amdhsa_system_sgpr_workgroup_id_x 1
.end_amdhsa_kernel
'''
if "y1" in OPT:
    a.lines = [l for l in a.lines if not (l.startswith("buffer_store_dwordx4 v[") and "sc1" in l)]
probs = check(a.lines)
for p in probs: print(p)
open(OUT, "w").write(hdr + a.text() + tail)
print("wrote", OUT, len(a.lines), "lines;", len(probs), "hazards")
```
